```python
import torch

def _softmax(x, axis=-1):
    return torch.softmax(x, dim=axis)
def _gelu(x):
    return torch.nn.functional.gelu(x, approximate="tanh")
def _silu(x):
    return torch.nn.functional.silu(x)
def _sigmoid(x):
    return torch.sigmoid(x)
def _layernorm(x, axis=-1, eps=1e-5):
    m = x.mean(dim=axis, keepdim=True)
    v = x.var(dim=axis, keepdim=True, unbiased=False)
    return (x - m) / torch.sqrt(v + eps)
def _scatter_add(tgt, idx, src, axis=0):
    return tgt.clone().index_add_(axis, idx, src)
def _segment_sum(src, seg, n):
    out = torch.zeros((n,) + src.shape[1:], dtype=src.dtype)
    return out.index_add_(0, seg, src)
def _pad(x, pw):
    flat = tuple(v for pair in reversed(pw) for v in pair)
    return torch.nn.functional.pad(x, flat)

kernel_name = 'parallel_sum__mha_block_cached__swiglu_ffn__decode'

def setup_inputs():

    _w = (lambda a: (lambda t: t.to(torch.bfloat16) if t.is_floating_point() else t)(torch.as_tensor(a)))
    def _A_setup():
        B, Sq, D = 2, 1, 448
        H, Sk, Dh = 16, 8192, 256
        return {
            "x": _w((lambda *s: torch.randn(*s, dtype=torch.bfloat16) * 0.05)(B, Sq, D)),
            "k_cache": _w((lambda *s: torch.randn(*s, dtype=torch.bfloat16) * 3.2)(B, H, Sk, Dh)),
            "v_cache": _w((lambda *s: torch.randn(*s, dtype=torch.bfloat16) * 1.6)(B, H, Sk, Dh)),
            "wq": _w((lambda *s: torch.randn(*s, dtype=torch.bfloat16) * 3.2)(D, H * Dh) * (D ** -0.5)),
            "wo": _w((lambda *s: torch.randn(*s, dtype=torch.bfloat16) * 1.6)(H * Dh, D) * ((H * Dh) ** -0.5)),
        }
    _A_in = _A_setup()

    def _B_setup():
        B, S, D, F = 2, 1, 448, 1792
        return {
            "x": _w((lambda *s: torch.randn(*s, dtype=torch.bfloat16) * 0.05)(B, S, D)),
            "w_gate": _w((lambda *s: torch.randn(*s, dtype=torch.bfloat16) * 0.05)(D, F)),
            "w_up": _w((lambda *s: torch.randn(*s, dtype=torch.bfloat16) * 0.05)(D, F)),
            "w_down": _w((lambda *s: torch.randn(*s, dtype=torch.bfloat16) * 0.05)(F, D)),
        }
    _B_in = _B_setup()

    return {
        "A_x": _A_in["x"],
        "A_k_cache": _A_in["k_cache"],
        "A_v_cache": _A_in["v_cache"],
        "A_wq": _A_in["wq"],
        "A_wo": _A_in["wo"],
        "B_x": _B_in["x"],
        "B_w_gate": _B_in["w_gate"],
        "B_w_up": _B_in["w_up"],
        "B_w_down": _B_in["w_down"],
    }

def reference(A_x, A_k_cache, A_v_cache, A_wq, A_wo, B_x, B_w_gate, B_w_up, B_w_down):
    def _A_ref(x, k_cache, v_cache, wq, wo):
        B, Sq, D = x.shape
        H, Dh = 16, 256
        q = (lambda x, *d: x.permute(*d))((x @ wq).reshape(B, Sq, H, Dh), 0, 2, 1, 3)
        scores = torch.einsum("bhqd,bhkd->bhqk", q, k_cache) * (Dh ** -0.5)
        p = _softmax(scores, axis=-1)
        o = torch.einsum("bhqk,bhkd->bhqd", p, v_cache)
        return (lambda x, *d: x.permute(*d))(o, 0, 2, 1, 3).reshape(B, Sq, H * Dh) @ wo

    def _B_ref(x, w_gate, w_up, w_down):
        g = _silu(x @ w_gate)
        u = x @ w_up
        return (g * u) @ w_down

    x = A_x
    xn = _layernorm(x, axis=-1)
    return x + _A_ref(xn, A_k_cache, A_v_cache, A_wq, A_wo) + _B_ref(xn, B_w_gate, B_w_up, B_w_down)
```

```python
import sys, struct

KN = "parallel_sum__mha_block_cached__swiglu_ffn__decode_kernel"
out = []
def A(s):
    for line in s.split("\n"):
        out.append(line)

def f32bits(x):
    return struct.unpack("<I", struct.pack("<f", x))[0]

class VM:
    def __init__(self): self.q = []
    def issue(self, tag): self.q.append(tag)
    def wait(self, tag):
        idx = max(i for i, t in enumerate(self.q) if t == tag)
        n = len(self.q) - 1 - idx
        A(f"s_waitcnt vmcnt({min(n,63)})")
        self.q = self.q[idx+1:] if n <= 63 else self.q[len(self.q)-63:]
    def wait_all(self):
        A("s_waitcnt vmcnt(0)")
        self.q = []
vm = VM()

XNF = 0
XNB = 3584
QB = 5376
TICK = 5888
MLS = 5952
GUS = 6016
HS = 6528
PL = 8192
QP = 16384
YP = 32768
GP = 49152
DP = 81920
LDS_BYTES = 110592

WS_Y = 0
WS_ML = 0x70000
WS_FP = 0x71000
NFFN = 56
NFIN = 14

SX, SK, SV, SWQ, SWO, SGU, SWD, SOUT, SDBG, SWS = 40, 44, 48, 52, 56, 60, 64, 68, 72, 76
def srd(r): return f"s[{r}:{r+3}]"

B = [64, 96, 128, 160, 192, 224]
Q = 32

A(f"; @launch grid=(256,1,1) block=(512,1,1) lds={LDS_BYTES}")
A('.amdgcn_target "amdgcn-amd-amdhsa--gfx950"')
A(".text")
A(f".globl {KN}\n.p2align 8\n.type {KN},@function\n{KN}:")
A("s_cmp_ge_u32 s2, 256\ns_cbranch_scc1 L_end")
A("s_load_dwordx16 s[16:31], s[0:1], 0")
A("s_load_dwordx8 s[32:39], s[0:1], 64")
A("v_and_b32 v1, 63, v0")
A("v_lshrrev_b32 v4, 6, v0")
A("s_nop 0")
A("v_readfirstlane_b32 s6, v4")
A("""s_and_b32 s9, s2, 7
s_lshr_b32 s10, s2, 3
s_and_b32 s3, s10, 1
s_lshl_b32 s3, s3, 3
s_add_u32 s3, s3, s9
s_lshr_b32 s4, s10, 1
s_and_b32 s4, s4, 1
s_lshr_b32 s5, s10, 2
s_lshl_b32 s7, s4, 4
s_add_u32 s7, s7, s3
s_lshl_b32 s8, s7, 22
s_lshl_b32 s9, s5, 19
s_add_u32 s8, s8, s9
s_lshl_b32 s9, s6, 13
s_add_u32 s8, s8, s9""")
A("s_mov_b32 s11, 0x05040100\ns_mov_b32 s12, 0x07060302")
A(f"s_mov_b32 s13, 0x{f32bits(0.0625*1.4426950408889634):08x}")
A("s_mov_b32 s14, 0xffff0000")
A("""v_and_b32 v2, 15, v1
v_lshlrev_b32 v2, 9, v2
v_lshrrev_b32 v4, 4, v1
v_lshl_or_b32 v2, v4, 4, v2
v_lshlrev_b32 v3, 4, v1
v_mov_b32 v5, 0x7f000000
v_cmp_gt_u32 vcc, 56, v1
s_nop 1
v_cndmask_b32 v31, v5, v3, vcc""")
A("s_waitcnt lgkmcnt(0)")
def mk(r, lo, nbytes):
    A(f"s_mov_b32 s{r}, s{lo}\ns_mov_b32 s{r+1}, s{lo+1}\ns_mov_b32 s{r+2}, 0x{nbytes:x}\ns_mov_b32 s{r+3}, 0x20000")
mk(SX, 16, 1792); mk(SK, 18, 1<<27); mk(SV, 20, 1<<27); mk(SWQ, 22, 448*4096*2); mk(SWO, 24, 4096*448*2)
mk(SWD, 32, 1792*448*2); mk(SOUT, 34, 1792); mk(SDBG, 36, 256); mk(SWS, 38, 1<<20)
A("s_cmp_lt_u32 s6, 4")
A(f"s_cselect_b32 s{SGU}, s28, s30\ns_cselect_b32 s{SGU+1}, s29, s31\ns_mov_b32 s{SGU+2}, 0x{448*1792*2:x}\ns_mov_b32 s{SGU+3}, 0x20000")

A(f"s_cmp_lt_u32 s2, {NFFN}\ns_cbranch_scc0 L_noffn0")
A("""v_lshrrev_b32 v6, 2, v1
s_movk_i32 s9, 3584
v_mul_lo_u32 v6, v6, s9
v_and_b32 v7, 3, v1
v_lshl_add_u32 v6, v7, 4, v6
s_and_b32 s9, s6, 3
s_mul_i32 s9, s9, 401408
s_lshl_b32 s10, s2, 6
s_add_u32 s9, s9, s10""")
for j in range(7):
    A(f"buffer_load_dwordx4 v[{Q+4*j}:{Q+4*j+3}], v6, {srd(SGU)}, s9 offen")
    if j < 6: A("s_add_u32 s9, s9, 57344")
A("s_lshl_b32 s9, s2, 3\ns_add_u32 s9, s9, s6\ns_mul_i32 s9, s9, 3584")
for j in range(4):
    A(f"buffer_load_dwordx4 v[{240+4*j}:{240+4*j+3}], v31, {srd(SWD)}, s9 offen offset:{896*j}")
A("L_noffn0:")

A(f"buffer_load_dwordx4 v[8:11], v31, {srd(SX)}, 0 offen"); vm.issue("x")
A(f"buffer_load_dwordx4 v[12:15], v31, {srd(SX)}, 0 offen offset:896"); vm.issue("x")
A("""v_lshrrev_b32 v5, 5, v1
s_mov_b32 s9, 229376
v_mul_lo_u32 v5, v5, s9
v_and_b32 v6, 31, v1
v_lshl_add_u32 v5, v6, 4, v5
s_mul_i32 s9, s6, 458752
s_lshl_b32 s10, s3, 9
s_add_u32 s9, s9, s10""")
for j in range(28):
    A(f"buffer_load_dwordx4 v[{128+4*j}:{128+4*j+3}], v5, {srd(SWQ)}, s9 offen"); vm.issue(f"wq{j}")
    if j < 27: A("s_add_u32 s9, s9, 8192")

def issue_tile(n):
    b = B[n % 6]
    if n < 8:
        A(f"s_add_u32 s9, s8, {n*65536}")
        for j in range(8):
            A(f"buffer_load_dwordx4 v[{b+4*j}:{b+4*j+3}], v2, {srd(SK)}, s9 offen offset:{64*j} nt"); vm.issue(f"t{n}")
    else:
        A(f"s_add_u32 s9, s8, {(n-8)*65536}\ns_add_u32 s10, s9, 4096")
        for j in range(8):
            A(f"buffer_load_dwordx4 v[{b+4*j}:{b+4*j+3}], v3, {srd(SV)}, {'s9' if j<4 else 's10'} offen offset:{1024*(j%4)} nt"); vm.issue(f"t{n}")
issue_tile(0); issue_tile(1)

def row_reduce(op, v, tmp):
    for r in (8, 4, 2, 1):
        A("s_nop 1")
        A(f"{op}_dpp v{tmp}, v{v}, v{v} row_ror:{r} row_mask:0xf bank_mask:0xf")
        A(f"v_mov_b32 v{v}, v{tmp}")
def wave_sum(v, tmp):
    row_reduce("v_add_f32", v, tmp)
    A("s_nop 0")
    for i in range(4): A(f"v_readlane_b32 s{80+i}, v{v}, {16*i}")
    A("s_nop 1")
    A(f"v_mov_b32 v{v}, s80\nv_add_f32 v{v}, s81, v{v}\nv_add_f32 v{v}, s82, v{v}\nv_add_f32 v{v}, s83, v{v}")
def div448(v, tmp1, tmp2):
    A(f"v_mul_f32 v{tmp1}, 0x{f32bits(1.0/448):08x}, v{v}")
    A(f"v_mov_b32 v{tmp2}, 0x{f32bits(448.0):08x}")
    A(f"v_fma_f32 v{tmp2}, -v{tmp1}, v{tmp2}, v{v}")
    A(f"v_mul_f32 v{tmp2}, 0x{f32bits(1.0/448):08x}, v{tmp2}")
    A(f"v_add_f32 v{v}, v{tmp1}, v{tmp2}")
def rbf(vd, vs):
    A(f"v_cvt_pk_bf16_f32 v{vd}, 0, v{vs}")

vm.wait("x")
for bb in range(2):
    r = 8 + 4*bb
    E = 16
    for k in range(4):
        A(f"v_lshlrev_b32 v{E+2*k}, 16, v{r+k}\nv_and_b32 v{E+2*k+1}, s14, v{r+k}")
    A(f"v_add_f32 v24, v{E}, v{E+1}")
    for k in range(2, 8): A(f"v_add_f32 v24, v24, v{E+k}")
    wave_sum(24, 25)
    div448(24, 25, 26)
    A("v_mov_b32 v27, 0")
    for k in range(8):
        A(f"v_sub_f32 v25, v{E+k}, v24\nv_fmac_f32 v27, v25, v25")
    A("v_cmp_gt_u32 vcc, 56, v1\ns_nop 1\nv_cndmask_b32 v27, 0, v27, vcc")
    wave_sum(27, 25)
    div448(27, 25, 26)
    rbf(27, 27)
    rbf(24, 24)
    A(f"v_add_f32 v27, 0x{f32bits(1e-5):08x}, v27")
    rbf(27, 27)
    A("v_sqrt_f32 v27, v27\ns_nop 0")
    rbf(27, 27)
    A("v_rcp_f32 v28, v27\ns_nop 0")
    for k in range(8):
        A(f"v_sub_f32 v{E+k}, v{E+k}, v24")
        rbf(E+k, E+k)
        A(f"v_mul_f32 v25, v{E+k}, v28")
        A(f"v_fma_f32 v26, -v25, v27, v{E+k}")
        A(f"v_fma_f32 v{E+k}, v26, v28, v25")
    for k in range(4):
        A(f"v_cvt_pk_bf16_f32 v{r+k}, v{E+2*k}, v{E+2*k+1}")
    for k in range(4):
        A(f"v_lshlrev_b32 v{E+2*k}, 16, v{r+k}\nv_and_b32 v{E+2*k+1}, s14, v{r+k}")
    A("s_mov_b32 exec_hi, 0x00ffffff")
    A(f"ds_write_b128 v3, v[{r}:{r+3}] offset:{XNB+896*bb}")
    A("v_lshlrev_b32 v25, 5, v1")
    A(f"ds_write_b128 v25, v[{E}:{E+3}] offset:{XNF+1792*bb}")
    A(f"ds_write_b128 v25, v[{E+4}:{E+7}] offset:{XNF+1792*bb+16}")
    A("s_mov_b32 exec_hi, -1")

A("""v_lshrrev_b32 v5, 5, v1
v_mul_u32_u24 v5, 56, v5
s_mul_i32 s9, s6, 112
s_mul_i32 s10, s4, 896
s_add_u32 s9, s9, s10
v_add_u32 v5, s9, v5""")
A("s_waitcnt lgkmcnt(0)")
for i in range(7):
    A(f"ds_read_b64 v[{16+2*i}:{17+2*i}], v5 offset:{XNB+8*i}")
for k in range(8): A(f"v_mov_b32 v{4+k}, 0")
A("s_waitcnt lgkmcnt(0)")
for jp in range(14):
    R0 = 128 + 8*jp; R1 = R0 + 4
    vm.wait(f"wq{2*jp+1}")
    for k in range(4):
        A(f"v_perm_b32 v12, v{R1+k}, v{R0+k}, s11")
        A(f"v_perm_b32 v13, v{R1+k}, v{R0+k}, s12")
        A(f"v_dot2_f32_bf16 v{4+2*k}, v12, v{16+jp}, v{4+2*k}")
        A(f"v_dot2_f32_bf16 v{5+2*k}, v13, v{16+jp}, v{5+2*k}")
A("s_lshl_b32 s9, s6, 11\nv_lshlrev_b32 v12, 5, v1\nv_add_u32 v12, s9, v12\ns_nop 3")
A(f"ds_write_b128 v12, v[4:7] offset:{QP}\nds_write_b128 v12, v[8:11] offset:{QP+16}")
issue_tile(2); issue_tile(3); issue_tile(4)

A(f"s_cmp_lt_u32 s2, {NFFN}\ns_cbranch_scc0 L_noffn1")
A("""s_and_b32 s9, s6, 3
s_mul_i32 s9, s9, 448
v_lshrrev_b32 v26, 2, v1
v_lshlrev_b32 v26, 2, v26
v_add_u32 v26, s9, v26""")
for k in range(16): A(f"v_mov_b32 v{4+k}, 0")
for j in range(7):
    A(f"ds_read_b32 v20, v26 offset:{XNF+64*j}\nds_read_b32 v21, v26 offset:{XNF+1792+64*j}")
    A("s_waitcnt lgkmcnt(0)")
    for k in range(4):
        w = Q + 4*j + k
        A(f"v_lshlrev_b32 v22, 16, v{w}\nv_and_b32 v23, s14, v{w}")
        A(f"v_fmac_f32 v{4+2*k}, v20, v22\nv_fmac_f32 v{5+2*k}, v20, v23")
        A(f"v_fmac_f32 v{12+2*k}, v21, v22\nv_fmac_f32 v{13+2*k}, v21, v23")
A("""v_lshrrev_b32 v27, 2, v1
v_lshlrev_b32 v27, 8, v27
v_and_b32 v22, 3, v1
v_lshl_add_u32 v27, v22, 5, v27
s_lshl_b32 s9, s6, 12
v_add_u32 v27, s9, v27""")
A(f"ds_write_b128 v27, v[4:7] offset:{GP}\nds_write_b128 v27, v[8:11] offset:{GP+16}")
A(f"ds_write_b128 v27, v[12:15] offset:{GP+128}\nds_write_b128 v27, v[16:19] offset:{GP+144}")
A("s_waitcnt lgkmcnt(0)\ns_barrier")
A("s_cmp_lt_u32 s6, 2\ns_cbranch_scc0 L_ffn_a")
A("s_lshl_b32 s9, s6, 14\nv_lshlrev_b32 v26, 2, v1\nv_add_u32 v26, s9, v26")
A("v_mov_b32 v4, 0")
for g in range(4):
    for i in range(16):
        A(f"ds_read_b32 v{8+i}, v26 offset:{GP+4096*g+256*i}")
    A("s_waitcnt lgkmcnt(0)")
    for i in range(16): A(f"v_add_f32 v4, v4, v{8+i}")
rbf(4, 4)
A("s_lshl_b32 s9, s6, 8\nv_lshlrev_b32 v26, 2, v1\nv_add_u32 v26, s9, v26")
A(f"ds_write_b32 v26, v4 offset:{GUS}")
A("L_ffn_a:")
A("s_waitcnt lgkmcnt(0)\ns_barrier")
A("s_cmp_eq_u32 s6, 0\ns_cbranch_scc0 L_ffn_b")
A("v_lshlrev_b32 v26, 2, v1")
A(f"ds_read_b32 v4, v26 offset:{GUS}\nds_read_b32 v5, v26 offset:{GUS+256}")
A("s_waitcnt lgkmcnt(0)")
A(f"v_mul_f32 v6, 0x{f32bits(-1.4426950408889634):08x}, v4")
A("v_exp_f32 v6, v6\ns_nop 0\nv_add_f32 v6, 1.0, v6\nv_rcp_f32 v7, v6\ns_nop 0")
A("v_mul_f32 v8, v4, v7\nv_fma_f32 v9, -v8, v6, v4\nv_fma_f32 v8, v9, v7, v8")
rbf(8, 8)
A("v_mul_f32 v8, v8, v5")
rbf(8, 8)
A(f"ds_write_b32 v26, v8 offset:{HS}")
A("L_ffn_b:")
A("s_waitcnt lgkmcnt(0)\ns_barrier")
A("s_lshl_b32 s9, s6, 4\nv_mov_b32 v26, s9")
A(f"ds_read_b128 v[20:23], v26 offset:{HS}\nds_read_b128 v[24:27], v26 offset:{HS+128}")
for k in range(16): A(f"v_mov_b32 v{4+k}, 0")
A("s_waitcnt lgkmcnt(0)")
for j in range(4):
    for k in range(4):
        w = 240 + 4*j + k
        A(f"v_lshlrev_b32 v28, 16, v{w}\nv_and_b32 v29, s14, v{w}")
        A(f"v_fmac_f32 v{4+2*k}, v{20+j}, v28\nv_fmac_f32 v{5+2*k}, v{20+j}, v29")
        A(f"v_fmac_f32 v{12+2*k}, v{24+j}, v28\nv_fmac_f32 v{13+2*k}, v{24+j}, v29")
A(f"s_mul_i32 s9, s6, 3584\ns_add_u32 s9, s9, {DP}\nv_lshlrev_b32 v28, 5, v1\nv_add_u32 v28, s9, v28")
A("s_mov_b32 exec_hi, 0x00ffffff")
A(f"ds_write_b128 v28, v[4:7]\nds_write_b128 v28, v[8:11] offset:16")
A(f"ds_write_b128 v28, v[12:15] offset:1792\nds_write_b128 v28, v[16:19] offset:{1792+16}")
A("s_mov_b32 exec_hi, -1")
A("s_waitcnt lgkmcnt(0)\ns_barrier")
A("v_cmp_gt_u32 vcc, 224, v0\ns_and_saveexec_b64 s[80:81], vcc\ns_cbranch_execz L_ffn_c")
A(f"v_lshlrev_b32 v28, 4, v0\nv_add_u32 v29, {DP}, v28")
for w in range(6):
    A(f"ds_read_b128 v[{4+4*w}:{7+4*w}], v29 offset:{3584*w}")
A("s_waitcnt lgkmcnt(0)")
for w in range(1, 6):
    for k in range(4): A(f"v_add_f32 v{4+k}, v{4+k}, v{4+4*w+k}")
A(f"ds_read_b128 v[8:11], v29 offset:{3584*6}\nds_read_b128 v[12:15], v29 offset:{3584*7}")
A("s_waitcnt lgkmcnt(0)")
for w in range(1, 3):
    for k in range(4): A(f"v_add_f32 v{4+k}, v{4+k}, v{4+4*w+k}")
A(f"s_mul_i32 s9, s2, 3584\ns_add_u32 s9, s9, 0x{WS_FP:x}")
A(f"buffer_store_dwordx4 v[4:7], v28, {srd(SWS)}, s9 offen sc1")
A("L_ffn_c:")
A("s_mov_b64 exec, -1")
A("L_noffn1:")

A("s_waitcnt lgkmcnt(0)\ns_barrier")
issue_tile(5)
A("s_cmp_lt_u32 s6, 4\ns_cbranch_scc0 L_q_a")
A("v_lshlrev_b32 v12, 2, v0")
for i in range(16): A(f"ds_read_b32 v{14+i}, v12 offset:{QP+1024*i}")
A("s_waitcnt lgkmcnt(0)")
A("v_add_f32 v4, v14, v15")
for i in range(2, 16): A(f"v_add_f32 v4, v4, v{14+i}")
A("v_cvt_pk_bf16_f32 v4, v4, v4\nv_lshlrev_b32 v12, 1, v0")
A(f"ds_write_b16 v12, v4 offset:{QB}")
A("L_q_a:")
A("s_waitcnt lgkmcnt(0)\ns_barrier")
A("v_lshrrev_b32 v12, 4, v1\nv_lshlrev_b32 v12, 4, v12")
for j in range(8): A(f"ds_read_b128 v[{Q+4*j}:{Q+4*j+3}], v12 offset:{QB+64*j}")
A("s_waitcnt lgkmcnt(0)")

for t in range(8):
    b = B[t % 6]
    acc = 12 + 4*(t & 1)
    vm.wait(f"t{t}")
    for j in range(8):
        c = "0" if j == 0 else f"v[{acc}:{acc+3}]"
        A(f"v_mfma_f32_16x16x32_bf16 v[{acc}:{acc+3}], v[{Q+4*j}:{Q+4*j+3}], v[{b+4*j}:{b+4*j+3}], {c}")
    issue_tile(t + 6)
    if t > 0:
        rbf(4 + t - 1, 12 + 4*((t-1) & 1))
A("s_nop 7\ns_nop 1")
rbf(4 + 7, 12 + 4*(7 & 1))
A("v_max3_f32 v30, v4, v5, v6\nv_max3_f32 v30, v30, v7, v8\nv_max3_f32 v30, v30, v9, v10\nv_max_f32 v30, v30, v11")
row_reduce("v_max_f32", 30, 12)
for t in range(8):
    A(f"v_sub_f32 v12, v{4+t}, v30\nv_mul_f32 v12, s13, v12\nv_exp_f32 v{4+t}, v12")
A("s_nop 0")
A("v_add_f32 v31, v4, v5")
for t in range(2, 8): A(f"v_add_f32 v31, v31, v{4+t}")
row_reduce("v_add_f32", 31, 12)
A("""v_and_b32 v12, 1, v1
v_lshlrev_b32 v12, 5, v12
v_lshrrev_b32 v13, 1, v1
v_lshl_add_u32 v12, v13, 2, v12
s_lshl_b32 s15, s6, 9
v_add_u32 v12, s15, v12
s_mov_b64 exec, 0xffff""")
for t in range(8): A(f"ds_write_b32 v12, v{4+t} offset:{PL+64*t}")
A("s_mov_b64 exec, -1")
A("v_lshrrev_b32 v29, 5, v1\nv_lshlrev_b32 v29, 5, v29\nv_add_u32 v29, s15, v29")
A("s_waitcnt lgkmcnt(0)")

A("v_mov_b32 v12, 0x7f000000\nv_cmp_gt_u32 vcc, 56, v1\ns_nop 1\nv_cndmask_b32 v2, v12, v3, vcc")
A("s_lshl_b32 s15, s3, 3\ns_add_u32 s15, s15, s6\ns_mul_i32 s15, s15, 28672")
wo_buf = [B[4], B[5], B[0], B[1]]
def issue_wo(g):
    b = wo_buf[g]
    for half in range(2):
        A(f"s_add_u32 s9, s15, {(g*8+half*4)*896}")
        for j in range(4):
            r = b + 16*half + 4*j
            A(f"buffer_load_dwordx4 v[{r}:{r+3}], v2, {srd(SWO)}, s9 offen offset:{896*j}"); vm.issue(f"wo{g}")
for k in range(8): A(f"v_mov_b32 v{4+k}, 0")
PV = [12, 20]
A(f"ds_read_b128 v[12:15], v29 offset:{PL}\nds_read_b128 v[16:19], v29 offset:{PL+16}")
for t in range(8):
    n = 8 + t
    b = B[n % 6]
    pv = PV[t & 1]
    A("s_waitcnt lgkmcnt(0)")
    if t < 7:
        pn = PV[(t+1) & 1]
        A(f"ds_read_b128 v[{pn}:{pn+3}], v29 offset:{PL+64*(t+1)}\nds_read_b128 v[{pn+4}:{pn+7}], v29 offset:{PL+64*(t+1)+16}")
    vm.wait(f"t{n}")
    for j in range(8):
        for k in range(4):
            w = b + 4*j + k
            A(f"v_lshlrev_b32 v28, 16, v{w}\nv_fmac_f32 v{4+2*k}, v{pv+j}, v28")
            A(f"v_and_b32 v28, s14, v{w}\nv_fmac_f32 v{5+2*k}, v{pv+j}, v28")
    if n + 6 < 16: issue_tile(n + 6)
    if 10 <= n <= 13: issue_wo(n - 10)

A("s_lshl_b32 s9, s6, 11\nv_lshlrev_b32 v12, 5, v1\nv_add_u32 v12, s9, v12")
A(f"ds_write_b128 v12, v[4:7] offset:{QP}\nds_write_b128 v12, v[8:11] offset:{QP+16}")
A("s_lshl_b32 s9, s6, 3\nv_mov_b32 v12, s9\ns_mov_b64 exec, 1")
A(f"ds_write_b64 v12, v[30:31] offset:{MLS}")
A("s_mov_b64 exec, -1")
A("s_waitcnt lgkmcnt(0)\ns_barrier")
A("v_mov_b32 v12, 0")
for i in range(4): A(f"ds_read_b128 v[{Q+4*i}:{Q+4*i+3}], v12 offset:{MLS+16*i}")
A("v_and_b32 v12, 31, v1\nv_lshlrev_b32 v12, 2, v12\ns_lshl_b32 s9, s6, 7\nv_add_u32 v12, s9, v12")
for w in range(8):
    A(f"ds_read_b32 v{Q+16+2*w}, v12 offset:{QP+2048*w}\nds_read_b32 v{Q+17+2*w}, v12 offset:{QP+2048*w+1024}")
A("s_waitcnt lgkmcnt(0)")
A(f"v_max3_f32 v30, v{Q}, v{Q+2}, v{Q+4}\nv_max3_f32 v30, v30, v{Q+6}, v{Q+8}\nv_max3_f32 v30, v30, v{Q+10}, v{Q+12}\nv_max_f32 v30, v30, v{Q+14}")
A("v_mov_b32 v31, 0\nv_mov_b32 v13, 0")
for w in range(8):
    A(f"v_sub_f32 v14, v{Q+2*w}, v30\nv_mul_f32 v14, s13, v14\nv_exp_f32 v14, v14")
    A(f"v_add_f32 v15, v{Q+16+2*w}, v{Q+17+2*w}")
    A(f"v_fmac_f32 v31, v14, v{Q+2*w+1}\nv_fmac_f32 v13, v14, v15")
for k in range(8): A(f"v_mov_b32 v{4+k}, 0")
for g in range(4):
    b = wo_buf[g]
    A("s_nop 0")
    for i in range(8): A(f"v_readlane_b32 s{80+i}, v13, {8*g+i}")
    vm.wait(f"wo{g}")
    A("s_nop 1")
    for i in range(8):
        for k in range(4):
            w = b + 4*i + k
            A(f"v_lshlrev_b32 v28, 16, v{w}\nv_fmac_f32 v{4+2*k}, s{80+i}, v28")
            A(f"v_and_b32 v28, s14, v{w}\nv_fmac_f32 v{5+2*k}, s{80+i}, v28")
A("s_mul_i32 s9, s6, 1792\nv_lshlrev_b32 v12, 5, v1\nv_add_u32 v12, s9, v12")
A("s_mov_b32 exec_hi, 0x00ffffff")
A(f"ds_write_b128 v12, v[4:7] offset:{YP}\nds_write_b128 v12, v[8:11] offset:{YP+16}")
A("s_mov_b32 exec_hi, -1")
A("s_waitcnt lgkmcnt(0)\ns_barrier")
A("s_lshl_b32 s15, s7, 3\ns_add_u32 s15, s15, s5")
A("v_cmp_gt_u32 vcc, 112, v0\ns_and_saveexec_b64 s[80:81], vcc\ns_cbranch_execz L_y_a")
A("v_lshlrev_b32 v12, 4, v0")
for w in range(8): A(f"ds_read_b128 v[{Q+4*w}:{Q+4*w+3}], v12 offset:{YP+1792*w}")
A("s_waitcnt lgkmcnt(0)")
for w in range(1, 8):
    for k in range(4): A(f"v_add_f32 v{Q+k}, v{Q+k}, v{Q+4*w+k}")
A("s_mul_i32 s9, s15, 1792")
A(f"buffer_store_dwordx4 v[{Q}:{Q+3}], v12, {srd(SWS)}, s9 offen sc1")
A("v_cmp_eq_u32 vcc, 0, v0\ns_and_b64 exec, exec, vcc\ns_cbranch_execz L_y_a")
A(f"s_lshl_b32 s9, s15, 3\ns_add_u32 s9, s9, 0x{WS_ML:x}")
A(f"buffer_store_dwordx2 v[30:31], v12, {srd(SWS)}, s9 offen sc1")
A("L_y_a:")
A("s_mov_b64 exec, -1")
A("s_waitcnt vmcnt(0)\ns_barrier")
A("s_cmp_eq_u32 s6, 0\ns_cbranch_scc0 L_arr")
A("s_mov_b64 exec, 1\nv_mov_b32 v4, 1\nv_mov_b32 v5, 0")
A(f"buffer_atomic_add v4, v5, {srd(SDBG)}, 0 offen sc0")
A("s_waitcnt vmcnt(0)")
A(f"ds_write_b32 v5, v4 offset:{TICK}")
A("s_mov_b64 exec, -1")
A("L_arr:")
A("s_waitcnt lgkmcnt(0)\ns_barrier")
A(f"v_mov_b32 v5, 0\nds_read_b32 v4, v5 offset:{TICK}\ns_waitcnt lgkmcnt(0)")
A("v_readfirstlane_b32 s9, v4")
A(f"s_nop 3\ns_cmp_lt_u32 s9, {256-NFIN}\ns_cbranch_scc1 L_end")
A(f"s_sub_u32 s9, s9, {256-NFIN}\ns_and_b32 s4, s9, 1\ns_lshr_b32 s5, s9, 1")
A("s_cmp_eq_u32 s6, 0\ns_cbranch_scc0 L_fin_w")
A("L_spin:")
A(f"buffer_load_dword v4, v5, {srd(SDBG)}, 0 offen sc1")
A("s_waitcnt vmcnt(0)\nv_readfirstlane_b32 s9, v4\ns_nop 3\ns_cmp_lt_u32 s9, 256\ns_cbranch_scc1 L_spin")
A("L_fin_w:")
A("s_barrier")
A(f"s_lshl_b32 s9, s4, 4\ns_lshl_b32 s10, s6, 1\ns_add_u32 s9, s9, s10")
A(f"s_lshl_b32 s10, s9, 6\ns_add_u32 s10, s10, 0x{WS_ML:x}")
for i in range(8): A(f"buffer_load_dwordx4 v[{32+4*i}:{35+4*i}], v5, {srd(SWS)}, s10 offen offset:{16*i} sc1")
A("v_lshlrev_b32 v6, 2, v1\ns_lshl_b32 s10, s5, 8\nv_add_u32 v6, s10, v6")
A("s_mul_i32 s10, s9, 14336")
for i in range(16):
    A(f"buffer_load_dword v{64+i}, v6, {srd(SWS)}, s10 offen sc1")
    A("s_add_u32 s10, s10, 1792")
A(f"s_mul_i32 s10, s6, {7*3584}\ns_mul_i32 s15, s4, 1792\ns_add_u32 s10, s10, s15\ns_add_u32 s10, s10, 0x{WS_FP:x}")
for i in range(7):
    A(f"buffer_load_dword v{80+i}, v6, {srd(SWS)}, s10 offen sc1")
    A("s_add_u32 s10, s10, 3584")
A("v_lshrrev_b32 v7, 1, v6\ns_mul_i32 s10, s4, 896")
A(f"buffer_load_ushort v90, v7, {srd(SX)}, s10 offen")
A("s_waitcnt vmcnt(0)")
A("v_mov_b32 v8, 0")
for hh in range(2):
    m0 = 32 + 16*hh
    A(f"v_max3_f32 v10, v{m0}, v{m0+2}, v{m0+4}\nv_max3_f32 v10, v10, v{m0+6}, v{m0+8}\nv_max3_f32 v10, v10, v{m0+10}, v{m0+12}\nv_max_f32 v10, v10, v{m0+14}")
    A("v_mov_b32 v11, 0\nv_mov_b32 v12, 0")
    for s in range(8):
        A(f"v_sub_f32 v13, v{m0+2*s}, v10\nv_mul_f32 v13, s13, v13\nv_exp_f32 v13, v13\ns_nop 0")
        A(f"v_fmac_f32 v11, v13, v{m0+2*s+1}\nv_fmac_f32 v12, v13, v{64+8*hh+s}")
    A("v_rcp_f32 v13, v11\ns_nop 0\nv_mul_f32 v14, v12, v13\nv_fma_f32 v15, -v14, v11, v12\nv_fma_f32 v14, v15, v13, v14")
    A("v_add_f32 v8, v8, v14")
A("v_add_f32 v9, v80, v81")
for i in range(2, 7): A(f"v_add_f32 v9, v9, v{80+i}")
A("s_lshl_b32 s9, s6, 8\nv_lshlrev_b32 v10, 2, v1\nv_add_u32 v10, s9, v10")
A(f"ds_write_b32 v10, v8 offset:{PL}\nds_write_b32 v10, v9 offset:{PL+2048}")
A("s_waitcnt lgkmcnt(0)\ns_barrier")
A("s_cmp_eq_u32 s6, 0\ns_cbranch_scc0 L_end")
A("v_lshlrev_b32 v10, 2, v1")
for g in range(8): A(f"ds_read_b32 v{12+g}, v10 offset:{PL+256*g}\nds_read_b32 v{20+g}, v10 offset:{PL+2048+256*g}")
A("s_waitcnt lgkmcnt(0)")
for g in range(1, 8): A(f"v_add_f32 v12, v12, v{12+g}\nv_add_f32 v20, v20, v{20+g}")
rbf(12, 12); rbf(20, 20)
A("v_lshlrev_b32 v90, 16, v90\nv_add_f32 v12, v90, v12")
rbf(12, 12)
A("v_add_f32 v12, v12, v20\nv_cvt_pk_bf16_f32 v12, v12, v12")
A("s_mul_i32 s10, s4, 896")
A(f"buffer_store_short v12, v7, {srd(SOUT)}, s10 offen")
A("L_end:\ns_endpgm")
A(f'''.section .rodata,"a"
.p2align 6
.amdhsa_kernel {KN}
  .amdhsa_next_free_vgpr 256
  .amdhsa_next_free_sgpr 102
  .amdhsa_accum_offset 256
  .amdhsa_group_segment_fixed_size 0
  .amdhsa_kernarg_size 96
  .amdhsa_user_sgpr_count 2
  .amdhsa_user_sgpr_kernarg_segment_ptr 1
  .amdhsa_system_sgpr_workgroup_id_x 1
.end_amdhsa_kernel''')
print("\n".join(out))
```

```python
import sys, struct

KN = "parallel_sum__mha_block_cached__swiglu_ffn__decode_kernel"
out = []
ARGS = sys.argv[1:]
DIAG = "diag" in ARGS
TB = "tb" in ARGS
NB = 6
NBP = 4
for a in ARGS:
    if a.startswith("nb="): NB = int(a[3:])
    if a.startswith("nbp="): NBP = int(a[4:])
def A(s):
    for line in s.split("\n"):
        out.append(line)
def stamp(i):
    if not DIAG: return
    A("s_memrealtime s[100:101]\ns_waitcnt lgkmcnt(0)")
    A(f"s_mov_b32 s{88+i}, s100")

def f32bits(x):
    return struct.unpack("<I", struct.pack("<f", x))[0]

class VM:
    def __init__(self): self.q = []
    def issue(self, tag): self.q.append(tag)
    def wait(self, tag):
        idxs = [i for i, t in enumerate(self.q) if t == tag]
        if not idxs: return
        idx = max(idxs)
        n = len(self.q) - 1 - idx
        A(f"s_waitcnt vmcnt({min(n,63)})")
        self.q = self.q[idx+1:] if n <= 63 else self.q[len(self.q)-63:]
vm = VM()

XNF = 0
XNB = 3584
QB = 5376
TICK = 5888
MLS = 5952
GUS = 6016
HS = 6528
PL = 8192
OP = 16384
GP = 16384
DP = 49152
LDS_BYTES = 49152 + 28672

WS_QS = 0x00000
WS_PO = 0x80000
WS_ML = 0xC0000
WS_YC = 0xC1000
WS_FP = 0xF9000
WS_DG = 0x140000
WS_BYTES = 0x200000
NFFN = 56
NCMB = 64
NFIN = 14
NARR = NFFN + NCMB
SPIN_LIMIT = 20000

SX, SK, SV, SWQ, SWO, SGU, SWD, SOUT, SDBG, SWS = 40, 44, 48, 52, 56, 60, 64, 68, 72, 76
def srd(r): return f"s[{r}:{r+3}]"

B = [64, 96, 128, 160, 192, 224][:NB]
Q = 32

A(f"; @launch grid=({256+NARR},1,1) block=(512,1,1) lds={LDS_BYTES}")
A('.amdgcn_target "amdgcn-amd-amdhsa--gfx950"')
A(".text")
A(f".globl {KN}\n.p2align 8\n.type {KN},@function\n{KN}:")
A(f"s_cmp_ge_u32 s2, {256+NARR}\ns_cbranch_scc1 L_end")
A("s_load_dwordx16 s[16:31], s[0:1], 0")
A("s_load_dwordx8 s[32:39], s[0:1], 64")
A("v_and_b32 v1, 63, v0")
A("v_lshrrev_b32 v4, 6, v0")
A("s_nop 0")
A("v_readfirstlane_b32 s6, v4")
A("""s_and_b32 s9, s2, 7
s_lshr_b32 s10, s2, 3
s_and_b32 s3, s10, 1
s_lshl_b32 s3, s3, 3
s_add_u32 s3, s3, s9
s_lshr_b32 s4, s10, 1
s_and_b32 s4, s4, 1
s_lshr_b32 s5, s10, 2
s_lshl_b32 s7, s4, 4
s_add_u32 s7, s7, s3
s_lshl_b32 s8, s7, 22
s_lshl_b32 s9, s5, 19
s_add_u32 s8, s8, s9
s_lshl_b32 s9, s6, 13
s_add_u32 s8, s8, s9""")
A("s_mov_b32 s11, 0x05040100\ns_mov_b32 s12, 0x07060302")
A(f"s_mov_b32 s13, 0x{f32bits(0.0625*1.4426950408889634):08x}")
A("s_mov_b32 s14, 0xffff0000")
A("""v_and_b32 v2, 15, v1
v_lshlrev_b32 v2, 9, v2
v_lshrrev_b32 v4, 4, v1
v_lshl_or_b32 v2, v4, 4, v2
v_lshlrev_b32 v3, 4, v1
v_mov_b32 v5, 0x7f000000
v_cmp_gt_u32 vcc, 56, v1
s_nop 1
v_cndmask_b32 v31, v5, v3, vcc""")
A("s_waitcnt lgkmcnt(0)")
if DIAG:
    for i in range(12): A(f"s_mov_b32 s{88+i}, 0")
stamp(0)
def mk(r, lo, nbytes):
    A(f"s_mov_b32 s{r}, s{lo}\ns_mov_b32 s{r+1}, s{lo+1}\ns_mov_b32 s{r+2}, 0x{nbytes:x}\ns_mov_b32 s{r+3}, 0x20000")
mk(SK, 18, 1<<27); mk(SX, 16, 1792); mk(SWQ, 22, 448*4096*2)
mk(SV, 20, 1<<27); mk(SWO, 24, 4096*448*2)
mk(SWD, 32, 1792*448*2); mk(SOUT, 34, 1792); mk(SDBG, 36, 256); mk(SWS, 38, WS_BYTES)
A("s_cmp_lt_u32 s6, 4")
A(f"s_cselect_b32 s{SGU}, s28, s30\ns_cselect_b32 s{SGU+1}, s29, s31\ns_mov_b32 s{SGU+2}, 0x{448*1792*2:x}\ns_mov_b32 s{SGU+3}, 0x20000")
A(f"s_cmp_ge_u32 s2, {256+NFFN}\ns_cbranch_scc1 L_cmb")
A("s_cmp_ge_u32 s2, 256\ns_cbranch_scc1 L_ffn")

def issue_tile(n, track=True):
    b = B[n % NB]
    if n < 8:
        A(f"s_add_u32 s9, s8, {n*65536}")
        for j in range(8):
            A(f"buffer_load_dwordx4 v[{b+4*j}:{b+4*j+3}], v2, {srd(SK)}, s9 offen offset:{64*j} nt")
            if track: vm.issue(f"t{n}")
    else:
        A(f"s_add_u32 s9, s8, {(n-8)*65536}\ns_add_u32 s10, s9, 4096")
        for j in range(8):
            A(f"buffer_load_dwordx4 v[{b+4*j}:{b+4*j+3}], v3, {srd(SV)}, {'s9' if j<4 else 's10'} offen offset:{1024*(j%4)} nt")
            if track: vm.issue(f"t{n}")

def row_reduce(op, v, tmp):
    for r in (8, 4, 2, 1):
        A("s_nop 1")
        A(f"{op}_dpp v{tmp}, v{v}, v{v} row_ror:{r} row_mask:0xf bank_mask:0xf")
        A(f"v_mov_b32 v{v}, v{tmp}")
def wave_sum(v, tmp):
    row_reduce("v_add_f32", v, tmp)
    A("s_nop 0")
    for i in range(4): A(f"v_readlane_b32 s{80+i}, v{v}, {16*i}")
    A("s_nop 1")
    A(f"v_mov_b32 v{v}, s80\nv_add_f32 v{v}, s81, v{v}\nv_add_f32 v{v}, s82, v{v}\nv_add_f32 v{v}, s83, v{v}")
def div448(v, tmp1, tmp2):
    A(f"v_mul_f32 v{tmp1}, 0x{f32bits(1.0/448):08x}, v{v}")
    A(f"v_mov_b32 v{tmp2}, 0x{f32bits(448.0):08x}")
    A(f"v_fma_f32 v{tmp2}, -v{tmp1}, v{tmp2}, v{v}")
    A(f"v_mul_f32 v{tmp2}, 0x{f32bits(1.0/448):08x}, v{tmp2}")
    A(f"v_add_f32 v{v}, v{tmp1}, v{tmp2}")
def rbf(vd, vs):
    A(f"v_cvt_pk_bf16_f32 v{vd}, 0, v{vs}")
def layernorm(r):
    E = 16
    for k in range(4):
        A(f"v_lshlrev_b32 v{E+2*k}, 16, v{r+k}\nv_and_b32 v{E+2*k+1}, s14, v{r+k}")
    A(f"v_add_f32 v24, v{E}, v{E+1}")
    for k in range(2, 8): A(f"v_add_f32 v24, v24, v{E+k}")
    wave_sum(24, 25)
    div448(24, 25, 26)
    A("v_mov_b32 v27, 0")
    for k in range(8):
        A(f"v_sub_f32 v25, v{E+k}, v24\nv_fmac_f32 v27, v25, v25")
    A("v_cmp_gt_u32 vcc, 56, v1\ns_nop 1\nv_cndmask_b32 v27, 0, v27, vcc")
    wave_sum(27, 25)
    div448(27, 25, 26)
    rbf(27, 27)
    rbf(24, 24)
    A(f"v_add_f32 v27, 0x{f32bits(1e-5):08x}, v27")
    rbf(27, 27)
    A("v_sqrt_f32 v27, v27\ns_nop 0")
    rbf(27, 27)
    A("v_rcp_f32 v28, v27\ns_nop 0")
    for k in range(8):
        A(f"v_sub_f32 v{E+k}, v{E+k}, v24")
        rbf(E+k, E+k)
        A(f"v_mul_f32 v25, v{E+k}, v28")
        A(f"v_fma_f32 v26, -v25, v27, v{E+k}")
        A(f"v_fma_f32 v{E+k}, v26, v28, v25")
    for k in range(4):
        A(f"v_cvt_pk_bf16_f32 v{r+k}, v{E+2*k}, v{E+2*k+1}")
    for k in range(4):
        A(f"v_lshlrev_b32 v{E+2*k}, 16, v{r+k}\nv_and_b32 v{E+2*k+1}, s14, v{r+k}")

A("s_cmp_eq_u32 s6, 0\ns_cbranch_scc1 L_qagent")
for n in range(NBP): issue_tile(n, track=False)
A("s_branch L_qjoin")
A("L_qagent:")
W = 64
XP = [128, 136]
A(f"buffer_load_dwordx4 v[8:11], v31, {srd(SX)}, 0 offen")
A(f"buffer_load_dwordx4 v[12:15], v31, {srd(SX)}, 0 offen offset:896")
A("""v_lshrrev_b32 v5, 5, v1
s_mov_b32 s9, 114688
v_mul_lo_u32 v5, v5, s9
v_and_b32 v6, 31, v1
v_lshl_add_u32 v126, v6, 4, v5
s_lshl_b32 s15, s4, 3
s_add_u32 s15, s15, s5""")
A("s_mov_b32 s84, s15\ns_add_u32 s85, s15, 1\ns_mov_b32 s86, 0")
def wq_loads():
    A("s_mul_i32 s9, s84, 229376\ns_lshl_b32 s10, s3, 9\ns_add_u32 s9, s9, s10")
    for j in range(14):
        A(f"buffer_load_dwordx4 v[{W+4*j}:{W+4*j+3}], v126, {srd(SWQ)}, s9 offen")
        if j < 13: A("s_add_u32 s9, s9, 8192")
wq_loads()
A("s_waitcnt vmcnt(14)")
for bb in range(2):
    layernorm(8 + 4*bb)
    A("s_mov_b32 exec_hi, 0x00ffffff")
    A(f"ds_write_b128 v3, v[{8+4*bb}:{11+4*bb}] offset:{XNB+896*bb}")
    A("s_mov_b32 exec_hi, -1")
stamp(1)
A("v_lshrrev_b32 v30, 5, v1\nv_mul_u32_u24 v30, 28, v30")
for k in range(16): A(f"v_mov_b32 v{4+k}, 0")
A("s_branch L_share_body")
A("L_share_init:")
for k in range(16): A(f"v_mov_b32 v{4+k}, 0")
A("L_share_loop:")
wq_loads()
A("L_share_body:")
A("s_mul_i32 s9, s84, 56\nv_add_u32 v29, s9, v30")
A("s_waitcnt lgkmcnt(0)")
for bb in range(2):
    for i in range(7): A(f"ds_read_b32 v{XP[bb]+i}, v29 offset:{XNB+896*bb+4*i}")
A("s_waitcnt lgkmcnt(0)")
for jp in range(7):
    R0 = W + 8*jp; R1 = R0 + 4
    A(f"s_waitcnt vmcnt({12-2*jp})")
    for k in range(4):
        A(f"v_perm_b32 v28, v{R1+k}, v{R0+k}, s11")
        A(f"v_perm_b32 v29, v{R1+k}, v{R0+k}, s12")
        A(f"v_dot2_f32_bf16 v{4+2*k}, v28, v{XP[0]+jp}, v{4+2*k}")
        A(f"v_dot2_f32_bf16 v{5+2*k}, v29, v{XP[0]+jp}, v{5+2*k}")
        A(f"v_dot2_f32_bf16 v{12+2*k}, v28, v{XP[1]+jp}, v{12+2*k}")
        A(f"v_dot2_f32_bf16 v{13+2*k}, v29, v{XP[1]+jp}, v{13+2*k}")
A("s_add_u32 s84, s84, 1\ns_cmp_lt_u32 s84, s85\ns_cbranch_scc1 L_share_loop")
A("s_nop 3")
for k in range(16):
    A(f"v_mov_b32 v{144+k}, v{4+k}")
A("s_nop 1")
for k in range(16):
    A(f"v_permlane32_swap_b32 v{4+k}, v{144+k}")
A("s_nop 1")
for k in range(16):
    A(f"v_add_f32 v{4+k}, v{4+k}, v{144+k}")
A("s_cmp_eq_u32 s86, 0\ns_cbranch_scc0 L_q_fallback_done")
A("v_cmp_lt_u32 vcc, 31, v1\ns_nop 1")
for k in range(8): A(f"v_cndmask_b32 v{144+k}, v{4+k}, v{12+k}, vcc")
A("v_lshlrev_b32 v28, 5, v1")
A(f"s_lshl_b32 s9, s3, 4\ns_add_u32 s9, s9, s15\ns_lshl_b32 s9, s9, 11\ns_add_u32 s9, s9, 0x{WS_QS:x}")
A(f"buffer_store_dwordx4 v[144:147], v28, {srd(SWS)}, s9 offen sc1")
A(f"buffer_store_dwordx4 v[148:151], v28, {srd(SWS)}, s9 offen offset:16 sc1")
A("s_waitcnt vmcnt(0)")
A("s_lshl_b32 s9, s3, 2\ns_add_u32 s9, s9, 64\nv_mov_b32 v28, s9\nv_mov_b32 v29, 1")
A("s_mov_b64 exec, 1")
A(f"buffer_atomic_add v29, v28, {srd(SDBG)}, 0 offen")
A("s_mov_b64 exec, -1")
stamp(2)
A("s_mov_b32 s87, 0")
A("L_qpoll:")
A(f"buffer_load_dword v29, v28, {srd(SDBG)}, 0 offen sc1")
A("s_waitcnt vmcnt(0)\nv_readfirstlane_b32 s9, v29\ns_nop 3\ns_cmp_ge_u32 s9, 16\ns_cbranch_scc1 L_qgot")
A(f"s_add_u32 s87, s87, 1\ns_cmp_lt_u32 s87, {SPIN_LIMIT}\ns_cbranch_scc1 L_qpoll")
A("s_mov_b32 s84, 0\ns_mov_b32 s85, 16\ns_mov_b32 s86, 1\ns_branch L_share_init")
A("L_qgot:")
A(f"s_lshl_b32 s9, s3, 15\ns_lshl_b32 s10, s4, 10\ns_add_u32 s9, s9, s10\ns_add_u32 s9, s9, 0x{WS_QS:x}")
for i in range(16):
    A(f"buffer_load_dwordx4 v[{64+4*i}:{67+4*i}], v3, {srd(SWS)}, s9 offen sc1")
    if i < 15: A("s_add_u32 s9, s9, 2048")
A("s_waitcnt vmcnt(0)")
for i in range(1, 16):
    for k in range(4): A(f"v_add_f32 v{64+k}, v{64+k}, v{64+4*i+k}")
A("v_cvt_pk_bf16_f32 v4, v64, v65\nv_cvt_pk_bf16_f32 v5, v66, v67\nv_lshlrev_b32 v28, 3, v1")
A(f"ds_write_b64 v28, v[4:5] offset:{QB}")
A("s_branch L_qjoin")
A("L_q_fallback_done:")
A("s_cmp_eq_u32 s4, 0\ns_cbranch_scc1 L_q_fb0")
for k in range(8): A(f"v_mov_b32 v{4+k}, v{12+k}")
A("L_q_fb0:")
for k in range(4): A(f"v_cvt_pk_bf16_f32 v{4+k}, v{4+2*k}, v{5+2*k}")
A("v_and_b32 v28, 31, v1\nv_lshlrev_b32 v28, 4, v28")
A(f"ds_write_b128 v28, v[4:7] offset:{QB}")
A("L_qjoin:")
A("s_waitcnt lgkmcnt(0)\ns_barrier")
A("v_lshrrev_b32 v12, 4, v1\nv_lshlrev_b32 v12, 4, v12")
for j in range(8): A(f"ds_read_b128 v[{Q+4*j}:{Q+4*j+3}], v12 offset:{QB+64*j}")
A("s_cmp_eq_u32 s6, 0\ns_cbranch_scc0 L_q_b")
for n in range(NBP): issue_tile(n, track=False)
A("L_q_b:")
vm.q = []
for n in range(NBP):
    for j in range(8): vm.issue(f"t{n}")
for n in range(NBP, NB): issue_tile(n)
A("s_waitcnt lgkmcnt(0)")
stamp(3)

for t in range(8):
    b = B[t % NB]
    acc = 12 + 4*(t & 1)
    if TB: A("s_barrier")
    vm.wait(f"t{t}")
    for j in range(8):
        c = "0" if j == 0 else f"v[{acc}:{acc+3}]"
        A(f"v_mfma_f32_16x16x32_bf16 v[{acc}:{acc+3}], v[{Q+4*j}:{Q+4*j+3}], v[{b+4*j}:{b+4*j+3}], {c}")
    issue_tile(t + NB)
    if t > 0:
        rbf(4 + t - 1, 12 + 4*((t-1) & 1))
A("s_nop 7\ns_nop 1")
rbf(4 + 7, 12 + 4*(7 & 1))
stamp(4)
A("v_max3_f32 v30, v4, v5, v6\nv_max3_f32 v30, v30, v7, v8\nv_max3_f32 v30, v30, v9, v10\nv_max_f32 v30, v30, v11")
row_reduce("v_max_f32", 30, 12)
for t in range(8):
    A(f"v_sub_f32 v12, v{4+t}, v30\nv_mul_f32 v12, s13, v12\nv_exp_f32 v{4+t}, v12")
A("s_nop 0")
A("v_add_f32 v31, v4, v5")
for t in range(2, 8): A(f"v_add_f32 v31, v31, v{4+t}")
row_reduce("v_add_f32", 31, 12)
A("""v_and_b32 v12, 1, v1
v_lshlrev_b32 v12, 5, v12
v_lshrrev_b32 v13, 1, v1
v_lshl_add_u32 v12, v13, 2, v12
s_lshl_b32 s15, s6, 9
v_add_u32 v12, s15, v12
s_mov_b64 exec, 0xffff""")
for t in range(8): A(f"ds_write_b32 v12, v{4+t} offset:{PL+64*t}")
A("s_mov_b64 exec, -1")
A("v_lshrrev_b32 v29, 5, v1\nv_lshlrev_b32 v29, 5, v29\nv_add_u32 v29, s15, v29")
for k in range(8): A(f"v_mov_b32 v{4+k}, 0")
PV = [12, 20]
A("s_waitcnt lgkmcnt(0)")
A(f"ds_read_b128 v[12:15], v29 offset:{PL}\nds_read_b128 v[16:19], v29 offset:{PL+16}")
for t in range(8):
    n = 8 + t
    b = B[n % NB]
    pv = PV[t & 1]
    A("s_waitcnt lgkmcnt(0)")
    if t < 7:
        pn = PV[(t+1) & 1]
        A(f"ds_read_b128 v[{pn}:{pn+3}], v29 offset:{PL+64*(t+1)}\nds_read_b128 v[{pn+4}:{pn+7}], v29 offset:{PL+64*(t+1)+16}")
    if TB: A("s_barrier")
    vm.wait(f"t{n}")
    for j in range(8):
        for k in range(4):
            w = b + 4*j + k
            A(f"v_lshlrev_b32 v28, 16, v{w}\nv_fmac_f32 v{4+2*k}, v{pv+j}, v28")
            A(f"v_and_b32 v28, s14, v{w}\nv_fmac_f32 v{5+2*k}, v{pv+j}, v28")
    if n + NB < 16: issue_tile(n + NB)
stamp(5)
A("s_lshl_b32 s9, s6, 11\nv_lshlrev_b32 v12, 5, v1\nv_add_u32 v12, s9, v12")
A(f"ds_write_b128 v12, v[4:7] offset:{OP}\nds_write_b128 v12, v[8:11] offset:{OP+16}")
A("s_lshl_b32 s9, s6, 3\nv_mov_b32 v12, s9\ns_mov_b64 exec, 1")
A(f"ds_write_b64 v12, v[30:31] offset:{MLS}")
A("s_mov_b64 exec, -1")
A("s_waitcnt lgkmcnt(0)\ns_barrier")
A("s_cmp_lt_u32 s6, 4\ns_cbranch_scc0 L_pub_a")
CB = 64
A("v_mov_b32 v12, 0")
for i in range(4): A(f"ds_read_b128 v[{CB+4*i}:{CB+4*i+3}], v12 offset:{MLS+16*i}")
A("v_lshlrev_b32 v12, 2, v0")
for w in range(8):
    A(f"ds_read_b32 v{CB+16+2*w}, v12 offset:{OP+2048*w}\nds_read_b32 v{CB+17+2*w}, v12 offset:{OP+2048*w+1024}")
A("s_waitcnt lgkmcnt(0)")
A(f"v_max3_f32 v30, v{CB}, v{CB+2}, v{CB+4}\nv_max3_f32 v30, v30, v{CB+6}, v{CB+8}\nv_max3_f32 v30, v30, v{CB+10}, v{CB+12}\nv_max_f32 v30, v30, v{CB+14}")
A("v_mov_b32 v31, 0\nv_mov_b32 v13, 0")
for w in range(8):
    A(f"v_sub_f32 v14, v{CB+2*w}, v30\nv_mul_f32 v14, s13, v14\nv_exp_f32 v14, v14")
    A(f"v_add_f32 v15, v{CB+16+2*w}, v{CB+17+2*w}")
    A(f"v_fmac_f32 v31, v14, v{CB+2*w+1}\nv_fmac_f32 v13, v14, v15")
A("s_lshl_b32 s15, s7, 3\ns_add_u32 s15, s15, s5")
A(f"s_lshl_b32 s9, s15, 10\ns_add_u32 s9, s9, 0x{WS_PO:x}")
A(f"buffer_store_dword v13, v12, {srd(SWS)}, s9 offen sc1")
A("s_cmp_eq_u32 s6, 0\ns_cbranch_scc0 L_pub_a")
A(f"s_lshl_b32 s9, s15, 3\ns_add_u32 s9, s9, 0x{WS_ML:x}\ns_mov_b64 exec, 1")
A(f"buffer_store_dwordx2 v[30:31], v12, {srd(SWS)}, s9 offen sc1")
A("s_mov_b64 exec, -1")
A("L_pub_a:")
A("s_waitcnt vmcnt(0)\ns_barrier")
stamp(6)
A("s_cmp_eq_u32 s6, 0\ns_cbranch_scc0 L_fin_end")
A("s_lshl_b32 s9, s3, 2\ns_add_u32 s9, s9, 128\nv_mov_b32 v28, s9\nv_mov_b32 v29, 1")
A("s_mov_b64 exec, 1")
A(f"buffer_atomic_add v29, v28, {srd(SDBG)}, 0 offen")
A("s_mov_b64 exec, -1")
A("s_branch L_fin_end")

def publish_tail():
    A(f"s_mul_i32 s9, s6, 3584\ns_add_u32 s9, s9, {DP}\nv_lshlrev_b32 v28, 5, v1\nv_add_u32 v28, s9, v28")
    A("s_mov_b32 exec_hi, 0x00ffffff")
    A(f"ds_write_b128 v28, v[4:7]\nds_write_b128 v28, v[8:11] offset:16")
    A(f"ds_write_b128 v28, v[12:15] offset:1792\nds_write_b128 v28, v[16:19] offset:{1792+16}")
    A("s_mov_b32 exec_hi, -1")
    A("s_waitcnt lgkmcnt(0)\ns_barrier")
    A("v_cmp_gt_u32 vcc, 224, v0\ns_and_saveexec_b64 s[80:81], vcc\ns_cbranch_execz L_pt_c")
    A(f"v_lshlrev_b32 v28, 4, v0\nv_add_u32 v29, {DP}, v28")
    for w in range(8):
        A(f"ds_read_b128 v[{64+4*w}:{67+4*w}], v29 offset:{3584*w}")
    A("s_waitcnt lgkmcnt(0)")
    for w in range(1, 8):
        for k in range(4): A(f"v_add_f32 v{64+k}, v{64+k}, v{64+4*w+k}")
    A(f"buffer_store_dwordx4 v[64:67], v28, {srd(SWS)}, s15 offen sc1")
    A("L_pt_c:")
    A("s_mov_b64 exec, -1")

A("L_ffn:")
A("s_sub_u32 s5, s2, 256")
FG, FD = 64, 96
A(f"buffer_load_dwordx4 v[8:11], v31, {srd(SX)}, 0 offen")
A(f"buffer_load_dwordx4 v[12:15], v31, {srd(SX)}, 0 offen offset:896")
A("""v_lshrrev_b32 v6, 2, v1
s_movk_i32 s9, 3584
v_mul_lo_u32 v6, v6, s9
v_and_b32 v7, 3, v1
v_lshl_add_u32 v6, v7, 4, v6
s_and_b32 s9, s6, 3
s_mul_i32 s9, s9, 401408
s_lshl_b32 s10, s5, 6
s_add_u32 s9, s9, s10""")
for j in range(7):
    A(f"buffer_load_dwordx4 v[{FG+4*j}:{FG+4*j+3}], v6, {srd(SGU)}, s9 offen")
    if j < 6: A("s_add_u32 s9, s9, 57344")
A("s_lshl_b32 s9, s5, 3\ns_add_u32 s9, s9, s6\ns_mul_i32 s9, s9, 3584")
for j in range(4):
    A(f"buffer_load_dwordx4 v[{FD+4*j}:{FD+4*j+3}], v31, {srd(SWD)}, s9 offen offset:{896*j}")
A("s_waitcnt vmcnt(11)")
for bb in range(2):
    layernorm(8 + 4*bb)
    A("s_mov_b32 exec_hi, 0x00ffffff")
    A("v_lshlrev_b32 v25, 5, v1")
    A(f"ds_write_b128 v25, v[16:19] offset:{XNF+1792*bb}")
    A(f"ds_write_b128 v25, v[20:23] offset:{XNF+1792*bb+16}")
    A("s_mov_b32 exec_hi, -1")
A("""s_and_b32 s9, s6, 3
s_mul_i32 s9, s9, 448
v_lshrrev_b32 v26, 2, v1
v_lshlrev_b32 v26, 2, v26
v_add_u32 v26, s9, v26""")
for k in range(16): A(f"v_mov_b32 v{4+k}, 0")
A("s_waitcnt lgkmcnt(0)")
for j in range(7):
    A(f"ds_read_b32 v{128+2*j}, v26 offset:{XNF+64*j}\nds_read_b32 v{129+2*j}, v26 offset:{XNF+1792+64*j}")
A("s_waitcnt lgkmcnt(0)\ns_waitcnt vmcnt(4)")
for j in range(7):
    for k in range(4):
        w = FG + 4*j + k
        A(f"v_lshlrev_b32 v22, 16, v{w}\nv_and_b32 v23, s14, v{w}")
        A(f"v_fmac_f32 v{4+2*k}, v{128+2*j}, v22\nv_fmac_f32 v{5+2*k}, v{128+2*j}, v23")
        A(f"v_fmac_f32 v{12+2*k}, v{129+2*j}, v22\nv_fmac_f32 v{13+2*k}, v{129+2*j}, v23")
A("""v_lshrrev_b32 v27, 2, v1
v_lshlrev_b32 v27, 8, v27
v_and_b32 v22, 3, v1
v_lshl_add_u32 v27, v22, 5, v27
s_lshl_b32 s9, s6, 12
v_add_u32 v27, s9, v27""")
A(f"ds_write_b128 v27, v[4:7] offset:{GP}\nds_write_b128 v27, v[8:11] offset:{GP+16}")
A(f"ds_write_b128 v27, v[12:15] offset:{GP+128}\nds_write_b128 v27, v[16:19] offset:{GP+144}")
A("s_waitcnt lgkmcnt(0)\ns_barrier")
A("s_cmp_lt_u32 s6, 2\ns_cbranch_scc0 L_ffn_a")
A("s_lshl_b32 s9, s6, 14\nv_lshlrev_b32 v26, 2, v1\nv_add_u32 v26, s9, v26")
for g in range(4):
    for i in range(16):
        A(f"ds_read_b32 v{128+16*g+i}, v26 offset:{GP+4096*g+256*i}")
A("s_waitcnt lgkmcnt(0)")
A("v_add_f32 v4, v128, v129")
for i in range(2, 64): A(f"v_add_f32 v4, v4, v{128+i}")
rbf(4, 4)
A("s_lshl_b32 s9, s6, 8\nv_lshlrev_b32 v26, 2, v1\nv_add_u32 v26, s9, v26")
A(f"ds_write_b32 v26, v4 offset:{GUS}")
A("L_ffn_a:")
A("s_waitcnt lgkmcnt(0)\ns_barrier")
A("s_cmp_eq_u32 s6, 0\ns_cbranch_scc0 L_ffn_b")
A("v_lshlrev_b32 v26, 2, v1")
A(f"ds_read_b32 v4, v26 offset:{GUS}\nds_read_b32 v5, v26 offset:{GUS+256}")
A("s_waitcnt lgkmcnt(0)")
A(f"v_mul_f32 v6, 0x{f32bits(-1.4426950408889634):08x}, v4")
A("v_exp_f32 v6, v6\ns_nop 0\nv_add_f32 v6, 1.0, v6\nv_rcp_f32 v7, v6\ns_nop 0")
A("v_mul_f32 v8, v4, v7\nv_fma_f32 v9, -v8, v6, v4\nv_fma_f32 v8, v9, v7, v8")
rbf(8, 8)
A("v_mul_f32 v8, v8, v5")
rbf(8, 8)
A(f"ds_write_b32 v26, v8 offset:{HS}")
A("L_ffn_b:")
A("s_waitcnt lgkmcnt(0)\ns_barrier")
A("s_lshl_b32 s9, s6, 4\nv_mov_b32 v26, s9")
A(f"ds_read_b128 v[20:23], v26 offset:{HS}\nds_read_b128 v[24:27], v26 offset:{HS+128}")
for k in range(16): A(f"v_mov_b32 v{4+k}, 0")
A("s_waitcnt lgkmcnt(0)\ns_waitcnt vmcnt(0)")
for j in range(4):
    for k in range(4):
        w = FD + 4*j + k
        A(f"v_lshlrev_b32 v28, 16, v{w}\nv_and_b32 v29, s14, v{w}")
        A(f"v_fmac_f32 v{4+2*k}, v{20+j}, v28\nv_fmac_f32 v{5+2*k}, v{20+j}, v29")
        A(f"v_fmac_f32 v{12+2*k}, v{24+j}, v28\nv_fmac_f32 v{13+2*k}, v{24+j}, v29")
A(f"s_mul_i32 s15, s5, 3584\ns_add_u32 s15, s15, 0x{WS_FP:x}")
A("s_branch L_tail")

A("L_cmb:")
A(f"s_sub_u32 s5, s2, {256+NFFN}\ns_lshr_b32 s3, s5, 2\ns_and_b32 s4, s5, 3")
WO = 64
A("s_lshl_b32 s9, s5, 3\ns_add_u32 s9, s9, s6\ns_mul_i32 s9, s9, 7168")
for i in range(8):
    if i == 4: A("s_add_u32 s9, s9, 3584")
    A(f"buffer_load_dwordx4 v[{WO+4*i}:{WO+4*i+3}], v31, {srd(SWO)}, s9 offen offset:{896*(i%4)}")
A("s_cmp_eq_u32 s6, 0\ns_cbranch_scc0 L_cmb_w")
A("s_lshl_b32 s9, s3, 2\ns_add_u32 s9, s9, 128\nv_mov_b32 v28, s9")
A("L_cpoll:")
A(f"buffer_load_dword v29, v28, {srd(SDBG)}, 0 offen sc1")
A("s_waitcnt vmcnt(0)\nv_readfirstlane_b32 s9, v29\ns_nop 3\ns_cmp_lt_u32 s9, 16\ns_cbranch_scc1 L_cpoll")
A("L_cmb_w:")
A("s_barrier")
stamp(1)
A("""v_and_b32 v4, 7, v1
v_bfe_u32 v5, v1, 3, 1
v_lshlrev_b32 v6, 17, v5
v_lshl_add_u32 v6, v4, 2, v6
v_lshlrev_b32 v7, 10, v5""")
A(f"s_lshl_b32 s9, s3, 13\ns_lshl_b32 s10, s4, 8\ns_add_u32 s9, s9, s10\ns_lshl_b32 s10, s6, 5\ns_add_u32 s9, s9, s10\ns_add_u32 s9, s9, 0x{WS_PO:x}")
for s in range(8):
    if s == 4: A("s_add_u32 s9, s9, 4096")
    A(f"buffer_load_dword v{128+s}, v6, {srd(SWS)}, s9 offen offset:{1024*(s%4)} sc1")
A(f"s_lshl_b32 s9, s3, 6\ns_add_u32 s9, s9, 0x{WS_ML:x}")
for i in range(4): A(f"buffer_load_dwordx4 v[{136+4*i}:{139+4*i}], v7, {srd(SWS)}, s9 offen offset:{16*i} sc1")
A("s_waitcnt vmcnt(0)")
m0 = 136
A(f"v_max3_f32 v10, v{m0}, v{m0+2}, v{m0+4}\nv_max3_f32 v10, v10, v{m0+6}, v{m0+8}\nv_max3_f32 v10, v10, v{m0+10}, v{m0+12}\nv_max_f32 v10, v10, v{m0+14}")
A("v_mov_b32 v11, 0\nv_mov_b32 v12, 0")
for s in range(8):
    A(f"v_sub_f32 v13, v{m0+2*s}, v10\nv_mul_f32 v13, s13, v13\nv_exp_f32 v13, v13\ns_nop 0")
    A(f"v_fmac_f32 v11, v13, v{m0+2*s+1}\nv_fmac_f32 v12, v13, v{128+s}")
A("v_rcp_f32 v13, v11\ns_nop 0\nv_mul_f32 v14, v12, v13\nv_fma_f32 v15, -v14, v11, v12\nv_fma_f32 v14, v15, v13, v14")
rbf(14, 14)
A("s_nop 0")
for i in range(16): A(f"v_readlane_b32 s{16+i}, v14, {i}")
for k in range(16): A(f"v_mov_b32 v{4+k}, 0")
for i in range(8):
    for k in range(4):
        w = WO + 4*i + k
        A(f"v_lshlrev_b32 v28, 16, v{w}\nv_and_b32 v29, s14, v{w}")
        A(f"v_fmac_f32 v{4+2*k}, s{16+i}, v28\nv_fmac_f32 v{5+2*k}, s{16+i}, v29")
        A(f"v_fmac_f32 v{12+2*k}, s{24+i}, v28\nv_fmac_f32 v{13+2*k}, s{24+i}, v29")
A(f"s_mul_i32 s15, s5, 3584\ns_add_u32 s15, s15, 0x{WS_YC:x}")
A("L_tail:")
stamp(2)
publish_tail()
A("s_waitcnt vmcnt(0)\ns_barrier")
stamp(3)
A("s_cmp_eq_u32 s6, 0\ns_cbranch_scc0 L_arr")
A("s_mov_b64 exec, 1\nv_mov_b32 v4, 1\nv_mov_b32 v5, 0")
A(f"buffer_atomic_add v4, v5, {srd(SDBG)}, 0 offen sc0")
A("s_waitcnt vmcnt(0)")
A(f"ds_write_b32 v5, v4 offset:{TICK}")
A("s_mov_b64 exec, -1")
A("L_arr:")
A("s_waitcnt lgkmcnt(0)\ns_barrier")
A(f"v_mov_b32 v5, 0\nds_read_b32 v4, v5 offset:{TICK}\ns_waitcnt lgkmcnt(0)")
stamp(4)
A("v_readfirstlane_b32 s9, v4")
A(f"s_nop 3\ns_cmp_lt_u32 s9, {NARR-NFIN}\ns_cbranch_scc1 L_fin_end")
A(f"s_sub_u32 s9, s9, {NARR-NFIN}\ns_and_b32 s4, s9, 1\ns_lshr_b32 s5, s9, 1")
A("s_cmp_eq_u32 s6, 0\ns_cbranch_scc0 L_fin_w")
A("L_spin:")
A(f"buffer_load_dword v4, v5, {srd(SDBG)}, 0 offen sc1")
A(f"s_waitcnt vmcnt(0)\nv_readfirstlane_b32 s9, v4\ns_nop 3\ns_cmp_lt_u32 s9, {NARR}\ns_cbranch_scc1 L_spin")
A("L_fin_w:")
A("s_barrier")
stamp(5)
A("v_lshlrev_b32 v6, 2, v1\ns_lshl_b32 s10, s5, 8\nv_add_u32 v6, s10, v6")
A(f"s_mul_i32 s10, s6, {8*3584}\ns_mul_i32 s15, s4, 1792\ns_add_u32 s10, s10, s15\ns_add_u32 s10, s10, 0x{WS_YC:x}")
for i in range(8):
    A(f"buffer_load_dword v{64+i}, v6, {srd(SWS)}, s10 offen sc1")
    A("s_add_u32 s10, s10, 3584")
A(f"s_mul_i32 s10, s6, {7*3584}\ns_add_u32 s10, s10, s15\ns_add_u32 s10, s10, 0x{WS_FP:x}")
for i in range(7):
    A(f"buffer_load_dword v{80+i}, v6, {srd(SWS)}, s10 offen sc1")
    A("s_add_u32 s10, s10, 3584")
A("v_lshrrev_b32 v7, 1, v6\ns_mul_i32 s10, s4, 896")
A(f"buffer_load_ushort v90, v7, {srd(SX)}, s10 offen")
A("s_waitcnt vmcnt(0)")
A("v_add_f32 v8, v64, v65")
for i in range(2, 8): A(f"v_add_f32 v8, v8, v{64+i}")
A("v_add_f32 v9, v80, v81")
for i in range(2, 7): A(f"v_add_f32 v9, v9, v{80+i}")
A("s_lshl_b32 s9, s6, 8\nv_lshlrev_b32 v10, 2, v1\nv_add_u32 v10, s9, v10")
A(f"ds_write_b32 v10, v8 offset:{PL}\nds_write_b32 v10, v9 offset:{PL+2048}")
A("s_waitcnt lgkmcnt(0)\ns_barrier")
A("s_cmp_eq_u32 s6, 0\ns_cbranch_scc0 L_fin_end")
A("v_lshlrev_b32 v10, 2, v1")
for g in range(8): A(f"ds_read_b32 v{12+g}, v10 offset:{PL+256*g}\nds_read_b32 v{20+g}, v10 offset:{PL+2048+256*g}")
A("s_waitcnt lgkmcnt(0)")
for g in range(1, 8): A(f"v_add_f32 v12, v12, v{12+g}\nv_add_f32 v20, v20, v{20+g}")
rbf(12, 12); rbf(20, 20)
A("v_lshlrev_b32 v90, 16, v90\nv_add_f32 v12, v90, v12")
rbf(12, 12)
A("v_add_f32 v12, v12, v20\nv_cvt_pk_bf16_f32 v12, v12, v12")
A("s_mul_i32 s10, s4, 896")
A(f"buffer_store_short v12, v7, {srd(SOUT)}, s10 offen")
stamp(6)
A("L_fin_end:")
if DIAG:
    A("s_mov_b64 exec, 1")
    for i in range(12): A(f"v_mov_b32 v{4+i}, s{88+i}")
    A(f"v_mov_b32 v20, 0\ns_lshl_b32 s9, s2, 3\ns_add_u32 s9, s9, s6\ns_lshl_b32 s9, s9, 6\ns_add_u32 s9, s9, 0x{WS_DG:x}")
    for i in range(3): A(f"buffer_store_dwordx4 v[{4+4*i}:{7+4*i}], v20, {srd(SWS)}, s9 offen offset:{16*i}")
A("L_end:\ns_endpgm")
A(f'''.section .rodata,"a"
.p2align 6
.amdhsa_kernel {KN}
  .amdhsa_next_free_vgpr 256
  .amdhsa_next_free_sgpr 102
  .amdhsa_accum_offset 256
  .amdhsa_group_segment_fixed_size 0
  .amdhsa_kernarg_size 96
  .amdhsa_user_sgpr_count 2
  .amdhsa_user_sgpr_kernarg_segment_ptr 1
  .amdhsa_system_sgpr_workgroup_id_x 1
.end_amdhsa_kernel''')
print("\n".join(out))
```

```python
import sys, struct

KN = "parallel_sum__mha_block_cached__swiglu_ffn__decode_kernel"
out = []
ARGS = sys.argv[1:]
DIAG = "diag" in ARGS
TB = "tb" in ARGS
NB = 6
NBP = 4
PACE = 0
QNT = " nt" if "qnt" in ARGS else ""
for a in ARGS:
    if a.startswith("nb="): NB = int(a[3:])
    if a.startswith("nbp="): NBP = int(a[4:])
    if a.startswith("pace="): PACE = int(a[5:])
def A(s):
    for line in s.split("\n"):
        out.append(line)
def stamp(i):
    if not DIAG: return
    A("s_memrealtime s[100:101]\ns_waitcnt lgkmcnt(0)")
    A(f"s_mov_b32 s{88+i}, s100")

def f32bits(x):
    return struct.unpack("<I", struct.pack("<f", x))[0]

class VM:
    def __init__(self): self.q = []
    def issue(self, tag): self.q.append(tag)
    def wait(self, tag):
        idxs = [i for i, t in enumerate(self.q) if t == tag]
        if not idxs: return
        idx = max(idxs)
        n = len(self.q) - 1 - idx
        A(f"s_waitcnt vmcnt({min(n,63)})")
        self.q = self.q[idx+1:] if n <= 63 else self.q[len(self.q)-63:]
vm = VM()

XNF = 0
XNB = 3584
QB = 5376
TICK = 5888
MLS = 5952
GUS = 6016
HS = 6528
PL = 8192
OP = 16384
GP = 16384
DP = 49152
LDS_BYTES = 49152 + 28672

WS_QS = 0x00000
WS_PO = 0x80000
WS_ML = 0xC0000
WS_YC = 0xC1000
WS_FP = 0xF9000
WS_DG = 0x140000
WS_BYTES = 0x200000
NFFN = 56
NCMB = 64
NFIN = 14
NARR = NFFN + NCMB
SPIN_LIMIT = 20000
for a in ARGS:
    if a.startswith("spin="): SPIN_LIMIT = int(a[5:])

SX, SK, SV, SWQ, SWO, SGU, SWD, SOUT, SDBG, SWS = 40, 44, 48, 52, 56, 60, 64, 68, 72, 76
def srd(r): return f"s[{r}:{r+3}]"

B = [64, 96, 128, 160, 192, 224][:NB]
Q = 32

A(f"; @launch grid=({256+NARR},1,1) block=(512,1,1) lds={LDS_BYTES}")
A('.amdgcn_target "amdgcn-amd-amdhsa--gfx950"')
A(".text")
A(f".globl {KN}\n.p2align 8\n.type {KN},@function\n{KN}:")
A(f"s_cmp_ge_u32 s2, {256+NARR}\ns_cbranch_scc1 L_end")
A("s_load_dwordx16 s[16:31], s[0:1], 0")
A("s_load_dwordx8 s[32:39], s[0:1], 64")
A("v_and_b32 v1, 63, v0")
A("v_lshrrev_b32 v4, 6, v0")
A("s_nop 0")
A("v_readfirstlane_b32 s6, v4")
A("""s_and_b32 s9, s2, 7
s_lshr_b32 s10, s2, 3
s_and_b32 s3, s10, 1
s_lshl_b32 s3, s3, 3
s_add_u32 s3, s3, s9
s_lshr_b32 s4, s10, 1
s_and_b32 s4, s4, 1
s_lshr_b32 s5, s10, 2
s_lshl_b32 s7, s4, 4
s_add_u32 s7, s7, s3
s_lshl_b32 s8, s7, 22
s_lshl_b32 s9, s5, 19
s_add_u32 s8, s8, s9
s_lshl_b32 s9, s6, 13
s_add_u32 s8, s8, s9""")
A("s_mov_b32 s11, 0x05040100\ns_mov_b32 s12, 0x07060302")
A(f"s_mov_b32 s13, 0x{f32bits(0.0625*1.4426950408889634):08x}")
A("s_mov_b32 s14, 0xffff0000")
A("""v_and_b32 v2, 15, v1
v_lshlrev_b32 v2, 9, v2
v_lshrrev_b32 v4, 4, v1
v_lshl_or_b32 v2, v4, 4, v2
v_lshlrev_b32 v3, 4, v1
v_mov_b32 v5, 0x7f000000
v_cmp_gt_u32 vcc, 56, v1
s_nop 1
v_cndmask_b32 v31, v5, v3, vcc""")
A("s_waitcnt lgkmcnt(0)")
if DIAG:
    for i in range(12): A(f"s_mov_b32 s{88+i}, 0")
stamp(0)
def mk(r, lo, nbytes):
    A(f"s_mov_b32 s{r}, s{lo}\ns_mov_b32 s{r+1}, s{lo+1}\ns_mov_b32 s{r+2}, 0x{nbytes:x}\ns_mov_b32 s{r+3}, 0x20000")
mk(SK, 18, 1<<27); mk(SX, 16, 1792); mk(SWQ, 22, 448*4096*2)
mk(SV, 20, 1<<27); mk(SWO, 24, 4096*448*2)
mk(SWD, 32, 1792*448*2); mk(SOUT, 34, 1792); mk(SDBG, 36, 256); mk(SWS, 38, WS_BYTES)
A("s_cmp_lt_u32 s6, 4")
A(f"s_cselect_b32 s{SGU}, s28, s30\ns_cselect_b32 s{SGU+1}, s29, s31\ns_mov_b32 s{SGU+2}, 0x{448*1792*2:x}\ns_mov_b32 s{SGU+3}, 0x20000")
A(f"s_cmp_ge_u32 s2, {256+NFFN}\ns_cbranch_scc1 L_cmb")
A("s_cmp_ge_u32 s2, 256\ns_cbranch_scc1 L_ffn")

def issue_tile(n, track=True):
    b = B[n % NB]
    if n < 8:
        A(f"s_add_u32 s9, s8, {n*65536}")
        for j in range(8):
            A(f"buffer_load_dwordx4 v[{b+4*j}:{b+4*j+3}], v2, {srd(SK)}, s9 offen offset:{64*j} nt")
            if track: vm.issue(f"t{n}")
    else:
        A(f"s_add_u32 s9, s8, {(n-8)*65536}\ns_add_u32 s10, s9, 4096")
        for j in range(8):
            A(f"buffer_load_dwordx4 v[{b+4*j}:{b+4*j+3}], v3, {srd(SV)}, {'s9' if j<4 else 's10'} offen offset:{1024*(j%4)} nt")
            if track: vm.issue(f"t{n}")

def row_reduce(op, v, tmp):
    for r in (8, 4, 2, 1):
        A("s_nop 1")
        A(f"{op}_dpp v{tmp}, v{v}, v{v} row_ror:{r} row_mask:0xf bank_mask:0xf")
        A(f"v_mov_b32 v{v}, v{tmp}")
def wave_sum(v, tmp):
    row_reduce("v_add_f32", v, tmp)
    A("s_nop 0")
    for i in range(4): A(f"v_readlane_b32 s{80+i}, v{v}, {16*i}")
    A("s_nop 1")
    A(f"v_mov_b32 v{v}, s80\nv_add_f32 v{v}, s81, v{v}\nv_add_f32 v{v}, s82, v{v}\nv_add_f32 v{v}, s83, v{v}")
def div448(v, tmp1, tmp2):
    A(f"v_mul_f32 v{tmp1}, 0x{f32bits(1.0/448):08x}, v{v}")
    A(f"v_mov_b32 v{tmp2}, 0x{f32bits(448.0):08x}")
    A(f"v_fma_f32 v{tmp2}, -v{tmp1}, v{tmp2}, v{v}")
    A(f"v_mul_f32 v{tmp2}, 0x{f32bits(1.0/448):08x}, v{tmp2}")
    A(f"v_add_f32 v{v}, v{tmp1}, v{tmp2}")
def rbf(vd, vs):
    A(f"v_cvt_pk_bf16_f32 v{vd}, 0, v{vs}")
def layernorm(r):
    E = 16
    for k in range(4):
        A(f"v_lshlrev_b32 v{E+2*k}, 16, v{r+k}\nv_and_b32 v{E+2*k+1}, s14, v{r+k}")
    A(f"v_add_f32 v24, v{E}, v{E+1}")
    for k in range(2, 8): A(f"v_add_f32 v24, v24, v{E+k}")
    wave_sum(24, 25)
    div448(24, 25, 26)
    A("v_mov_b32 v27, 0")
    for k in range(8):
        A(f"v_sub_f32 v25, v{E+k}, v24\nv_fmac_f32 v27, v25, v25")
    A("v_cmp_gt_u32 vcc, 56, v1\ns_nop 1\nv_cndmask_b32 v27, 0, v27, vcc")
    wave_sum(27, 25)
    div448(27, 25, 26)
    rbf(27, 27)
    rbf(24, 24)
    A(f"v_add_f32 v27, 0x{f32bits(1e-5):08x}, v27")
    rbf(27, 27)
    A("v_sqrt_f32 v27, v27\ns_nop 0")
    rbf(27, 27)
    A("v_rcp_f32 v28, v27\ns_nop 0")
    for k in range(8):
        A(f"v_sub_f32 v{E+k}, v{E+k}, v24")
        rbf(E+k, E+k)
        A(f"v_mul_f32 v25, v{E+k}, v28")
        A(f"v_fma_f32 v26, -v25, v27, v{E+k}")
        A(f"v_fma_f32 v{E+k}, v26, v28, v25")
    for k in range(4):
        A(f"v_cvt_pk_bf16_f32 v{r+k}, v{E+2*k}, v{E+2*k+1}")
    for k in range(4):
        A(f"v_lshlrev_b32 v{E+2*k}, 16, v{r+k}\nv_and_b32 v{E+2*k+1}, s14, v{r+k}")

A("s_cmp_eq_u32 s6, 0\ns_cbranch_scc1 L_qagent")
A("s_barrier")
for n in range(NBP):
    if PACE and n >= 1: A(f"s_waitcnt vmcnt({PACE-1})")
    issue_tile(n, track=False)
A("s_branch L_qjoin")
A("L_qagent:")
W = 64
XV = 128
A(f"buffer_load_dwordx4 v[8:11], v31, {srd(SX)}, 0 offen")
A(f"buffer_load_dwordx4 v[12:15], v31, {srd(SX)}, 0 offen offset:896")
A("""v_lshrrev_b32 v5, 1, v1
v_lshlrev_b32 v126, 13, v5
v_and_b32 v6, 1, v1
v_lshl_add_u32 v126, v6, 4, v126
v_lshlrev_b32 v127, 2, v5
s_lshl_b32 s15, s4, 3
s_add_u32 s15, s15, s5""")
A("s_mov_b32 s84, s15\ns_add_u32 s85, s15, 1\ns_mov_b32 s86, 0")
def wq_loads():
    A("s_lshl_b32 s9, s84, 5\ns_lshl_b32 s10, s3, 9\ns_add_u32 s9, s9, s10")
    for j in range(14):
        A(f"buffer_load_dwordx4 v[{W+4*j}:{W+4*j+3}], v126, {srd(SWQ)}, s9 offen")
        if j < 13: A("s_add_u32 s9, s9, 262144")
wq_loads()
A("s_barrier")
stamp(7)
A("s_waitcnt vmcnt(14)")
stamp(8)
for bb in range(2):
    layernorm(8 + 4*bb)
    A("s_mov_b32 exec_hi, 0x00ffffff")
    A("v_lshlrev_b32 v25, 5, v1")
    A(f"ds_write_b128 v25, v[16:19] offset:{XNF+1792*bb}")
    A(f"ds_write_b128 v25, v[20:23] offset:{XNF+1792*bb+16}")
    A("s_mov_b32 exec_hi, -1")
A("s_waitcnt lgkmcnt(0)")
for bb in range(2):
    for j in range(14): A(f"ds_read_b32 v{XV+14*bb+j}, v127 offset:{XNF+1792*bb+128*j}")
stamp(1)
A("s_branch L_share_body")
A("L_share_loop:")
wq_loads()
A("L_share_body:")
for k in range(16): A(f"v_mov_b32 v{4+k}, 0")
A("s_waitcnt lgkmcnt(0)")
for j in range(14):
    A(f"s_waitcnt vmcnt({13-j})")
    for k in range(4):
        w = W + 4*j + k
        A(f"v_lshlrev_b32 v28, 16, v{w}\nv_and_b32 v29, s14, v{w}")
        A(f"v_fmac_f32 v{4+2*k}, v{XV+j}, v28\nv_fmac_f32 v{5+2*k}, v{XV+j}, v29")
        A(f"v_fmac_f32 v{12+2*k}, v{XV+14+j}, v28\nv_fmac_f32 v{13+2*k}, v{XV+14+j}, v29")
stamp(9)
for r in (2, 4, 8):
    A("s_nop 1")
    for k in range(16): A(f"v_add_f32_dpp v{160+k}, v{4+k}, v{4+k} row_ror:{r} row_mask:0xf bank_mask:0xf")
    for k in range(16): A(f"v_mov_b32 v{4+k}, v{160+k}")
for sw in ("v_permlane16_swap_b32", "v_permlane32_swap_b32"):
    for k in range(16): A(f"v_mov_b32 v{160+k}, v{4+k}")
    A("s_nop 1")
    for k in range(16): A(f"{sw} v{4+k}, v{160+k}")
    A("s_nop 1")
    for k in range(16): A(f"v_add_f32 v{4+k}, v{4+k}, v{160+k}")
for k in range(8): A(f"v_cvt_pk_bf16_f32 v{160+k}, v{4+2*k}, v{5+2*k}")
A("s_cmp_eq_u32 s86, 0\ns_cbranch_scc0 L_q_fallback")
A("v_bfe_u32 v28, v1, 1, 1\nv_cmp_eq_u32 vcc, 1, v28\ns_nop 1")
for k in range(4): A(f"v_cndmask_b32 v{160+k}, v{160+k}, v{164+k}, vcc")
A("v_lshlrev_b32 v28, 9, v28\nv_and_b32 v29, 1, v1\nv_lshl_add_u32 v28, v29, 4, v28")
A(f"s_lshl_b32 s9, s3, 10\ns_lshl_b32 s10, s15, 5\ns_add_u32 s9, s9, s10\ns_add_u32 s9, s9, 0x{WS_QS:x}")
A("s_mov_b64 exec, 15")
A(f"buffer_store_dwordx4 v[160:163], v28, {srd(SWS)}, s9 offen sc1")
A("s_mov_b64 exec, -1")
A("s_lshl_b32 s9, s3, 2\ns_add_u32 s9, s9, 64\nv_mov_b32 v28, s9\nv_mov_b32 v29, 1")
A("s_waitcnt vmcnt(0)")
A("s_mov_b64 exec, 1")
A(f"buffer_atomic_add v29, v28, {srd(SDBG)}, 0 offen")
A("s_mov_b64 exec, -1")
stamp(2)
A("s_mov_b32 s87, 0")
A("L_qpoll:")
A("s_mov_b64 exec, 1")
A(f"buffer_load_dword v29, v28, {srd(SDBG)}, 0 offen sc1")
A("s_mov_b64 exec, -1")
A("s_waitcnt vmcnt(0)\nv_readfirstlane_b32 s9, v29\ns_nop 3\ns_cmp_ge_u32 s9, 16\ns_cbranch_scc1 L_qgot")
A(f"s_add_u32 s87, s87, 1\ns_cmp_lt_u32 s87, {SPIN_LIMIT}\ns_cbranch_scc1 L_qpoll")
A("s_mov_b32 s84, 0\ns_mov_b32 s85, 16\ns_mov_b32 s86, 1\ns_branch L_share_loop")
A("L_qgot:")
stamp(10)
A(f"s_lshl_b32 s9, s3, 10\ns_lshl_b32 s10, s4, 9\ns_add_u32 s9, s9, s10\ns_add_u32 s9, s9, 0x{WS_QS:x}")
A("s_mov_b32 exec_hi, 0")
A(f"buffer_load_dwordx4 v[160:163], v3, {srd(SWS)}, s9 offen sc1")
A("s_waitcnt vmcnt(0)")
A(f"ds_write_b128 v3, v[160:163] offset:{QB}")
A("s_mov_b32 exec_hi, -1")
A("s_branch L_qjoin")
A("L_q_fallback:")
A("s_cmp_eq_u32 s4, 0\ns_cbranch_scc1 L_q_fb0")
for k in range(4): A(f"v_mov_b32 v{160+k}, v{164+k}")
A("L_q_fb0:")
A("v_and_b32 v28, 1, v1\nv_lshlrev_b32 v28, 4, v28\ns_lshl_b32 s9, s84, 5\nv_add_u32 v28, s9, v28")
A("s_mov_b64 exec, 3")
A(f"ds_write_b128 v28, v[160:163] offset:{QB}")
A("s_mov_b64 exec, -1")
A("s_add_u32 s84, s84, 1\ns_cmp_lt_u32 s84, s85\ns_cbranch_scc1 L_share_loop")
A("L_qjoin:")
A("s_waitcnt lgkmcnt(0)\ns_barrier")
A("v_lshrrev_b32 v12, 4, v1\nv_lshlrev_b32 v12, 4, v12")
for j in range(8): A(f"ds_read_b128 v[{Q+4*j}:{Q+4*j+3}], v12 offset:{QB+64*j}")
A("s_cmp_eq_u32 s6, 0\ns_cbranch_scc0 L_q_b")
for n in range(NBP): issue_tile(n, track=False)
A("L_q_b:")
vm.q = []
for n in range(NBP):
    for j in range(8): vm.issue(f"t{n}")
for n in range(NBP, NB): issue_tile(n)
A("s_waitcnt lgkmcnt(0)")
stamp(3)

for t in range(8):
    b = B[t % NB]
    acc = 12 + 4*(t & 1)
    if TB: A("s_barrier")
    vm.wait(f"t{t}")
    for j in range(8):
        c = "0" if j == 0 else f"v[{acc}:{acc+3}]"
        A(f"v_mfma_f32_16x16x32_bf16 v[{acc}:{acc+3}], v[{Q+4*j}:{Q+4*j+3}], v[{b+4*j}:{b+4*j+3}], {c}")
    issue_tile(t + NB)
    if t > 0:
        rbf(4 + t - 1, 12 + 4*((t-1) & 1))
A("s_nop 7\ns_nop 1")
rbf(4 + 7, 12 + 4*(7 & 1))
stamp(4)
A("v_max3_f32 v30, v4, v5, v6\nv_max3_f32 v30, v30, v7, v8\nv_max3_f32 v30, v30, v9, v10\nv_max_f32 v30, v30, v11")
row_reduce("v_max_f32", 30, 12)
for t in range(8):
    A(f"v_sub_f32 v12, v{4+t}, v30\nv_mul_f32 v12, s13, v12\nv_exp_f32 v{4+t}, v12")
A("s_nop 0")
A("v_add_f32 v31, v4, v5")
for t in range(2, 8): A(f"v_add_f32 v31, v31, v{4+t}")
row_reduce("v_add_f32", 31, 12)
A("""v_and_b32 v12, 1, v1
v_lshlrev_b32 v12, 5, v12
v_lshrrev_b32 v13, 1, v1
v_lshl_add_u32 v12, v13, 2, v12
s_lshl_b32 s15, s6, 9
v_add_u32 v12, s15, v12
s_mov_b64 exec, 0xffff""")
for t in range(8): A(f"ds_write_b32 v12, v{4+t} offset:{PL+64*t}")
A("s_mov_b64 exec, -1")
A("v_lshrrev_b32 v29, 5, v1\nv_lshlrev_b32 v29, 5, v29\nv_add_u32 v29, s15, v29")
for k in range(8): A(f"v_mov_b32 v{4+k}, 0")
PV = [12, 20]
A("s_waitcnt lgkmcnt(0)")
A(f"ds_read_b128 v[12:15], v29 offset:{PL}\nds_read_b128 v[16:19], v29 offset:{PL+16}")
for t in range(8):
    n = 8 + t
    b = B[n % NB]
    pv = PV[t & 1]
    A("s_waitcnt lgkmcnt(0)")
    if t < 7:
        pn = PV[(t+1) & 1]
        A(f"ds_read_b128 v[{pn}:{pn+3}], v29 offset:{PL+64*(t+1)}\nds_read_b128 v[{pn+4}:{pn+7}], v29 offset:{PL+64*(t+1)+16}")
    if TB: A("s_barrier")
    vm.wait(f"t{n}")
    for j in range(8):
        for k in range(4):
            w = b + 4*j + k
            A(f"v_lshlrev_b32 v28, 16, v{w}\nv_fmac_f32 v{4+2*k}, v{pv+j}, v28")
            A(f"v_and_b32 v28, s14, v{w}\nv_fmac_f32 v{5+2*k}, v{pv+j}, v28")
    if n + NB < 16: issue_tile(n + NB)
stamp(5)
A("s_lshl_b32 s9, s6, 11\nv_lshlrev_b32 v12, 5, v1\nv_add_u32 v12, s9, v12")
A(f"ds_write_b128 v12, v[4:7] offset:{OP}\nds_write_b128 v12, v[8:11] offset:{OP+16}")
A("s_lshl_b32 s9, s6, 3\nv_mov_b32 v12, s9\ns_mov_b64 exec, 1")
A(f"ds_write_b64 v12, v[30:31] offset:{MLS}")
A("s_mov_b64 exec, -1")
A("s_waitcnt lgkmcnt(0)\ns_barrier")
A("s_cmp_lt_u32 s6, 4\ns_cbranch_scc0 L_pub_a")
CB = 64
A("v_mov_b32 v12, 0")
for i in range(4): A(f"ds_read_b128 v[{CB+4*i}:{CB+4*i+3}], v12 offset:{MLS+16*i}")
A("v_lshlrev_b32 v12, 2, v0")
for w in range(8):
    A(f"ds_read_b32 v{CB+16+2*w}, v12 offset:{OP+2048*w}\nds_read_b32 v{CB+17+2*w}, v12 offset:{OP+2048*w+1024}")
A("s_waitcnt lgkmcnt(0)")
A(f"v_max3_f32 v30, v{CB}, v{CB+2}, v{CB+4}\nv_max3_f32 v30, v30, v{CB+6}, v{CB+8}\nv_max3_f32 v30, v30, v{CB+10}, v{CB+12}\nv_max_f32 v30, v30, v{CB+14}")
A("v_mov_b32 v31, 0\nv_mov_b32 v13, 0")
for w in range(8):
    A(f"v_sub_f32 v14, v{CB+2*w}, v30\nv_mul_f32 v14, s13, v14\nv_exp_f32 v14, v14")
    A(f"v_add_f32 v15, v{CB+16+2*w}, v{CB+17+2*w}")
    A(f"v_fmac_f32 v31, v14, v{CB+2*w+1}\nv_fmac_f32 v13, v14, v15")
A("s_lshl_b32 s15, s7, 3\ns_add_u32 s15, s15, s5")
A(f"s_lshl_b32 s9, s15, 10\ns_add_u32 s9, s9, 0x{WS_PO:x}")
A(f"buffer_store_dword v13, v12, {srd(SWS)}, s9 offen sc1")
A("s_cmp_eq_u32 s6, 0\ns_cbranch_scc0 L_pub_a")
A(f"s_lshl_b32 s9, s15, 3\ns_add_u32 s9, s9, 0x{WS_ML:x}\ns_mov_b64 exec, 1")
A(f"buffer_store_dwordx2 v[30:31], v12, {srd(SWS)}, s9 offen sc1")
A("s_mov_b64 exec, -1")
A("L_pub_a:")
A("s_waitcnt vmcnt(0)\ns_barrier")
stamp(6)
A("s_cmp_eq_u32 s6, 0\ns_cbranch_scc0 L_fin_end")
A("s_lshl_b32 s9, s3, 2\ns_add_u32 s9, s9, 128\nv_mov_b32 v28, s9\nv_mov_b32 v29, 1")
A("s_mov_b64 exec, 1")
A(f"buffer_atomic_add v29, v28, {srd(SDBG)}, 0 offen")
A("s_mov_b64 exec, -1")
A("s_branch L_fin_end")

def publish_tail():
    A(f"s_mul_i32 s9, s6, 3584\ns_add_u32 s9, s9, {DP}\nv_lshlrev_b32 v28, 5, v1\nv_add_u32 v28, s9, v28")
    A("s_mov_b32 exec_hi, 0x00ffffff")
    A(f"ds_write_b128 v28, v[4:7]\nds_write_b128 v28, v[8:11] offset:16")
    A(f"ds_write_b128 v28, v[12:15] offset:1792\nds_write_b128 v28, v[16:19] offset:{1792+16}")
    A("s_mov_b32 exec_hi, -1")
    A("s_waitcnt lgkmcnt(0)\ns_barrier")
    A("v_cmp_gt_u32 vcc, 224, v0\ns_and_saveexec_b64 s[80:81], vcc\ns_cbranch_execz L_pt_c")
    A(f"v_lshlrev_b32 v28, 4, v0\nv_add_u32 v29, {DP}, v28")
    for w in range(8):
        A(f"ds_read_b128 v[{64+4*w}:{67+4*w}], v29 offset:{3584*w}")
    A("s_waitcnt lgkmcnt(0)")
    for w in range(1, 8):
        for k in range(4): A(f"v_add_f32 v{64+k}, v{64+k}, v{64+4*w+k}")
    A(f"buffer_store_dwordx4 v[64:67], v28, {srd(SWS)}, s15 offen sc1")
    A("L_pt_c:")
    A("s_mov_b64 exec, -1")

A("L_ffn:")
A("s_sub_u32 s5, s2, 256")
FG, FD = 64, 96
A(f"buffer_load_dwordx4 v[8:11], v31, {srd(SX)}, 0 offen")
A(f"buffer_load_dwordx4 v[12:15], v31, {srd(SX)}, 0 offen offset:896")
A("""v_lshrrev_b32 v6, 2, v1
s_movk_i32 s9, 3584
v_mul_lo_u32 v6, v6, s9
v_and_b32 v7, 3, v1
v_lshl_add_u32 v6, v7, 4, v6
s_and_b32 s9, s6, 3
s_mul_i32 s9, s9, 401408
s_lshl_b32 s10, s5, 6
s_add_u32 s9, s9, s10""")
for j in range(7):
    A(f"buffer_load_dwordx4 v[{FG+4*j}:{FG+4*j+3}], v6, {srd(SGU)}, s9 offen")
    if j < 6: A("s_add_u32 s9, s9, 57344")
A("s_lshl_b32 s9, s5, 3\ns_add_u32 s9, s9, s6\ns_mul_i32 s9, s9, 3584")
for j in range(4):
    A(f"buffer_load_dwordx4 v[{FD+4*j}:{FD+4*j+3}], v31, {srd(SWD)}, s9 offen offset:{896*j}")
A("s_waitcnt vmcnt(11)")
for bb in range(2):
    layernorm(8 + 4*bb)
    A("s_mov_b32 exec_hi, 0x00ffffff")
    A("v_lshlrev_b32 v25, 5, v1")
    A(f"ds_write_b128 v25, v[16:19] offset:{XNF+1792*bb}")
    A(f"ds_write_b128 v25, v[20:23] offset:{XNF+1792*bb+16}")
    A("s_mov_b32 exec_hi, -1")
A("""s_and_b32 s9, s6, 3
s_mul_i32 s9, s9, 448
v_lshrrev_b32 v26, 2, v1
v_lshlrev_b32 v26, 2, v26
v_add_u32 v26, s9, v26""")
for k in range(16): A(f"v_mov_b32 v{4+k}, 0")
A("s_waitcnt lgkmcnt(0)")
for j in range(7):
    A(f"ds_read_b32 v{128+2*j}, v26 offset:{XNF+64*j}\nds_read_b32 v{129+2*j}, v26 offset:{XNF+1792+64*j}")
A("s_waitcnt lgkmcnt(0)\ns_waitcnt vmcnt(4)")
for j in range(7):
    for k in range(4):
        w = FG + 4*j + k
        A(f"v_lshlrev_b32 v22, 16, v{w}\nv_and_b32 v23, s14, v{w}")
        A(f"v_fmac_f32 v{4+2*k}, v{128+2*j}, v22\nv_fmac_f32 v{5+2*k}, v{128+2*j}, v23")
        A(f"v_fmac_f32 v{12+2*k}, v{129+2*j}, v22\nv_fmac_f32 v{13+2*k}, v{129+2*j}, v23")
A("""v_lshrrev_b32 v27, 2, v1
v_lshlrev_b32 v27, 8, v27
v_and_b32 v22, 3, v1
v_lshl_add_u32 v27, v22, 5, v27
s_lshl_b32 s9, s6, 12
v_add_u32 v27, s9, v27""")
A(f"ds_write_b128 v27, v[4:7] offset:{GP}\nds_write_b128 v27, v[8:11] offset:{GP+16}")
A(f"ds_write_b128 v27, v[12:15] offset:{GP+128}\nds_write_b128 v27, v[16:19] offset:{GP+144}")
A("s_waitcnt lgkmcnt(0)\ns_barrier")
A("s_cmp_lt_u32 s6, 2\ns_cbranch_scc0 L_ffn_a")
A("s_lshl_b32 s9, s6, 14\nv_lshlrev_b32 v26, 2, v1\nv_add_u32 v26, s9, v26")
for g in range(4):
    for i in range(16):
        A(f"ds_read_b32 v{128+16*g+i}, v26 offset:{GP+4096*g+256*i}")
A("s_waitcnt lgkmcnt(0)")
A("v_add_f32 v4, v128, v129")
for i in range(2, 64): A(f"v_add_f32 v4, v4, v{128+i}")
rbf(4, 4)
A("s_lshl_b32 s9, s6, 8\nv_lshlrev_b32 v26, 2, v1\nv_add_u32 v26, s9, v26")
A(f"ds_write_b32 v26, v4 offset:{GUS}")
A("L_ffn_a:")
A("s_waitcnt lgkmcnt(0)\ns_barrier")
A("s_cmp_eq_u32 s6, 0\ns_cbranch_scc0 L_ffn_b")
A("v_lshlrev_b32 v26, 2, v1")
A(f"ds_read_b32 v4, v26 offset:{GUS}\nds_read_b32 v5, v26 offset:{GUS+256}")
A("s_waitcnt lgkmcnt(0)")
A(f"v_mul_f32 v6, 0x{f32bits(-1.4426950408889634):08x}, v4")
A("v_exp_f32 v6, v6\ns_nop 0\nv_add_f32 v6, 1.0, v6\nv_rcp_f32 v7, v6\ns_nop 0")
A("v_mul_f32 v8, v4, v7\nv_fma_f32 v9, -v8, v6, v4\nv_fma_f32 v8, v9, v7, v8")
rbf(8, 8)
A("v_mul_f32 v8, v8, v5")
rbf(8, 8)
A(f"ds_write_b32 v26, v8 offset:{HS}")
A("L_ffn_b:")
A("s_waitcnt lgkmcnt(0)\ns_barrier")
A("s_lshl_b32 s9, s6, 4\nv_mov_b32 v26, s9")
A(f"ds_read_b128 v[20:23], v26 offset:{HS}\nds_read_b128 v[24:27], v26 offset:{HS+128}")
for k in range(16): A(f"v_mov_b32 v{4+k}, 0")
A("s_waitcnt lgkmcnt(0)\ns_waitcnt vmcnt(0)")
for j in range(4):
    for k in range(4):
        w = FD + 4*j + k
        A(f"v_lshlrev_b32 v28, 16, v{w}\nv_and_b32 v29, s14, v{w}")
        A(f"v_fmac_f32 v{4+2*k}, v{20+j}, v28\nv_fmac_f32 v{5+2*k}, v{20+j}, v29")
        A(f"v_fmac_f32 v{12+2*k}, v{24+j}, v28\nv_fmac_f32 v{13+2*k}, v{24+j}, v29")
A(f"s_mul_i32 s15, s5, 3584\ns_add_u32 s15, s15, 0x{WS_FP:x}")
A("s_branch L_tail")

A("L_cmb:")
A(f"s_sub_u32 s5, s2, {256+NFFN}\ns_lshr_b32 s3, s5, 2\ns_and_b32 s4, s5, 3")
WO = 64
A("s_lshl_b32 s9, s5, 3\ns_add_u32 s9, s9, s6\ns_mul_i32 s9, s9, 7168")
for i in range(8):
    if i == 4: A("s_add_u32 s9, s9, 3584")
    A(f"buffer_load_dwordx4 v[{WO+4*i}:{WO+4*i+3}], v31, {srd(SWO)}, s9 offen offset:{896*(i%4)}")
A("s_cmp_eq_u32 s6, 0\ns_cbranch_scc0 L_cmb_w")
A("s_lshl_b32 s9, s3, 2\ns_add_u32 s9, s9, 128\nv_mov_b32 v28, s9")
A("L_cpoll:")
A(f"buffer_load_dword v29, v28, {srd(SDBG)}, 0 offen sc1")
A("s_waitcnt vmcnt(0)\nv_readfirstlane_b32 s9, v29\ns_nop 3\ns_cmp_lt_u32 s9, 16\ns_cbranch_scc1 L_cpoll")
A("L_cmb_w:")
A("s_barrier")
stamp(1)
A("""v_and_b32 v4, 7, v1
v_bfe_u32 v5, v1, 3, 1
v_lshlrev_b32 v6, 17, v5
v_lshl_add_u32 v6, v4, 2, v6
v_lshlrev_b32 v7, 10, v5""")
A(f"s_lshl_b32 s9, s3, 13\ns_lshl_b32 s10, s4, 8\ns_add_u32 s9, s9, s10\ns_lshl_b32 s10, s6, 5\ns_add_u32 s9, s9, s10\ns_add_u32 s9, s9, 0x{WS_PO:x}")
for s in range(8):
    if s == 4: A("s_add_u32 s9, s9, 4096")
    A(f"buffer_load_dword v{128+s}, v6, {srd(SWS)}, s9 offen offset:{1024*(s%4)} sc1")
A(f"s_lshl_b32 s9, s3, 6\ns_add_u32 s9, s9, 0x{WS_ML:x}")
for i in range(4): A(f"buffer_load_dwordx4 v[{136+4*i}:{139+4*i}], v7, {srd(SWS)}, s9 offen offset:{16*i} sc1")
A("s_waitcnt vmcnt(0)")
m0 = 136
A(f"v_max3_f32 v10, v{m0}, v{m0+2}, v{m0+4}\nv_max3_f32 v10, v10, v{m0+6}, v{m0+8}\nv_max3_f32 v10, v10, v{m0+10}, v{m0+12}\nv_max_f32 v10, v10, v{m0+14}")
A("v_mov_b32 v11, 0\nv_mov_b32 v12, 0")
for s in range(8):
    A(f"v_sub_f32 v13, v{m0+2*s}, v10\nv_mul_f32 v13, s13, v13\nv_exp_f32 v13, v13\ns_nop 0")
    A(f"v_fmac_f32 v11, v13, v{m0+2*s+1}\nv_fmac_f32 v12, v13, v{128+s}")
A("v_rcp_f32 v13, v11\ns_nop 0\nv_mul_f32 v14, v12, v13\nv_fma_f32 v15, -v14, v11, v12\nv_fma_f32 v14, v15, v13, v14")
rbf(14, 14)
A("s_nop 0")
for i in range(16): A(f"v_readlane_b32 s{16+i}, v14, {i}")
for k in range(16): A(f"v_mov_b32 v{4+k}, 0")
for i in range(8):
    for k in range(4):
        w = WO + 4*i + k
        A(f"v_lshlrev_b32 v28, 16, v{w}\nv_and_b32 v29, s14, v{w}")
        A(f"v_fmac_f32 v{4+2*k}, s{16+i}, v28\nv_fmac_f32 v{5+2*k}, s{16+i}, v29")
        A(f"v_fmac_f32 v{12+2*k}, s{24+i}, v28\nv_fmac_f32 v{13+2*k}, s{24+i}, v29")
A(f"s_mul_i32 s15, s5, 3584\ns_add_u32 s15, s15, 0x{WS_YC:x}")
A("L_tail:")
stamp(2)
publish_tail()
A("s_waitcnt vmcnt(0)\ns_barrier")
stamp(3)
A("s_cmp_eq_u32 s6, 0\ns_cbranch_scc0 L_arr")
A("s_mov_b64 exec, 1\nv_mov_b32 v4, 1\nv_mov_b32 v5, 0")
A(f"buffer_atomic_add v4, v5, {srd(SDBG)}, 0 offen sc0")
A("s_waitcnt vmcnt(0)")
A(f"ds_write_b32 v5, v4 offset:{TICK}")
A("s_mov_b64 exec, -1")
A("L_arr:")
A("s_waitcnt lgkmcnt(0)\ns_barrier")
A(f"v_mov_b32 v5, 0\nds_read_b32 v4, v5 offset:{TICK}\ns_waitcnt lgkmcnt(0)")
stamp(4)
A("v_readfirstlane_b32 s9, v4")
A(f"s_nop 3\ns_cmp_lt_u32 s9, {NARR-NFIN}\ns_cbranch_scc1 L_fin_end")
A(f"s_sub_u32 s9, s9, {NARR-NFIN}\ns_and_b32 s4, s9, 1\ns_lshr_b32 s5, s9, 1")
A("s_cmp_eq_u32 s6, 0\ns_cbranch_scc0 L_fin_w")
A("L_spin:")
A(f"buffer_load_dword v4, v5, {srd(SDBG)}, 0 offen sc1")
A(f"s_waitcnt vmcnt(0)\nv_readfirstlane_b32 s9, v4\ns_nop 3\ns_cmp_lt_u32 s9, {NARR}\ns_cbranch_scc1 L_spin")
A("L_fin_w:")
A("s_barrier")
stamp(5)
A("v_lshlrev_b32 v6, 2, v1\ns_lshl_b32 s10, s5, 8\nv_add_u32 v6, s10, v6")
A(f"s_mul_i32 s10, s6, {8*3584}\ns_mul_i32 s15, s4, 1792\ns_add_u32 s10, s10, s15\ns_add_u32 s10, s10, 0x{WS_YC:x}")
for i in range(8):
    A(f"buffer_load_dword v{64+i}, v6, {srd(SWS)}, s10 offen sc1")
    A("s_add_u32 s10, s10, 3584")
A(f"s_mul_i32 s10, s6, {7*3584}\ns_add_u32 s10, s10, s15\ns_add_u32 s10, s10, 0x{WS_FP:x}")
for i in range(7):
    A(f"buffer_load_dword v{80+i}, v6, {srd(SWS)}, s10 offen sc1")
    A("s_add_u32 s10, s10, 3584")
A("v_lshrrev_b32 v7, 1, v6\ns_mul_i32 s10, s4, 896")
A(f"buffer_load_ushort v90, v7, {srd(SX)}, s10 offen")
A("s_waitcnt vmcnt(0)")
A("v_add_f32 v8, v64, v65")
for i in range(2, 8): A(f"v_add_f32 v8, v8, v{64+i}")
A("v_add_f32 v9, v80, v81")
for i in range(2, 7): A(f"v_add_f32 v9, v9, v{80+i}")
A("s_lshl_b32 s9, s6, 8\nv_lshlrev_b32 v10, 2, v1\nv_add_u32 v10, s9, v10")
A(f"ds_write_b32 v10, v8 offset:{PL}\nds_write_b32 v10, v9 offset:{PL+2048}")
A("s_waitcnt lgkmcnt(0)\ns_barrier")
A("s_cmp_eq_u32 s6, 0\ns_cbranch_scc0 L_fin_end")
A("v_lshlrev_b32 v10, 2, v1")
for g in range(8): A(f"ds_read_b32 v{12+g}, v10 offset:{PL+256*g}\nds_read_b32 v{20+g}, v10 offset:{PL+2048+256*g}")
A("s_waitcnt lgkmcnt(0)")
for g in range(1, 8): A(f"v_add_f32 v12, v12, v{12+g}\nv_add_f32 v20, v20, v{20+g}")
rbf(12, 12); rbf(20, 20)
A("v_lshlrev_b32 v90, 16, v90\nv_add_f32 v12, v90, v12")
rbf(12, 12)
A("v_add_f32 v12, v12, v20\nv_cvt_pk_bf16_f32 v12, v12, v12")
A("s_mul_i32 s10, s4, 896")
A(f"buffer_store_short v12, v7, {srd(SOUT)}, s10 offen")
stamp(6)
A("L_fin_end:")
if DIAG:
    A("s_mov_b64 exec, 1")
    for i in range(12): A(f"v_mov_b32 v{4+i}, s{88+i}")
    A(f"v_mov_b32 v20, 0\ns_lshl_b32 s9, s2, 3\ns_add_u32 s9, s9, s6\ns_lshl_b32 s9, s9, 6\ns_add_u32 s9, s9, 0x{WS_DG:x}")
    for i in range(3): A(f"buffer_store_dwordx4 v[{4+4*i}:{7+4*i}], v20, {srd(SWS)}, s9 offen offset:{16*i}")
A("L_end:\ns_endpgm")
A(f'''.section .rodata,"a"
.p2align 6
.amdhsa_kernel {KN}
  .amdhsa_next_free_vgpr 256
  .amdhsa_next_free_sgpr 102
  .amdhsa_accum_offset 256
  .amdhsa_group_segment_fixed_size 0
  .amdhsa_kernarg_size 96
  .amdhsa_user_sgpr_count 2
  .amdhsa_user_sgpr_kernarg_segment_ptr 1
  .amdhsa_system_sgpr_workgroup_id_x 1
.end_amdhsa_kernel''')
print("\n".join(out))
```

```python
import sys, struct

KN = "parallel_sum__mha_block_cached__swiglu_ffn__decode_kernel"
out = []
ARGS = sys.argv[1:]
DIAG = "diag" in ARGS
TB = "tb" in ARGS
NB = 6
NBP = 4
PACE = 0
SLP = 0
QNT = " nt" if "qnt" in ARGS else ""
for a in ARGS:
    if a.startswith("nb="): NB = int(a[3:])
    if a.startswith("nbp="): NBP = int(a[4:])
    if a.startswith("pace="): PACE = int(a[5:])
    if a.startswith("slp="): SLP = int(a[4:])
def A(s):
    for line in s.split("\n"):
        out.append(line)
def stamp(i):
    if not DIAG: return
    A("s_memrealtime s[100:101]\ns_waitcnt lgkmcnt(0)")
    A(f"s_mov_b32 s{88+i}, s100")

def f32bits(x):
    return struct.unpack("<I", struct.pack("<f", x))[0]

class VM:
    def __init__(self): self.q = []
    def issue(self, tag): self.q.append(tag)
    def wait(self, tag):
        idxs = [i for i, t in enumerate(self.q) if t == tag]
        if not idxs: return
        idx = max(idxs)
        n = len(self.q) - 1 - idx
        A(f"s_waitcnt vmcnt({min(n,63)})")
        self.q = self.q[idx+1:] if n <= 63 else self.q[len(self.q)-63:]
vm = VM()

XNF = 0
XNB = 3584
QB = 5376
TICK = 5888
MLS = 5952
GUS = 6016
HS = 6528
PL = 8192
OP = 16384
GP = 16384
DP = 49152
LDS_BYTES = 49152 + 28672

WS_QS = 0x00000
WS_PO = 0x80000
WS_ML = 0xC0000
WS_YC = 0xC1000
WS_FP = 0xF9000
WS_DG = 0x140000
WS_BYTES = 0x200000
NFFN = 56
NCMB = 64
NFIN = 14
NARR = NFFN + NCMB
SPIN_LIMIT = 20000
for a in ARGS:
    if a.startswith("spin="): SPIN_LIMIT = int(a[5:])

SX, SK, SV, SWQ, SWO, SGU, SWD, SOUT, SDBG, SWS = 40, 44, 48, 52, 56, 60, 64, 68, 72, 76
def srd(r): return f"s[{r}:{r+3}]"

B = [64, 96, 128, 160, 192, 224][:NB]
Q = 32

A(f"; @launch grid=({256+NARR},1,1) block=(512,1,1) lds={LDS_BYTES}")
A('.amdgcn_target "amdgcn-amd-amdhsa--gfx950"')
A(".text")
A(f".globl {KN}\n.p2align 8\n.type {KN},@function\n{KN}:")
A(f"s_cmp_ge_u32 s2, {256+NARR}\ns_cbranch_scc1 L_end")
A("s_load_dwordx16 s[16:31], s[0:1], 0")
A("s_load_dwordx8 s[32:39], s[0:1], 64")
A("v_and_b32 v1, 63, v0")
A("v_lshrrev_b32 v4, 6, v0")
A("s_nop 0")
A("v_readfirstlane_b32 s6, v4")
A("""s_and_b32 s9, s2, 7
s_lshr_b32 s10, s2, 3
s_and_b32 s3, s10, 1
s_lshl_b32 s3, s3, 3
s_add_u32 s3, s3, s9
s_lshr_b32 s4, s10, 1
s_and_b32 s4, s4, 1
s_lshr_b32 s5, s10, 2
s_lshl_b32 s7, s4, 4
s_add_u32 s7, s7, s3
s_lshl_b32 s8, s7, 22
s_lshl_b32 s9, s5, 19
s_add_u32 s8, s8, s9
s_lshl_b32 s9, s6, 13
s_add_u32 s8, s8, s9""")
A("s_mov_b32 s11, 0x05040100\ns_mov_b32 s12, 0x07060302")
A(f"s_mov_b32 s13, 0x{f32bits(0.0625*1.4426950408889634):08x}")
A("s_mov_b32 s14, 0xffff0000")
A("""v_and_b32 v2, 15, v1
v_lshlrev_b32 v2, 9, v2
v_lshrrev_b32 v4, 4, v1
v_lshl_or_b32 v2, v4, 4, v2
v_lshlrev_b32 v3, 4, v1
v_mov_b32 v5, 0x7f000000
v_cmp_gt_u32 vcc, 56, v1
s_nop 1
v_cndmask_b32 v31, v5, v3, vcc""")
A("s_waitcnt lgkmcnt(0)")
if DIAG:
    for i in range(12): A(f"s_mov_b32 s{88+i}, 0")
stamp(0)
def mk(r, lo, nbytes):
    A(f"s_mov_b32 s{r}, s{lo}\ns_mov_b32 s{r+1}, s{lo+1}\ns_mov_b32 s{r+2}, 0x{nbytes:x}\ns_mov_b32 s{r+3}, 0x20000")
mk(SK, 18, 1<<27); mk(SX, 16, 1792); mk(SWQ, 22, 448*4096*2)
mk(SV, 20, 1<<27); mk(SWO, 24, 4096*448*2)
mk(SWD, 32, 1792*448*2); mk(SOUT, 34, 1792); mk(SDBG, 36, 256); mk(SWS, 38, WS_BYTES)
A("s_cmp_lt_u32 s6, 4")
A(f"s_cselect_b32 s{SGU}, s28, s30\ns_cselect_b32 s{SGU+1}, s29, s31\ns_mov_b32 s{SGU+2}, 0x{448*1792*2:x}\ns_mov_b32 s{SGU+3}, 0x20000")
A(f"s_cmp_ge_u32 s2, {256+NFFN}\ns_cbranch_scc1 L_cmb")
A("s_cmp_ge_u32 s2, 256\ns_cbranch_scc1 L_ffn")

def issue_tile(n, track=True):
    b = B[n % NB]
    if n < 8:
        A(f"s_add_u32 s9, s8, {n*65536}")
        for j in range(8):
            A(f"buffer_load_dwordx4 v[{b+4*j}:{b+4*j+3}], v2, {srd(SK)}, s9 offen offset:{64*j} nt")
            if track: vm.issue(f"t{n}")
    else:
        A(f"s_add_u32 s9, s8, {(n-8)*65536}\ns_add_u32 s10, s9, 4096")
        for j in range(8):
            A(f"buffer_load_dwordx4 v[{b+4*j}:{b+4*j+3}], v3, {srd(SV)}, {'s9' if j<4 else 's10'} offen offset:{1024*(j%4)} nt")
            if track: vm.issue(f"t{n}")

def row_reduce(op, v, tmp):
    for r in (8, 4, 2, 1):
        A("s_nop 1")
        A(f"{op}_dpp v{tmp}, v{v}, v{v} row_ror:{r} row_mask:0xf bank_mask:0xf")
        A(f"v_mov_b32 v{v}, v{tmp}")
def wave_sum(v, tmp):
    row_reduce("v_add_f32", v, tmp)
    A("s_nop 0")
    for i in range(4): A(f"v_readlane_b32 s{80+i}, v{v}, {16*i}")
    A("s_nop 1")
    A(f"v_mov_b32 v{v}, s80\nv_add_f32 v{v}, s81, v{v}\nv_add_f32 v{v}, s82, v{v}\nv_add_f32 v{v}, s83, v{v}")
def div448(v, tmp1, tmp2):
    A(f"v_mul_f32 v{tmp1}, 0x{f32bits(1.0/448):08x}, v{v}")
    A(f"v_mov_b32 v{tmp2}, 0x{f32bits(448.0):08x}")
    A(f"v_fma_f32 v{tmp2}, -v{tmp1}, v{tmp2}, v{v}")
    A(f"v_mul_f32 v{tmp2}, 0x{f32bits(1.0/448):08x}, v{tmp2}")
    A(f"v_add_f32 v{v}, v{tmp1}, v{tmp2}")
def rbf(vd, vs):
    A(f"v_cvt_pk_bf16_f32 v{vd}, 0, v{vs}")
def layernorm(r):
    E = 16
    for k in range(4):
        A(f"v_lshlrev_b32 v{E+2*k}, 16, v{r+k}\nv_and_b32 v{E+2*k+1}, s14, v{r+k}")
    A(f"v_add_f32 v24, v{E}, v{E+1}")
    for k in range(2, 8): A(f"v_add_f32 v24, v24, v{E+k}")
    wave_sum(24, 25)
    div448(24, 25, 26)
    A("v_mov_b32 v27, 0")
    for k in range(8):
        A(f"v_sub_f32 v25, v{E+k}, v24\nv_fmac_f32 v27, v25, v25")
    A("v_cmp_gt_u32 vcc, 56, v1\ns_nop 1\nv_cndmask_b32 v27, 0, v27, vcc")
    wave_sum(27, 25)
    div448(27, 25, 26)
    rbf(27, 27)
    rbf(24, 24)
    A(f"v_add_f32 v27, 0x{f32bits(1e-5):08x}, v27")
    rbf(27, 27)
    A("v_sqrt_f32 v27, v27\ns_nop 0")
    rbf(27, 27)
    A("v_rcp_f32 v28, v27\ns_nop 0")
    for k in range(8):
        A(f"v_sub_f32 v{E+k}, v{E+k}, v24")
        rbf(E+k, E+k)
        A(f"v_mul_f32 v25, v{E+k}, v28")
        A(f"v_fma_f32 v26, -v25, v27, v{E+k}")
        A(f"v_fma_f32 v{E+k}, v26, v28, v25")
    for k in range(4):
        A(f"v_cvt_pk_bf16_f32 v{r+k}, v{E+2*k}, v{E+2*k+1}")
    for k in range(4):
        A(f"v_lshlrev_b32 v{E+2*k}, 16, v{r+k}\nv_and_b32 v{E+2*k+1}, s14, v{r+k}")

A("s_cmp_eq_u32 s6, 0\ns_cbranch_scc1 L_qagent")
A("s_barrier")
for n in range(NBP):
    if PACE and n >= 1: A(f"s_waitcnt vmcnt({PACE-1})")
    issue_tile(n, track=False)
A("s_branch L_qjoin")
A("L_qagent:")
W = 64
XV = 128
A(f"buffer_load_dwordx4 v[8:11], v31, {srd(SX)}, 0 offen")
A(f"buffer_load_dwordx4 v[12:15], v31, {srd(SX)}, 0 offen offset:896")
A("""v_lshrrev_b32 v5, 1, v1
v_lshlrev_b32 v126, 13, v5
v_and_b32 v6, 1, v1
v_lshl_add_u32 v126, v6, 4, v126
v_lshlrev_b32 v127, 2, v5
s_lshl_b32 s15, s4, 3
s_add_u32 s15, s15, s5""")
A("s_mov_b32 s84, s15\ns_add_u32 s85, s15, 1\ns_mov_b32 s86, 0")
A("s_memrealtime s[82:83]\ns_lshl_b32 s9, s3, 2\ns_add_u32 s9, s9, 64\nv_mov_b32 v125, s9\ns_waitcnt lgkmcnt(0)\ns_or_b32 s82, s82, 1")
A("v_mov_b32 v122, s82\nv_mov_b32 v123, 0\ns_mov_b64 exec, 1")
A(f"buffer_atomic_cmpswap v[122:123], v125, {srd(SDBG)}, 0 offen sc0")
A("s_mov_b64 exec, -1")
def wq_loads():
    A("s_lshl_b32 s9, s84, 5\ns_lshl_b32 s10, s3, 9\ns_add_u32 s9, s9, s10")
    for j in range(14):
        A(f"buffer_load_dwordx4 v[{W+4*j}:{W+4*j+3}], v126, {srd(SWQ)}, s9 offen")
        if j < 13: A("s_add_u32 s9, s9, 262144")
wq_loads()
A("s_barrier")
stamp(7)
A("s_waitcnt vmcnt(15)")
stamp(8)
for bb in range(2):
    layernorm(8 + 4*bb)
    A("s_mov_b32 exec_hi, 0x00ffffff")
    A("v_lshlrev_b32 v25, 5, v1")
    A(f"ds_write_b128 v25, v[16:19] offset:{XNF+1792*bb}")
    A(f"ds_write_b128 v25, v[20:23] offset:{XNF+1792*bb+16}")
    A("s_mov_b32 exec_hi, -1")
A("s_waitcnt lgkmcnt(0)")
for bb in range(2):
    for j in range(14): A(f"ds_read_b32 v{XV+14*bb+j}, v127 offset:{XNF+1792*bb+128*j}")
stamp(1)
A("s_branch L_share_body")
A("L_share_loop:")
wq_loads()
A("L_share_body:")
for k in range(16): A(f"v_mov_b32 v{4+k}, 0")
A("s_waitcnt lgkmcnt(0)")
for j in range(14):
    A(f"s_waitcnt vmcnt({13-j})")
    for k in range(4):
        w = W + 4*j + k
        A(f"v_lshlrev_b32 v28, 16, v{w}\nv_and_b32 v29, s14, v{w}")
        A(f"v_fmac_f32 v{4+2*k}, v{XV+j}, v28\nv_fmac_f32 v{5+2*k}, v{XV+j}, v29")
        A(f"v_fmac_f32 v{12+2*k}, v{XV+14+j}, v28\nv_fmac_f32 v{13+2*k}, v{XV+14+j}, v29")
stamp(9)
for r in (2, 4, 8):
    A("s_nop 1")
    for k in range(16): A(f"v_add_f32_dpp v{160+k}, v{4+k}, v{4+k} row_ror:{r} row_mask:0xf bank_mask:0xf")
    for k in range(16): A(f"v_mov_b32 v{4+k}, v{160+k}")
for sw in ("v_permlane16_swap_b32", "v_permlane32_swap_b32"):
    for k in range(16): A(f"v_mov_b32 v{160+k}, v{4+k}")
    A("s_nop 1")
    for k in range(16): A(f"{sw} v{4+k}, v{160+k}")
    A("s_nop 1")
    for k in range(16): A(f"v_add_f32 v{4+k}, v{4+k}, v{160+k}")
for k in range(8): A(f"v_cvt_pk_bf16_f32 v{160+k}, v{4+2*k}, v{5+2*k}")
A("s_cmp_eq_u32 s86, 0\ns_cbranch_scc0 L_q_fallback")
A("v_readfirstlane_b32 s9, v122\ns_nop 3\ns_cmp_eq_u32 s9, 0\ns_cselect_b32 s82, s82, s9")
A("v_bfe_u32 v28, v1, 1, 1\nv_cmp_eq_u32 vcc, 1, v28\ns_nop 1")
A("v_cndmask_b32 v168, v160, v162, vcc\nv_cndmask_b32 v169, v161, v163, vcc\nv_cndmask_b32 v170, v164, v166, vcc\nv_cndmask_b32 v171, v165, v167, vcc")
A("v_bfe_u32 v29, v1, 2, 1\nv_cmp_eq_u32 vcc, 1, v29\ns_nop 1")
A("v_cndmask_b32 v172, v168, v170, vcc\nv_cndmask_b32 v174, v169, v171, vcc\nv_mov_b32 v173, s82\nv_mov_b32 v175, s82")
A("v_lshlrev_b32 v29, 10, v29\nv_lshl_add_u32 v29, v28, 4, v29\nv_and_b32 v28, 1, v1\nv_lshl_add_u32 v29, v28, 5, v29")
A(f"s_lshl_b32 s9, s3, 11\ns_lshl_b32 s10, s15, 6\ns_add_u32 s9, s9, s10\ns_add_u32 s9, s9, 0x{WS_QS:x}")
A("s_mov_b64 exec, 0xff")
A(f"buffer_store_dwordx4 v[172:175], v29, {srd(SWS)}, s9 offen sc1")
A("s_mov_b64 exec, -1")
stamp(2)
A(f"s_lshl_b32 s9, s3, 11\ns_lshl_b32 s10, s4, 10\ns_add_u32 s9, s9, s10\ns_add_u32 s9, s9, 0x{WS_QS:x}")
A("s_mov_b32 s87, 0")
A("L_qpoll:")
A(f"buffer_load_dwordx4 v[160:163], v3, {srd(SWS)}, s9 offen sc1")
A("s_waitcnt vmcnt(0)")
A("v_cmp_eq_u32 vcc, s82, v161\nv_cmp_eq_u32 s[80:81], s82, v163\ns_nop 3\ns_and_b64 vcc, vcc, s[80:81]\ns_cmp_eq_u64 vcc, -1\ns_cbranch_scc1 L_qgot")
if SLP: A(f"s_sleep {SLP}")
A(f"s_add_u32 s87, s87, 1\ns_cmp_lt_u32 s87, {SPIN_LIMIT}\ns_cbranch_scc1 L_qpoll")
A("s_mov_b32 s84, 0\ns_mov_b32 s85, 16\ns_mov_b32 s86, 1\ns_branch L_share_loop")
A("L_qgot:")
stamp(10)
A("v_mov_b32 v161, v162\nv_lshlrev_b32 v28, 3, v1")
A(f"ds_write_b64 v28, v[160:161] offset:{QB}")
A("s_branch L_qjoin")
A("L_q_fallback:")
A("s_cmp_eq_u32 s4, 0\ns_cbranch_scc1 L_q_fb0")
for k in range(4): A(f"v_mov_b32 v{160+k}, v{164+k}")
A("L_q_fb0:")
A("v_and_b32 v28, 1, v1\nv_lshlrev_b32 v28, 4, v28\ns_lshl_b32 s9, s84, 5\nv_add_u32 v28, s9, v28")
A("s_mov_b64 exec, 3")
A(f"ds_write_b128 v28, v[160:163] offset:{QB}")
A("s_mov_b64 exec, -1")
A("s_add_u32 s84, s84, 1\ns_cmp_lt_u32 s84, s85\ns_cbranch_scc1 L_share_loop")
A("L_qjoin:")
stamp(11)
A("s_waitcnt lgkmcnt(0)\ns_barrier")
A("v_lshrrev_b32 v12, 4, v1\nv_lshlrev_b32 v12, 4, v12")
for j in range(8): A(f"ds_read_b128 v[{Q+4*j}:{Q+4*j+3}], v12 offset:{QB+64*j}")
A("s_cmp_eq_u32 s6, 0\ns_cbranch_scc0 L_q_b")
for n in range(NBP): issue_tile(n, track=False)
A("L_q_b:")
vm.q = []
for n in range(NBP):
    for j in range(8): vm.issue(f"t{n}")
for n in range(NBP, NB): issue_tile(n)
A("s_waitcnt lgkmcnt(0)")
stamp(3)

for t in range(8):
    b = B[t % NB]
    acc = 12 + 4*(t & 1)
    if TB: A("s_barrier")
    vm.wait(f"t{t}")
    for j in range(8):
        c = "0" if j == 0 else f"v[{acc}:{acc+3}]"
        A(f"v_mfma_f32_16x16x32_bf16 v[{acc}:{acc+3}], v[{Q+4*j}:{Q+4*j+3}], v[{b+4*j}:{b+4*j+3}], {c}")
    issue_tile(t + NB)
    if t > 0:
        rbf(4 + t - 1, 12 + 4*((t-1) & 1))
A("s_nop 7\ns_nop 1")
rbf(4 + 7, 12 + 4*(7 & 1))
stamp(4)
A("v_max3_f32 v30, v4, v5, v6\nv_max3_f32 v30, v30, v7, v8\nv_max3_f32 v30, v30, v9, v10\nv_max_f32 v30, v30, v11")
row_reduce("v_max_f32", 30, 12)
for t in range(8):
    A(f"v_sub_f32 v12, v{4+t}, v30\nv_mul_f32 v12, s13, v12\nv_exp_f32 v{4+t}, v12")
A("s_nop 0")
A("v_add_f32 v31, v4, v5")
for t in range(2, 8): A(f"v_add_f32 v31, v31, v{4+t}")
row_reduce("v_add_f32", 31, 12)
A("""v_and_b32 v12, 1, v1
v_lshlrev_b32 v12, 5, v12
v_lshrrev_b32 v13, 1, v1
v_lshl_add_u32 v12, v13, 2, v12
s_lshl_b32 s15, s6, 9
v_add_u32 v12, s15, v12
s_mov_b64 exec, 0xffff""")
for t in range(8): A(f"ds_write_b32 v12, v{4+t} offset:{PL+64*t}")
A("s_mov_b64 exec, -1")
A("v_lshrrev_b32 v29, 5, v1\nv_lshlrev_b32 v29, 5, v29\nv_add_u32 v29, s15, v29")
for k in range(8): A(f"v_mov_b32 v{4+k}, 0")
PV = [12, 20]
A("s_waitcnt lgkmcnt(0)")
A(f"ds_read_b128 v[12:15], v29 offset:{PL}\nds_read_b128 v[16:19], v29 offset:{PL+16}")
for t in range(8):
    n = 8 + t
    b = B[n % NB]
    pv = PV[t & 1]
    A("s_waitcnt lgkmcnt(0)")
    if t < 7:
        pn = PV[(t+1) & 1]
        A(f"ds_read_b128 v[{pn}:{pn+3}], v29 offset:{PL+64*(t+1)}\nds_read_b128 v[{pn+4}:{pn+7}], v29 offset:{PL+64*(t+1)+16}")
    if TB: A("s_barrier")
    vm.wait(f"t{n}")
    for j in range(8):
        for k in range(4):
            w = b + 4*j + k
            A(f"v_lshlrev_b32 v28, 16, v{w}\nv_fmac_f32 v{4+2*k}, v{pv+j}, v28")
            A(f"v_and_b32 v28, s14, v{w}\nv_fmac_f32 v{5+2*k}, v{pv+j}, v28")
    if n + NB < 16: issue_tile(n + NB)
stamp(5)
A("s_lshl_b32 s9, s6, 11\nv_lshlrev_b32 v12, 5, v1\nv_add_u32 v12, s9, v12")
A(f"ds_write_b128 v12, v[4:7] offset:{OP}\nds_write_b128 v12, v[8:11] offset:{OP+16}")
A("s_lshl_b32 s9, s6, 3\nv_mov_b32 v12, s9\ns_mov_b64 exec, 1")
A(f"ds_write_b64 v12, v[30:31] offset:{MLS}")
A("s_mov_b64 exec, -1")
A("s_waitcnt lgkmcnt(0)\ns_barrier")
A("s_cmp_lt_u32 s6, 4\ns_cbranch_scc0 L_pub_a")
CB = 64
A("v_mov_b32 v12, 0")
for i in range(4): A(f"ds_read_b128 v[{CB+4*i}:{CB+4*i+3}], v12 offset:{MLS+16*i}")
A("v_lshlrev_b32 v12, 2, v0")
for w in range(8):
    A(f"ds_read_b32 v{CB+16+2*w}, v12 offset:{OP+2048*w}\nds_read_b32 v{CB+17+2*w}, v12 offset:{OP+2048*w+1024}")
A("s_waitcnt lgkmcnt(0)")
A(f"v_max3_f32 v30, v{CB}, v{CB+2}, v{CB+4}\nv_max3_f32 v30, v30, v{CB+6}, v{CB+8}\nv_max3_f32 v30, v30, v{CB+10}, v{CB+12}\nv_max_f32 v30, v30, v{CB+14}")
A("v_mov_b32 v31, 0\nv_mov_b32 v13, 0")
for w in range(8):
    A(f"v_sub_f32 v14, v{CB+2*w}, v30\nv_mul_f32 v14, s13, v14\nv_exp_f32 v14, v14")
    A(f"v_add_f32 v15, v{CB+16+2*w}, v{CB+17+2*w}")
    A(f"v_fmac_f32 v31, v14, v{CB+2*w+1}\nv_fmac_f32 v13, v14, v15")
A("s_lshl_b32 s15, s7, 3\ns_add_u32 s15, s15, s5")
A(f"s_lshl_b32 s9, s15, 10\ns_add_u32 s9, s9, 0x{WS_PO:x}")
A(f"buffer_store_dword v13, v12, {srd(SWS)}, s9 offen sc1")
A("s_cmp_eq_u32 s6, 0\ns_cbranch_scc0 L_pub_a")
A(f"s_lshl_b32 s9, s15, 3\ns_add_u32 s9, s9, 0x{WS_ML:x}\ns_mov_b64 exec, 1")
A(f"buffer_store_dwordx2 v[30:31], v12, {srd(SWS)}, s9 offen sc1")
A("s_mov_b64 exec, -1")
A("L_pub_a:")
A("s_waitcnt vmcnt(0)\ns_barrier")
stamp(6)
A("s_cmp_eq_u32 s6, 0\ns_cbranch_scc0 L_fin_end")
A("s_lshl_b32 s9, s3, 2\ns_add_u32 s9, s9, 128\nv_mov_b32 v28, s9\nv_mov_b32 v29, 1")
A("s_mov_b64 exec, 1")
A(f"buffer_atomic_add v29, v28, {srd(SDBG)}, 0 offen")
A("s_mov_b64 exec, -1")
A("s_branch L_fin_end")

def publish_tail():
    A(f"s_mul_i32 s9, s6, 3584\ns_add_u32 s9, s9, {DP}\nv_lshlrev_b32 v28, 5, v1\nv_add_u32 v28, s9, v28")
    A("s_mov_b32 exec_hi, 0x00ffffff")
    A(f"ds_write_b128 v28, v[4:7]\nds_write_b128 v28, v[8:11] offset:16")
    A(f"ds_write_b128 v28, v[12:15] offset:1792\nds_write_b128 v28, v[16:19] offset:{1792+16}")
    A("s_mov_b32 exec_hi, -1")
    A("s_waitcnt lgkmcnt(0)\ns_barrier")
    A("v_cmp_gt_u32 vcc, 224, v0\ns_and_saveexec_b64 s[80:81], vcc\ns_cbranch_execz L_pt_c")
    A(f"v_lshlrev_b32 v28, 4, v0\nv_add_u32 v29, {DP}, v28")
    for w in range(8):
        A(f"ds_read_b128 v[{64+4*w}:{67+4*w}], v29 offset:{3584*w}")
    A("s_waitcnt lgkmcnt(0)")
    for w in range(1, 8):
        for k in range(4): A(f"v_add_f32 v{64+k}, v{64+k}, v{64+4*w+k}")
    A(f"buffer_store_dwordx4 v[64:67], v28, {srd(SWS)}, s15 offen sc1")
    A("L_pt_c:")
    A("s_mov_b64 exec, -1")

A("L_ffn:")
A("s_sub_u32 s5, s2, 256")
FG, FD = 64, 96
A(f"buffer_load_dwordx4 v[8:11], v31, {srd(SX)}, 0 offen")
A(f"buffer_load_dwordx4 v[12:15], v31, {srd(SX)}, 0 offen offset:896")
A("""v_lshrrev_b32 v6, 2, v1
s_movk_i32 s9, 3584
v_mul_lo_u32 v6, v6, s9
v_and_b32 v7, 3, v1
v_lshl_add_u32 v6, v7, 4, v6
s_and_b32 s9, s6, 3
s_mul_i32 s9, s9, 401408
s_lshl_b32 s10, s5, 6
s_add_u32 s9, s9, s10""")
for j in range(7):
    A(f"buffer_load_dwordx4 v[{FG+4*j}:{FG+4*j+3}], v6, {srd(SGU)}, s9 offen")
    if j < 6: A("s_add_u32 s9, s9, 57344")
A("s_lshl_b32 s9, s5, 3\ns_add_u32 s9, s9, s6\ns_mul_i32 s9, s9, 3584")
for j in range(4):
    A(f"buffer_load_dwordx4 v[{FD+4*j}:{FD+4*j+3}], v31, {srd(SWD)}, s9 offen offset:{896*j}")
A("s_waitcnt vmcnt(11)")
for bb in range(2):
    layernorm(8 + 4*bb)
    A("s_mov_b32 exec_hi, 0x00ffffff")
    A("v_lshlrev_b32 v25, 5, v1")
    A(f"ds_write_b128 v25, v[16:19] offset:{XNF+1792*bb}")
    A(f"ds_write_b128 v25, v[20:23] offset:{XNF+1792*bb+16}")
    A("s_mov_b32 exec_hi, -1")
A("""s_and_b32 s9, s6, 3
s_mul_i32 s9, s9, 448
v_lshrrev_b32 v26, 2, v1
v_lshlrev_b32 v26, 2, v26
v_add_u32 v26, s9, v26""")
for k in range(16): A(f"v_mov_b32 v{4+k}, 0")
A("s_waitcnt lgkmcnt(0)")
for j in range(7):
    A(f"ds_read_b32 v{128+2*j}, v26 offset:{XNF+64*j}\nds_read_b32 v{129+2*j}, v26 offset:{XNF+1792+64*j}")
A("s_waitcnt lgkmcnt(0)\ns_waitcnt vmcnt(4)")
for j in range(7):
    for k in range(4):
        w = FG + 4*j + k
        A(f"v_lshlrev_b32 v22, 16, v{w}\nv_and_b32 v23, s14, v{w}")
        A(f"v_fmac_f32 v{4+2*k}, v{128+2*j}, v22\nv_fmac_f32 v{5+2*k}, v{128+2*j}, v23")
        A(f"v_fmac_f32 v{12+2*k}, v{129+2*j}, v22\nv_fmac_f32 v{13+2*k}, v{129+2*j}, v23")
A("""v_lshrrev_b32 v27, 2, v1
v_lshlrev_b32 v27, 8, v27
v_and_b32 v22, 3, v1
v_lshl_add_u32 v27, v22, 5, v27
s_lshl_b32 s9, s6, 12
v_add_u32 v27, s9, v27""")
A(f"ds_write_b128 v27, v[4:7] offset:{GP}\nds_write_b128 v27, v[8:11] offset:{GP+16}")
A(f"ds_write_b128 v27, v[12:15] offset:{GP+128}\nds_write_b128 v27, v[16:19] offset:{GP+144}")
A("s_waitcnt lgkmcnt(0)\ns_barrier")
A("s_cmp_lt_u32 s6, 2\ns_cbranch_scc0 L_ffn_a")
A("s_lshl_b32 s9, s6, 14\nv_lshlrev_b32 v26, 2, v1\nv_add_u32 v26, s9, v26")
for g in range(4):
    for i in range(16):
        A(f"ds_read_b32 v{128+16*g+i}, v26 offset:{GP+4096*g+256*i}")
A("s_waitcnt lgkmcnt(0)")
A("v_add_f32 v4, v128, v129")
for i in range(2, 64): A(f"v_add_f32 v4, v4, v{128+i}")
rbf(4, 4)
A("s_lshl_b32 s9, s6, 8\nv_lshlrev_b32 v26, 2, v1\nv_add_u32 v26, s9, v26")
A(f"ds_write_b32 v26, v4 offset:{GUS}")
A("L_ffn_a:")
A("s_waitcnt lgkmcnt(0)\ns_barrier")
A("s_cmp_eq_u32 s6, 0\ns_cbranch_scc0 L_ffn_b")
A("v_lshlrev_b32 v26, 2, v1")
A(f"ds_read_b32 v4, v26 offset:{GUS}\nds_read_b32 v5, v26 offset:{GUS+256}")
A("s_waitcnt lgkmcnt(0)")
A(f"v_mul_f32 v6, 0x{f32bits(-1.4426950408889634):08x}, v4")
A("v_exp_f32 v6, v6\ns_nop 0\nv_add_f32 v6, 1.0, v6\nv_rcp_f32 v7, v6\ns_nop 0")
A("v_mul_f32 v8, v4, v7\nv_fma_f32 v9, -v8, v6, v4\nv_fma_f32 v8, v9, v7, v8")
rbf(8, 8)
A("v_mul_f32 v8, v8, v5")
rbf(8, 8)
A(f"ds_write_b32 v26, v8 offset:{HS}")
A("L_ffn_b:")
A("s_waitcnt lgkmcnt(0)\ns_barrier")
A("s_lshl_b32 s9, s6, 4\nv_mov_b32 v26, s9")
A(f"ds_read_b128 v[20:23], v26 offset:{HS}\nds_read_b128 v[24:27], v26 offset:{HS+128}")
for k in range(16): A(f"v_mov_b32 v{4+k}, 0")
A("s_waitcnt lgkmcnt(0)\ns_waitcnt vmcnt(0)")
for j in range(4):
    for k in range(4):
        w = FD + 4*j + k
        A(f"v_lshlrev_b32 v28, 16, v{w}\nv_and_b32 v29, s14, v{w}")
        A(f"v_fmac_f32 v{4+2*k}, v{20+j}, v28\nv_fmac_f32 v{5+2*k}, v{20+j}, v29")
        A(f"v_fmac_f32 v{12+2*k}, v{24+j}, v28\nv_fmac_f32 v{13+2*k}, v{24+j}, v29")
A(f"s_mul_i32 s15, s5, 3584\ns_add_u32 s15, s15, 0x{WS_FP:x}")
A("s_branch L_tail")

A("L_cmb:")
A(f"s_sub_u32 s5, s2, {256+NFFN}\ns_lshr_b32 s3, s5, 2\ns_and_b32 s4, s5, 3")
WO = 64
A("s_lshl_b32 s9, s5, 3\ns_add_u32 s9, s9, s6\ns_mul_i32 s9, s9, 7168")
for i in range(8):
    if i == 4: A("s_add_u32 s9, s9, 3584")
    A(f"buffer_load_dwordx4 v[{WO+4*i}:{WO+4*i+3}], v31, {srd(SWO)}, s9 offen offset:{896*(i%4)}")
A("s_cmp_eq_u32 s6, 0\ns_cbranch_scc0 L_cmb_w")
A("s_lshl_b32 s9, s3, 2\ns_add_u32 s9, s9, 128\nv_mov_b32 v28, s9")
A("L_cpoll:")
A(f"buffer_load_dword v29, v28, {srd(SDBG)}, 0 offen sc1")
A("s_waitcnt vmcnt(0)\nv_readfirstlane_b32 s9, v29\ns_nop 3\ns_cmp_lt_u32 s9, 16\ns_cbranch_scc1 L_cpoll")
A("L_cmb_w:")
A("s_barrier")
stamp(1)
A("""v_and_b32 v4, 7, v1
v_bfe_u32 v5, v1, 3, 1
v_lshlrev_b32 v6, 17, v5
v_lshl_add_u32 v6, v4, 2, v6
v_lshlrev_b32 v7, 10, v5""")
A(f"s_lshl_b32 s9, s3, 13\ns_lshl_b32 s10, s4, 8\ns_add_u32 s9, s9, s10\ns_lshl_b32 s10, s6, 5\ns_add_u32 s9, s9, s10\ns_add_u32 s9, s9, 0x{WS_PO:x}")
for s in range(8):
    if s == 4: A("s_add_u32 s9, s9, 4096")
    A(f"buffer_load_dword v{128+s}, v6, {srd(SWS)}, s9 offen offset:{1024*(s%4)} sc1")
A(f"s_lshl_b32 s9, s3, 6\ns_add_u32 s9, s9, 0x{WS_ML:x}")
for i in range(4): A(f"buffer_load_dwordx4 v[{136+4*i}:{139+4*i}], v7, {srd(SWS)}, s9 offen offset:{16*i} sc1")
A("s_waitcnt vmcnt(0)")
m0 = 136
A(f"v_max3_f32 v10, v{m0}, v{m0+2}, v{m0+4}\nv_max3_f32 v10, v10, v{m0+6}, v{m0+8}\nv_max3_f32 v10, v10, v{m0+10}, v{m0+12}\nv_max_f32 v10, v10, v{m0+14}")
A("v_mov_b32 v11, 0\nv_mov_b32 v12, 0")
for s in range(8):
    A(f"v_sub_f32 v13, v{m0+2*s}, v10\nv_mul_f32 v13, s13, v13\nv_exp_f32 v13, v13\ns_nop 0")
    A(f"v_fmac_f32 v11, v13, v{m0+2*s+1}\nv_fmac_f32 v12, v13, v{128+s}")
A("v_rcp_f32 v13, v11\ns_nop 0\nv_mul_f32 v14, v12, v13\nv_fma_f32 v15, -v14, v11, v12\nv_fma_f32 v14, v15, v13, v14")
rbf(14, 14)
A("s_nop 0")
for i in range(16): A(f"v_readlane_b32 s{16+i}, v14, {i}")
for k in range(16): A(f"v_mov_b32 v{4+k}, 0")
for i in range(8):
    for k in range(4):
        w = WO + 4*i + k
        A(f"v_lshlrev_b32 v28, 16, v{w}\nv_and_b32 v29, s14, v{w}")
        A(f"v_fmac_f32 v{4+2*k}, s{16+i}, v28\nv_fmac_f32 v{5+2*k}, s{16+i}, v29")
        A(f"v_fmac_f32 v{12+2*k}, s{24+i}, v28\nv_fmac_f32 v{13+2*k}, s{24+i}, v29")
A(f"s_mul_i32 s15, s5, 3584\ns_add_u32 s15, s15, 0x{WS_YC:x}")
A("L_tail:")
stamp(2)
publish_tail()
A("s_waitcnt vmcnt(0)\ns_barrier")
stamp(3)
A("s_cmp_eq_u32 s6, 0\ns_cbranch_scc0 L_arr")
A("s_mov_b64 exec, 1\nv_mov_b32 v4, 1\nv_mov_b32 v5, 0")
A(f"buffer_atomic_add v4, v5, {srd(SDBG)}, 0 offen sc0")
A("s_waitcnt vmcnt(0)")
A(f"ds_write_b32 v5, v4 offset:{TICK}")
A("s_mov_b64 exec, -1")
A("L_arr:")
A("s_waitcnt lgkmcnt(0)\ns_barrier")
A(f"v_mov_b32 v5, 0\nds_read_b32 v4, v5 offset:{TICK}\ns_waitcnt lgkmcnt(0)")
stamp(4)
A("v_readfirstlane_b32 s9, v4")
A(f"s_nop 3\ns_cmp_lt_u32 s9, {NARR-NFIN}\ns_cbranch_scc1 L_fin_end")
A(f"s_sub_u32 s9, s9, {NARR-NFIN}\ns_and_b32 s4, s9, 1\ns_lshr_b32 s5, s9, 1")
A("s_cmp_eq_u32 s6, 0\ns_cbranch_scc0 L_fin_w")
A("L_spin:")
A(f"buffer_load_dword v4, v5, {srd(SDBG)}, 0 offen sc1")
A(f"s_waitcnt vmcnt(0)\nv_readfirstlane_b32 s9, v4\ns_nop 3\ns_cmp_lt_u32 s9, {NARR}\ns_cbranch_scc1 L_spin")
A("L_fin_w:")
A("s_barrier")
stamp(5)
A("v_lshlrev_b32 v6, 2, v1\ns_lshl_b32 s10, s5, 8\nv_add_u32 v6, s10, v6")
A(f"s_mul_i32 s10, s6, {8*3584}\ns_mul_i32 s15, s4, 1792\ns_add_u32 s10, s10, s15\ns_add_u32 s10, s10, 0x{WS_YC:x}")
for i in range(8):
    A(f"buffer_load_dword v{64+i}, v6, {srd(SWS)}, s10 offen sc1")
    A("s_add_u32 s10, s10, 3584")
A(f"s_mul_i32 s10, s6, {7*3584}\ns_add_u32 s10, s10, s15\ns_add_u32 s10, s10, 0x{WS_FP:x}")
for i in range(7):
    A(f"buffer_load_dword v{80+i}, v6, {srd(SWS)}, s10 offen sc1")
    A("s_add_u32 s10, s10, 3584")
A("v_lshrrev_b32 v7, 1, v6\ns_mul_i32 s10, s4, 896")
A(f"buffer_load_ushort v90, v7, {srd(SX)}, s10 offen")
A("s_waitcnt vmcnt(0)")
A("v_add_f32 v8, v64, v65")
for i in range(2, 8): A(f"v_add_f32 v8, v8, v{64+i}")
A("v_add_f32 v9, v80, v81")
for i in range(2, 7): A(f"v_add_f32 v9, v9, v{80+i}")
A("s_lshl_b32 s9, s6, 8\nv_lshlrev_b32 v10, 2, v1\nv_add_u32 v10, s9, v10")
A(f"ds_write_b32 v10, v8 offset:{PL}\nds_write_b32 v10, v9 offset:{PL+2048}")
A("s_waitcnt lgkmcnt(0)\ns_barrier")
A("s_cmp_eq_u32 s6, 0\ns_cbranch_scc0 L_fin_end")
A("v_lshlrev_b32 v10, 2, v1")
for g in range(8): A(f"ds_read_b32 v{12+g}, v10 offset:{PL+256*g}\nds_read_b32 v{20+g}, v10 offset:{PL+2048+256*g}")
A("s_waitcnt lgkmcnt(0)")
for g in range(1, 8): A(f"v_add_f32 v12, v12, v{12+g}\nv_add_f32 v20, v20, v{20+g}")
rbf(12, 12); rbf(20, 20)
A("v_lshlrev_b32 v90, 16, v90\nv_add_f32 v12, v90, v12")
rbf(12, 12)
A("v_add_f32 v12, v12, v20\nv_cvt_pk_bf16_f32 v12, v12, v12")
A("s_mul_i32 s10, s4, 896")
A(f"buffer_store_short v12, v7, {srd(SOUT)}, s10 offen")
stamp(6)
A("L_fin_end:")
if DIAG:
    A("s_mov_b64 exec, 1")
    for i in range(12): A(f"v_mov_b32 v{4+i}, s{88+i}")
    A(f"v_mov_b32 v20, 0\ns_lshl_b32 s9, s2, 3\ns_add_u32 s9, s9, s6\ns_lshl_b32 s9, s9, 6\ns_add_u32 s9, s9, 0x{WS_DG:x}")
    for i in range(3): A(f"buffer_store_dwordx4 v[{4+4*i}:{7+4*i}], v20, {srd(SWS)}, s9 offen offset:{16*i}")
A("L_end:\ns_endpgm")
A(f'''.section .rodata,"a"
.p2align 6
.amdhsa_kernel {KN}
  .amdhsa_next_free_vgpr 256
  .amdhsa_next_free_sgpr 102
  .amdhsa_accum_offset 256
  .amdhsa_group_segment_fixed_size 0
  .amdhsa_kernarg_size 96
  .amdhsa_user_sgpr_count 2
  .amdhsa_user_sgpr_kernarg_segment_ptr 1
  .amdhsa_system_sgpr_workgroup_id_x 1
.end_amdhsa_kernel''')
print("\n".join(out))
```

```python
import sys, struct

KN = "parallel_sum__mha_block_cached__swiglu_ffn__decode_kernel"
out = []
ARGS = sys.argv[1:]
DIAG = "diag" in ARGS
TB = "tb" in ARGS
NB = 6
NBP = 4
PACE = 0
SLP = 0
QNT = " nt" if "qnt" in ARGS else ""
for a in ARGS:
    if a.startswith("nb="): NB = int(a[3:])
    if a.startswith("nbp="): NBP = int(a[4:])
    if a.startswith("pace="): PACE = int(a[5:])
    if a.startswith("slp="): SLP = int(a[4:])
def A(s):
    for line in s.split("\n"):
        out.append(line)
def stamp(i):
    if not DIAG: return
    A("s_memrealtime s[100:101]\ns_waitcnt lgkmcnt(0)")
    A(f"s_mov_b32 s{88+i}, s100")

def f32bits(x):
    return struct.unpack("<I", struct.pack("<f", x))[0]

class VM:
    def __init__(self): self.q = []
    def issue(self, tag): self.q.append(tag)
    def wait(self, tag):
        idxs = [i for i, t in enumerate(self.q) if t == tag]
        if not idxs: return
        idx = max(idxs)
        n = len(self.q) - 1 - idx
        A(f"s_waitcnt vmcnt({min(n,63)})")
        self.q = self.q[idx+1:] if n <= 63 else self.q[len(self.q)-63:]
vm = VM()

XNF = 0
XNB = 3584
QB = 5376
TICK = 5888
MLS = 5952
GUS = 6016
HS = 6528
PL = 8192
OP = 16384
GP = 16384
DP = 49152
LDS_BYTES = 49152 + 28672

WS_QS = 0x00000
WS_PO = 0x80000
WS_ML = 0xC0000
WS_YC = 0xC1000
WS_FP = 0xF9000
WS_DG = 0x140000
WS_BYTES = 0x200000
NFFN = 56
NCMB = 64
NFIN = 14
NARR = NFFN + NCMB
SPIN_LIMIT = 20000
for a in ARGS:
    if a.startswith("spin="): SPIN_LIMIT = int(a[5:])

SX, SK, SV, SWQ, SWO, SGU, SWD, SOUT, SDBG, SWS = 40, 44, 48, 52, 56, 60, 64, 68, 72, 76
def srd(r): return f"s[{r}:{r+3}]"

B = [64, 96, 128, 160, 192, 224][:NB]
Q = 32

A(f"; @launch grid=({256+NARR},1,1) block=(512,1,1) lds={LDS_BYTES}")
A('.amdgcn_target "amdgcn-amd-amdhsa--gfx950"')
A(".text")
A(f".globl {KN}\n.p2align 8\n.type {KN},@function\n{KN}:")
A(f"s_cmp_ge_u32 s2, {256+NARR}\ns_cbranch_scc1 L_end")
A("s_load_dwordx16 s[16:31], s[0:1], 0")
A("s_load_dwordx8 s[32:39], s[0:1], 64")
A("v_and_b32 v1, 63, v0")
A("v_lshrrev_b32 v4, 6, v0")
A("s_nop 0")
A("v_readfirstlane_b32 s6, v4")
A("""s_and_b32 s9, s2, 7
s_lshr_b32 s10, s2, 3
s_and_b32 s3, s10, 1
s_lshl_b32 s3, s3, 3
s_add_u32 s3, s3, s9
s_lshr_b32 s4, s10, 1
s_and_b32 s4, s4, 1
s_lshr_b32 s5, s10, 2
s_lshl_b32 s7, s4, 4
s_add_u32 s7, s7, s3
s_lshl_b32 s8, s7, 22
s_lshl_b32 s9, s5, 19
s_add_u32 s8, s8, s9
s_lshl_b32 s9, s6, 13
s_add_u32 s8, s8, s9""")
A("s_mov_b32 s11, 0x05040100\ns_mov_b32 s12, 0x07060302")
A(f"s_mov_b32 s13, 0x{f32bits(0.0625*1.4426950408889634):08x}")
A("s_mov_b32 s14, 0xffff0000")
A("""v_and_b32 v2, 15, v1
v_lshlrev_b32 v2, 9, v2
v_lshrrev_b32 v4, 4, v1
v_lshl_or_b32 v2, v4, 4, v2
v_lshlrev_b32 v3, 4, v1
v_mov_b32 v5, 0x7f000000
v_cmp_gt_u32 vcc, 56, v1
s_nop 1
v_cndmask_b32 v31, v5, v3, vcc""")
A("s_waitcnt lgkmcnt(0)")
if DIAG:
    for i in range(12): A(f"s_mov_b32 s{88+i}, 0")
stamp(0)
def mk(r, lo, nbytes):
    A(f"s_mov_b32 s{r}, s{lo}\ns_mov_b32 s{r+1}, s{lo+1}\ns_mov_b32 s{r+2}, 0x{nbytes:x}\ns_mov_b32 s{r+3}, 0x20000")
mk(SK, 18, 1<<27); mk(SX, 16, 1792); mk(SWQ, 22, 448*4096*2)
mk(SV, 20, 1<<27); mk(SWO, 24, 4096*448*2)
mk(SWD, 32, 1792*448*2); mk(SOUT, 34, 1792); mk(SDBG, 36, 256); mk(SWS, 38, WS_BYTES)
A("s_cmp_lt_u32 s6, 4")
A(f"s_cselect_b32 s{SGU}, s28, s30\ns_cselect_b32 s{SGU+1}, s29, s31\ns_mov_b32 s{SGU+2}, 0x{448*1792*2:x}\ns_mov_b32 s{SGU+3}, 0x20000")
A(f"s_cmp_ge_u32 s2, {256+NFFN}\ns_cbranch_scc1 L_cmb")
A("s_cmp_ge_u32 s2, 256\ns_cbranch_scc1 L_ffn")

def tbuf(n): return B[(n + 3) % NB]
def issue_tile(n, track=True):
    b = tbuf(n)
    A(f"s_add_u32 s9, s8, {(n%8)*65536}\ns_add_u32 s10, s9, 4096")
    for j in range(8):
        A(f"buffer_load_dwordx4 v[{b+4*j}:{b+4*j+3}], v3, {srd(SK if n < 8 else SV)}, {'s9' if j<4 else 's10'} offen offset:{1024*(j%4)} nt")
        if track: vm.issue(f"t{n}")

def row_reduce(op, v, tmp):
    for r in (8, 4, 2, 1):
        A("s_nop 1")
        A(f"{op}_dpp v{tmp}, v{v}, v{v} row_ror:{r} row_mask:0xf bank_mask:0xf")
        A(f"v_mov_b32 v{v}, v{tmp}")
def wave_sum(v, tmp):
    row_reduce("v_add_f32", v, tmp)
    A("s_nop 0")
    for i in range(4): A(f"v_readlane_b32 s{80+i}, v{v}, {16*i}")
    A("s_nop 1")
    A(f"v_mov_b32 v{v}, s80\nv_add_f32 v{v}, s81, v{v}\nv_add_f32 v{v}, s82, v{v}\nv_add_f32 v{v}, s83, v{v}")
def div448(v, tmp1, tmp2):
    A(f"v_mul_f32 v{tmp1}, 0x{f32bits(1.0/448):08x}, v{v}")
    A(f"v_mov_b32 v{tmp2}, 0x{f32bits(448.0):08x}")
    A(f"v_fma_f32 v{tmp2}, -v{tmp1}, v{tmp2}, v{v}")
    A(f"v_mul_f32 v{tmp2}, 0x{f32bits(1.0/448):08x}, v{tmp2}")
    A(f"v_add_f32 v{v}, v{tmp1}, v{tmp2}")
def rbf(vd, vs):
    A(f"v_cvt_pk_bf16_f32 v{vd}, 0, v{vs}")
def layernorm(r):
    E = 16
    for k in range(4):
        A(f"v_lshlrev_b32 v{E+2*k}, 16, v{r+k}\nv_and_b32 v{E+2*k+1}, s14, v{r+k}")
    A(f"v_add_f32 v24, v{E}, v{E+1}")
    for k in range(2, 8): A(f"v_add_f32 v24, v24, v{E+k}")
    wave_sum(24, 25)
    div448(24, 25, 26)
    A("v_mov_b32 v27, 0")
    for k in range(8):
        A(f"v_sub_f32 v25, v{E+k}, v24\nv_fmac_f32 v27, v25, v25")
    A("v_cmp_gt_u32 vcc, 56, v1\ns_nop 1\nv_cndmask_b32 v27, 0, v27, vcc")
    wave_sum(27, 25)
    div448(27, 25, 26)
    rbf(27, 27)
    rbf(24, 24)
    A(f"v_add_f32 v27, 0x{f32bits(1e-5):08x}, v27")
    rbf(27, 27)
    A("v_sqrt_f32 v27, v27\ns_nop 0")
    rbf(27, 27)
    A("v_rcp_f32 v28, v27\ns_nop 0")
    for k in range(8):
        A(f"v_sub_f32 v{E+k}, v{E+k}, v24")
        rbf(E+k, E+k)
        A(f"v_mul_f32 v25, v{E+k}, v28")
        A(f"v_fma_f32 v26, -v25, v27, v{E+k}")
        A(f"v_fma_f32 v{E+k}, v26, v28, v25")
    for k in range(4):
        A(f"v_cvt_pk_bf16_f32 v{r+k}, v{E+2*k}, v{E+2*k+1}")
    for k in range(4):
        A(f"v_lshlrev_b32 v{E+2*k}, 16, v{r+k}\nv_and_b32 v{E+2*k+1}, s14, v{r+k}")

A("s_cmp_eq_u32 s6, 0\ns_cbranch_scc1 L_qagent")
A("s_barrier")
for n in range(NBP):
    if PACE and n >= 1: A(f"s_waitcnt vmcnt({PACE-1})")
    issue_tile(n, track=False)
A("s_branch L_qjoin")
A("L_qagent:")
W = 64
XV = 128
A(f"buffer_load_dwordx4 v[8:11], v31, {srd(SX)}, 0 offen")
A(f"buffer_load_dwordx4 v[12:15], v31, {srd(SX)}, 0 offen offset:896")
A("""v_lshrrev_b32 v5, 1, v1
v_lshlrev_b32 v126, 13, v5
v_and_b32 v6, 1, v1
v_lshl_add_u32 v126, v6, 4, v126
v_lshlrev_b32 v127, 2, v5
s_lshl_b32 s15, s4, 3
s_add_u32 s15, s15, s5""")
A("s_mov_b32 s84, s15\ns_add_u32 s85, s15, 1\ns_mov_b32 s86, 0")
A("s_memrealtime s[16:17]\ns_lshl_b32 s9, s3, 2\ns_add_u32 s9, s9, 64\nv_mov_b32 v125, s9\ns_waitcnt lgkmcnt(0)\ns_or_b32 s16, s16, 1")
A("v_mov_b32 v122, s16\nv_mov_b32 v123, 0\ns_mov_b64 exec, 1")
A(f"buffer_atomic_cmpswap v[122:123], v125, {srd(SDBG)}, 0 offen sc0")
A("s_mov_b64 exec, -1")
def wq_loads():
    A("s_lshl_b32 s9, s84, 5\ns_lshl_b32 s10, s3, 9\ns_add_u32 s9, s9, s10")
    for j in range(14):
        A(f"buffer_load_dwordx4 v[{W+4*j}:{W+4*j+3}], v126, {srd(SWQ)}, s9 offen")
        if j < 13: A("s_add_u32 s9, s9, 262144")
wq_loads()
for n in range(3): issue_tile(n, track=False)
A("s_barrier")
stamp(7)
A("s_waitcnt vmcnt(39)")
stamp(8)
for bb in range(2):
    layernorm(8 + 4*bb)
    A("s_mov_b32 exec_hi, 0x00ffffff")
    A("v_lshlrev_b32 v25, 5, v1")
    A(f"ds_write_b128 v25, v[16:19] offset:{XNF+1792*bb}")
    A(f"ds_write_b128 v25, v[20:23] offset:{XNF+1792*bb+16}")
    A("s_mov_b32 exec_hi, -1")
A("s_waitcnt lgkmcnt(0)")
for bb in range(2):
    for j in range(14): A(f"ds_read_b32 v{XV+14*bb+j}, v127 offset:{XNF+1792*bb+128*j}")
stamp(1)
A("s_branch L_share_body")
A("L_share_loop:")
wq_loads()
A("s_waitcnt vmcnt(0)")
A("L_share_body:")
for k in range(16): A(f"v_mov_b32 v{4+k}, 0")
A("s_waitcnt lgkmcnt(0)")
for j in range(14):
    A(f"s_waitcnt vmcnt({13-j+24})")
    for k in range(4):
        w = W + 4*j + k
        A(f"v_lshlrev_b32 v28, 16, v{w}\nv_and_b32 v29, s14, v{w}")
        A(f"v_fmac_f32 v{4+2*k}, v{XV+j}, v28\nv_fmac_f32 v{5+2*k}, v{XV+j}, v29")
        A(f"v_fmac_f32 v{12+2*k}, v{XV+14+j}, v28\nv_fmac_f32 v{13+2*k}, v{XV+14+j}, v29")
stamp(9)
for r in (2, 4, 8):
    A("s_nop 1")
    for k in range(16): A(f"v_add_f32_dpp v{32+k}, v{4+k}, v{4+k} row_ror:{r} row_mask:0xf bank_mask:0xf")
    for k in range(16): A(f"v_mov_b32 v{4+k}, v{32+k}")
for sw in ("v_permlane16_swap_b32", "v_permlane32_swap_b32"):
    for k in range(16): A(f"v_mov_b32 v{32+k}, v{4+k}")
    A("s_nop 1")
    for k in range(16): A(f"{sw} v{4+k}, v{32+k}")
    A("s_nop 1")
    for k in range(16): A(f"v_add_f32 v{4+k}, v{4+k}, v{32+k}")
for k in range(8): A(f"v_cvt_pk_bf16_f32 v{32+k}, v{4+2*k}, v{5+2*k}")
A("s_cmp_eq_u32 s86, 0\ns_cbranch_scc0 L_q_fallback")
A("v_readfirstlane_b32 s9, v122\ns_nop 3\ns_cmp_eq_u32 s9, 0\ns_cselect_b32 s16, s16, s9")
A("v_bfe_u32 v28, v1, 1, 1\nv_cmp_eq_u32 vcc, 1, v28\ns_nop 1")
A("v_cndmask_b32 v40, v32, v34, vcc\nv_cndmask_b32 v41, v33, v35, vcc\nv_cndmask_b32 v42, v36, v38, vcc\nv_cndmask_b32 v43, v37, v39, vcc")
A("v_bfe_u32 v29, v1, 2, 1\nv_cmp_eq_u32 vcc, 1, v29\ns_nop 1")
A("v_cndmask_b32 v44, v40, v42, vcc\nv_cndmask_b32 v46, v41, v43, vcc\nv_mov_b32 v45, s16\nv_mov_b32 v47, s16")
A("v_lshlrev_b32 v29, 10, v29\nv_lshl_add_u32 v29, v28, 4, v29\nv_and_b32 v28, 1, v1\nv_lshl_add_u32 v29, v28, 5, v29")
A(f"s_lshl_b32 s9, s3, 11\ns_lshl_b32 s10, s15, 6\ns_add_u32 s9, s9, s10\ns_add_u32 s9, s9, 0x{WS_QS:x}")
A("s_mov_b64 exec, 0xff")
A(f"buffer_store_dwordx4 v[44:47], v29, {srd(SWS)}, s9 offen sc1")
A("s_mov_b64 exec, -1")
stamp(2)
A(f"s_lshl_b32 s9, s3, 11\ns_lshl_b32 s10, s4, 10\ns_add_u32 s9, s9, s10\ns_add_u32 s9, s9, 0x{WS_QS:x}")
A("s_mov_b32 s87, 0")
A("L_qpoll:")
A(f"buffer_load_dwordx4 v[32:35], v3, {srd(SWS)}, s9 offen sc1")
A("s_waitcnt vmcnt(0)")
A("v_cmp_eq_u32 vcc, s16, v33\nv_cmp_eq_u32 s[80:81], s16, v35\ns_nop 3\ns_and_b64 vcc, vcc, s[80:81]\ns_cmp_eq_u64 vcc, -1\ns_cbranch_scc1 L_qgot")
if SLP: A(f"s_sleep {SLP}")
A(f"s_add_u32 s87, s87, 1\ns_cmp_lt_u32 s87, {SPIN_LIMIT}\ns_cbranch_scc1 L_qpoll")
A("s_mov_b32 s84, 0\ns_mov_b32 s85, 16\ns_mov_b32 s86, 1\ns_branch L_share_loop")
A("L_qgot:")
stamp(10)
A("v_mov_b32 v33, v34\nv_lshlrev_b32 v28, 3, v1")
A(f"ds_write_b64 v28, v[32:33] offset:{QB}")
A("s_branch L_qjoin")
A("L_q_fallback:")
A("s_cmp_eq_u32 s4, 0\ns_cbranch_scc1 L_q_fb0")
for k in range(4): A(f"v_mov_b32 v{32+k}, v{36+k}")
A("L_q_fb0:")
A("v_and_b32 v28, 1, v1\nv_lshlrev_b32 v28, 4, v28\ns_lshl_b32 s9, s84, 5\nv_add_u32 v28, s9, v28")
A("s_mov_b64 exec, 3")
A(f"ds_write_b128 v28, v[32:35] offset:{QB}")
A("s_mov_b64 exec, -1")
A("s_add_u32 s84, s84, 1\ns_cmp_lt_u32 s84, s85\ns_cbranch_scc1 L_share_loop")
A("L_qjoin:")
stamp(11)
A("s_waitcnt lgkmcnt(0)\ns_barrier")
A("v_and_b32 v12, 31, v1\nv_lshlrev_b32 v12, 4, v12")
A(f"ds_read_b128 v[24:27], v12 offset:{QB}")
A("s_cmp_eq_u32 s6, 0\ns_cbranch_scc0 L_q_b")
for n in range(3, NBP): issue_tile(n, track=False)
A("L_q_b:")
vm.q = []
for n in range(max(NBP, 3)):
    for j in range(8): vm.issue(f"t{n}")
for n in range(max(NBP, 3), NB): issue_tile(n)
A("s_waitcnt lgkmcnt(0)")
stamp(3)

S = 32
for t in range(8):
    b = tbuf(t)
    if TB: A("s_barrier")
    vm.wait(f"t{t}")
    for k in range(4):
        for j in range(8):
            c = "0" if k == 0 else f"v{4+j}"
            A(f"v_dot2_f32_bf16 v{4+j}, v{b+4*j+k}, v{24+k}, {c}")
    issue_tile(t + NB)
    A("s_nop 1")
    for i in range(4): A(f"v_permlane16_swap_b32 v{4+2*i}, v{5+2*i}")
    A("s_nop 0")
    for i in range(4): A(f"v_add_f32 v{12+i}, v{4+2*i}, v{5+2*i}")
    for r in (8, 4, 2, 1):
        A("s_nop 0")
        for i in range(4): A(f"v_add_f32_dpp v{12+i}, v{12+i}, v{12+i} row_ror:{r} row_mask:0xf bank_mask:0xf")
    for i in range(4): rbf(S + 4*t + i, 12 + i)
stamp(4)
A(f"v_max3_f32 v30, v{S}, v{S+1}, v{S+2}")
for i in range(3, 31, 2): A(f"v_max3_f32 v30, v30, v{S+i}, v{S+i+1}")
A(f"v_max_f32 v30, v30, v{S+31}")
def cross_rows(op, v, tmp):
    for sw in ("v_permlane16_swap_b32", "v_permlane32_swap_b32"):
        A(f"v_mov_b32 v{tmp}, v{v}\ns_nop 1\n{sw} v{v}, v{tmp}\ns_nop 0\n{op} v{v}, v{v}, v{tmp}")
cross_rows("v_max_f32", 30, 12)
for i in range(32):
    A(f"v_sub_f32 v12, v{S+i}, v30\nv_mul_f32 v12, s13, v12\nv_exp_f32 v{S+i}, v12")
A("s_nop 0")
A(f"v_add_f32 v31, v{S}, v{S+1}")
for i in range(2, 32): A(f"v_add_f32 v31, v31, v{S+i}")
cross_rows("v_add_f32", 31, 12)
A("""v_lshrrev_b32 v12, 5, v1
v_lshlrev_b32 v12, 5, v12
v_bfe_u32 v13, v1, 4, 1
v_lshl_add_u32 v12, v13, 2, v12
s_lshl_b32 s15, s6, 9
v_add_u32 v12, s15, v12
s_mov_b32 exec_lo, 0x00010001
s_mov_b32 exec_hi, 0x00010001""")
for t in range(8):
    for i in range(4): A(f"ds_write_b32 v12, v{S+4*t+i} offset:{PL+64*t+8*i}")
A("s_mov_b64 exec, -1")
A("v_lshrrev_b32 v29, 5, v1\nv_lshlrev_b32 v29, 5, v29\nv_add_u32 v29, s15, v29")
for k in range(8): A(f"v_mov_b32 v{4+k}, 0")
PV = [12, 20]
A("s_waitcnt lgkmcnt(0)")
A(f"ds_read_b128 v[12:15], v29 offset:{PL}\nds_read_b128 v[16:19], v29 offset:{PL+16}")
for t in range(8):
    n = 8 + t
    b = tbuf(n)
    pv = PV[t & 1]
    A("s_waitcnt lgkmcnt(0)")
    if t < 7:
        pn = PV[(t+1) & 1]
        A(f"ds_read_b128 v[{pn}:{pn+3}], v29 offset:{PL+64*(t+1)}\nds_read_b128 v[{pn+4}:{pn+7}], v29 offset:{PL+64*(t+1)+16}")
    if TB: A("s_barrier")
    vm.wait(f"t{n}")
    for j in range(8):
        for k in range(4):
            w = b + 4*j + k
            A(f"v_lshlrev_b32 v28, 16, v{w}\nv_fmac_f32 v{4+2*k}, v{pv+j}, v28")
            A(f"v_and_b32 v28, s14, v{w}\nv_fmac_f32 v{5+2*k}, v{pv+j}, v28")
    if n + NB < 16: issue_tile(n + NB)
stamp(5)
A("s_lshl_b32 s9, s6, 11\nv_lshlrev_b32 v12, 5, v1\nv_add_u32 v12, s9, v12")
A(f"ds_write_b128 v12, v[4:7] offset:{OP}\nds_write_b128 v12, v[8:11] offset:{OP+16}")
A("s_lshl_b32 s9, s6, 3\nv_mov_b32 v12, s9\ns_mov_b64 exec, 1")
A(f"ds_write_b64 v12, v[30:31] offset:{MLS}")
A("s_mov_b64 exec, -1")
A("s_waitcnt lgkmcnt(0)\ns_barrier")
A("s_cmp_lt_u32 s6, 4\ns_cbranch_scc0 L_pub_a")
CB = 64
A("v_mov_b32 v12, 0")
for i in range(4): A(f"ds_read_b128 v[{CB+4*i}:{CB+4*i+3}], v12 offset:{MLS+16*i}")
A("v_lshlrev_b32 v12, 2, v0")
for w in range(8):
    A(f"ds_read_b32 v{CB+16+2*w}, v12 offset:{OP+2048*w}\nds_read_b32 v{CB+17+2*w}, v12 offset:{OP+2048*w+1024}")
A("s_waitcnt lgkmcnt(0)")
A(f"v_max3_f32 v30, v{CB}, v{CB+2}, v{CB+4}\nv_max3_f32 v30, v30, v{CB+6}, v{CB+8}\nv_max3_f32 v30, v30, v{CB+10}, v{CB+12}\nv_max_f32 v30, v30, v{CB+14}")
A("v_mov_b32 v31, 0\nv_mov_b32 v13, 0")
for w in range(8):
    A(f"v_sub_f32 v14, v{CB+2*w}, v30\nv_mul_f32 v14, s13, v14\nv_exp_f32 v14, v14")
    A(f"v_add_f32 v15, v{CB+16+2*w}, v{CB+17+2*w}")
    A(f"v_fmac_f32 v31, v14, v{CB+2*w+1}\nv_fmac_f32 v13, v14, v15")
A("s_lshl_b32 s15, s7, 3\ns_add_u32 s15, s15, s5")
A(f"s_lshl_b32 s9, s15, 10\ns_add_u32 s9, s9, 0x{WS_PO:x}")
A(f"buffer_store_dword v13, v12, {srd(SWS)}, s9 offen sc1")
A("s_cmp_eq_u32 s6, 0\ns_cbranch_scc0 L_pub_a")
A(f"s_lshl_b32 s9, s15, 3\ns_add_u32 s9, s9, 0x{WS_ML:x}\ns_mov_b64 exec, 1")
A(f"buffer_store_dwordx2 v[30:31], v12, {srd(SWS)}, s9 offen sc1")
A("s_mov_b64 exec, -1")
A("L_pub_a:")
A("s_waitcnt vmcnt(0)\ns_barrier")
stamp(6)
A("s_cmp_eq_u32 s6, 0\ns_cbranch_scc0 L_fin_end")
A("s_lshl_b32 s9, s3, 2\ns_add_u32 s9, s9, 128\nv_mov_b32 v28, s9\nv_mov_b32 v29, 1")
A("s_mov_b64 exec, 1")
A(f"buffer_atomic_add v29, v28, {srd(SDBG)}, 0 offen")
A("s_mov_b64 exec, -1")
A("s_branch L_fin_end")

def publish_tail():
    A(f"s_mul_i32 s9, s6, 3584\ns_add_u32 s9, s9, {DP}\nv_lshlrev_b32 v28, 5, v1\nv_add_u32 v28, s9, v28")
    A("s_mov_b32 exec_hi, 0x00ffffff")
    A(f"ds_write_b128 v28, v[4:7]\nds_write_b128 v28, v[8:11] offset:16")
    A(f"ds_write_b128 v28, v[12:15] offset:1792\nds_write_b128 v28, v[16:19] offset:{1792+16}")
    A("s_mov_b32 exec_hi, -1")
    A("s_waitcnt lgkmcnt(0)\ns_barrier")
    A("v_cmp_gt_u32 vcc, 224, v0\ns_and_saveexec_b64 s[80:81], vcc\ns_cbranch_execz L_pt_c")
    A(f"v_lshlrev_b32 v28, 4, v0\nv_add_u32 v29, {DP}, v28")
    for w in range(8):
        A(f"ds_read_b128 v[{64+4*w}:{67+4*w}], v29 offset:{3584*w}")
    A("s_waitcnt lgkmcnt(0)")
    for w in range(1, 8):
        for k in range(4): A(f"v_add_f32 v{64+k}, v{64+k}, v{64+4*w+k}")
    A(f"buffer_store_dwordx4 v[64:67], v28, {srd(SWS)}, s15 offen sc1")
    A("L_pt_c:")
    A("s_mov_b64 exec, -1")

A("L_ffn:")
A("s_sub_u32 s5, s2, 256")
FG, FD = 64, 96
A(f"buffer_load_dwordx4 v[8:11], v31, {srd(SX)}, 0 offen")
A(f"buffer_load_dwordx4 v[12:15], v31, {srd(SX)}, 0 offen offset:896")
A("""v_lshrrev_b32 v6, 2, v1
s_movk_i32 s9, 3584
v_mul_lo_u32 v6, v6, s9
v_and_b32 v7, 3, v1
v_lshl_add_u32 v6, v7, 4, v6
s_and_b32 s9, s6, 3
s_mul_i32 s9, s9, 401408
s_lshl_b32 s10, s5, 6
s_add_u32 s9, s9, s10""")
for j in range(7):
    A(f"buffer_load_dwordx4 v[{FG+4*j}:{FG+4*j+3}], v6, {srd(SGU)}, s9 offen")
    if j < 6: A("s_add_u32 s9, s9, 57344")
A("s_lshl_b32 s9, s5, 3\ns_add_u32 s9, s9, s6\ns_mul_i32 s9, s9, 3584")
for j in range(4):
    A(f"buffer_load_dwordx4 v[{FD+4*j}:{FD+4*j+3}], v31, {srd(SWD)}, s9 offen offset:{896*j}")
A("s_waitcnt vmcnt(11)")
for bb in range(2):
    layernorm(8 + 4*bb)
    A("s_mov_b32 exec_hi, 0x00ffffff")
    A("v_lshlrev_b32 v25, 5, v1")
    A(f"ds_write_b128 v25, v[16:19] offset:{XNF+1792*bb}")
    A(f"ds_write_b128 v25, v[20:23] offset:{XNF+1792*bb+16}")
    A("s_mov_b32 exec_hi, -1")
A("""s_and_b32 s9, s6, 3
s_mul_i32 s9, s9, 448
v_lshrrev_b32 v26, 2, v1
v_lshlrev_b32 v26, 2, v26
v_add_u32 v26, s9, v26""")
for k in range(16): A(f"v_mov_b32 v{4+k}, 0")
A("s_waitcnt lgkmcnt(0)")
for j in range(7):
    A(f"ds_read_b32 v{128+2*j}, v26 offset:{XNF+64*j}\nds_read_b32 v{129+2*j}, v26 offset:{XNF+1792+64*j}")
A("s_waitcnt lgkmcnt(0)\ns_waitcnt vmcnt(4)")
for j in range(7):
    for k in range(4):
        w = FG + 4*j + k
        A(f"v_lshlrev_b32 v22, 16, v{w}\nv_and_b32 v23, s14, v{w}")
        A(f"v_fmac_f32 v{4+2*k}, v{128+2*j}, v22\nv_fmac_f32 v{5+2*k}, v{128+2*j}, v23")
        A(f"v_fmac_f32 v{12+2*k}, v{129+2*j}, v22\nv_fmac_f32 v{13+2*k}, v{129+2*j}, v23")
A("""v_lshrrev_b32 v27, 2, v1
v_lshlrev_b32 v27, 8, v27
v_and_b32 v22, 3, v1
v_lshl_add_u32 v27, v22, 5, v27
s_lshl_b32 s9, s6, 12
v_add_u32 v27, s9, v27""")
A(f"ds_write_b128 v27, v[4:7] offset:{GP}\nds_write_b128 v27, v[8:11] offset:{GP+16}")
A(f"ds_write_b128 v27, v[12:15] offset:{GP+128}\nds_write_b128 v27, v[16:19] offset:{GP+144}")
A("s_waitcnt lgkmcnt(0)\ns_barrier")
A("s_cmp_lt_u32 s6, 2\ns_cbranch_scc0 L_ffn_a")
A("s_lshl_b32 s9, s6, 14\nv_lshlrev_b32 v26, 2, v1\nv_add_u32 v26, s9, v26")
for g in range(4):
    for i in range(16):
        A(f"ds_read_b32 v{128+16*g+i}, v26 offset:{GP+4096*g+256*i}")
A("s_waitcnt lgkmcnt(0)")
A("v_add_f32 v4, v128, v129")
for i in range(2, 64): A(f"v_add_f32 v4, v4, v{128+i}")
rbf(4, 4)
A("s_lshl_b32 s9, s6, 8\nv_lshlrev_b32 v26, 2, v1\nv_add_u32 v26, s9, v26")
A(f"ds_write_b32 v26, v4 offset:{GUS}")
A("L_ffn_a:")
A("s_waitcnt lgkmcnt(0)\ns_barrier")
A("s_cmp_eq_u32 s6, 0\ns_cbranch_scc0 L_ffn_b")
A("v_lshlrev_b32 v26, 2, v1")
A(f"ds_read_b32 v4, v26 offset:{GUS}\nds_read_b32 v5, v26 offset:{GUS+256}")
A("s_waitcnt lgkmcnt(0)")
A(f"v_mul_f32 v6, 0x{f32bits(-1.4426950408889634):08x}, v4")
A("v_exp_f32 v6, v6\ns_nop 0\nv_add_f32 v6, 1.0, v6\nv_rcp_f32 v7, v6\ns_nop 0")
A("v_mul_f32 v8, v4, v7\nv_fma_f32 v9, -v8, v6, v4\nv_fma_f32 v8, v9, v7, v8")
rbf(8, 8)
A("v_mul_f32 v8, v8, v5")
rbf(8, 8)
A(f"ds_write_b32 v26, v8 offset:{HS}")
A("L_ffn_b:")
A("s_waitcnt lgkmcnt(0)\ns_barrier")
A("s_lshl_b32 s9, s6, 4\nv_mov_b32 v26, s9")
A(f"ds_read_b128 v[20:23], v26 offset:{HS}\nds_read_b128 v[24:27], v26 offset:{HS+128}")
for k in range(16): A(f"v_mov_b32 v{4+k}, 0")
A("s_waitcnt lgkmcnt(0)\ns_waitcnt vmcnt(0)")
for j in range(4):
    for k in range(4):
        w = FD + 4*j + k
        A(f"v_lshlrev_b32 v28, 16, v{w}\nv_and_b32 v29, s14, v{w}")
        A(f"v_fmac_f32 v{4+2*k}, v{20+j}, v28\nv_fmac_f32 v{5+2*k}, v{20+j}, v29")
        A(f"v_fmac_f32 v{12+2*k}, v{24+j}, v28\nv_fmac_f32 v{13+2*k}, v{24+j}, v29")
A(f"s_mul_i32 s15, s5, 3584\ns_add_u32 s15, s15, 0x{WS_FP:x}")
A("s_branch L_tail")

A("L_cmb:")
A(f"s_sub_u32 s5, s2, {256+NFFN}\ns_lshr_b32 s3, s5, 2\ns_and_b32 s4, s5, 3")
WO = 64
A("s_lshl_b32 s9, s5, 3\ns_add_u32 s9, s9, s6\ns_mul_i32 s9, s9, 7168")
for i in range(8):
    if i == 4: A("s_add_u32 s9, s9, 3584")
    A(f"buffer_load_dwordx4 v[{WO+4*i}:{WO+4*i+3}], v31, {srd(SWO)}, s9 offen offset:{896*(i%4)}")
A("s_cmp_eq_u32 s6, 0\ns_cbranch_scc0 L_cmb_w")
A("s_lshl_b32 s9, s3, 2\ns_add_u32 s9, s9, 128\nv_mov_b32 v28, s9")
A("L_cpoll:")
A(f"buffer_load_dword v29, v28, {srd(SDBG)}, 0 offen sc1")
A("s_waitcnt vmcnt(0)\nv_readfirstlane_b32 s9, v29\ns_nop 3\ns_cmp_lt_u32 s9, 16\ns_cbranch_scc1 L_cpoll")
A("L_cmb_w:")
A("s_barrier")
stamp(1)
A("""v_and_b32 v4, 7, v1
v_bfe_u32 v5, v1, 3, 1
v_lshlrev_b32 v6, 17, v5
v_lshl_add_u32 v6, v4, 2, v6
v_lshlrev_b32 v7, 10, v5""")
A(f"s_lshl_b32 s9, s3, 13\ns_lshl_b32 s10, s4, 8\ns_add_u32 s9, s9, s10\ns_lshl_b32 s10, s6, 5\ns_add_u32 s9, s9, s10\ns_add_u32 s9, s9, 0x{WS_PO:x}")
for s in range(8):
    if s == 4: A("s_add_u32 s9, s9, 4096")
    A(f"buffer_load_dword v{128+s}, v6, {srd(SWS)}, s9 offen offset:{1024*(s%4)} sc1")
A(f"s_lshl_b32 s9, s3, 6\ns_add_u32 s9, s9, 0x{WS_ML:x}")
for i in range(4): A(f"buffer_load_dwordx4 v[{136+4*i}:{139+4*i}], v7, {srd(SWS)}, s9 offen offset:{16*i} sc1")
A("s_waitcnt vmcnt(0)")
m0 = 136
A(f"v_max3_f32 v10, v{m0}, v{m0+2}, v{m0+4}\nv_max3_f32 v10, v10, v{m0+6}, v{m0+8}\nv_max3_f32 v10, v10, v{m0+10}, v{m0+12}\nv_max_f32 v10, v10, v{m0+14}")
A("v_mov_b32 v11, 0\nv_mov_b32 v12, 0")
for s in range(8):
    A(f"v_sub_f32 v13, v{m0+2*s}, v10\nv_mul_f32 v13, s13, v13\nv_exp_f32 v13, v13\ns_nop 0")
    A(f"v_fmac_f32 v11, v13, v{m0+2*s+1}\nv_fmac_f32 v12, v13, v{128+s}")
A("v_rcp_f32 v13, v11\ns_nop 0\nv_mul_f32 v14, v12, v13\nv_fma_f32 v15, -v14, v11, v12\nv_fma_f32 v14, v15, v13, v14")
rbf(14, 14)
A("s_nop 0")
for i in range(16): A(f"v_readlane_b32 s{16+i}, v14, {i}")
for k in range(16): A(f"v_mov_b32 v{4+k}, 0")
for i in range(8):
    for k in range(4):
        w = WO + 4*i + k
        A(f"v_lshlrev_b32 v28, 16, v{w}\nv_and_b32 v29, s14, v{w}")
        A(f"v_fmac_f32 v{4+2*k}, s{16+i}, v28\nv_fmac_f32 v{5+2*k}, s{16+i}, v29")
        A(f"v_fmac_f32 v{12+2*k}, s{24+i}, v28\nv_fmac_f32 v{13+2*k}, s{24+i}, v29")
A(f"s_mul_i32 s15, s5, 3584\ns_add_u32 s15, s15, 0x{WS_YC:x}")
A("L_tail:")
stamp(2)
publish_tail()
A("s_waitcnt vmcnt(0)\ns_barrier")
stamp(3)
A("s_cmp_eq_u32 s6, 0\ns_cbranch_scc0 L_arr")
A("s_mov_b64 exec, 1\nv_mov_b32 v4, 1\nv_mov_b32 v5, 0")
A(f"buffer_atomic_add v4, v5, {srd(SDBG)}, 0 offen sc0")
A("s_waitcnt vmcnt(0)")
A(f"ds_write_b32 v5, v4 offset:{TICK}")
A("s_mov_b64 exec, -1")
A("L_arr:")
A("s_waitcnt lgkmcnt(0)\ns_barrier")
A(f"v_mov_b32 v5, 0\nds_read_b32 v4, v5 offset:{TICK}\ns_waitcnt lgkmcnt(0)")
stamp(4)
A("v_readfirstlane_b32 s9, v4")
A(f"s_nop 3\ns_cmp_lt_u32 s9, {NARR-NFIN}\ns_cbranch_scc1 L_fin_end")
A(f"s_sub_u32 s9, s9, {NARR-NFIN}\ns_and_b32 s4, s9, 1\ns_lshr_b32 s5, s9, 1")
A("s_cmp_eq_u32 s6, 0\ns_cbranch_scc0 L_fin_w")
A("L_spin:")
A(f"buffer_load_dword v4, v5, {srd(SDBG)}, 0 offen sc1")
A(f"s_waitcnt vmcnt(0)\nv_readfirstlane_b32 s9, v4\ns_nop 3\ns_cmp_lt_u32 s9, {NARR}\ns_cbranch_scc1 L_spin")
A("L_fin_w:")
A("s_barrier")
stamp(5)
A("v_lshlrev_b32 v6, 2, v1\ns_lshl_b32 s10, s5, 8\nv_add_u32 v6, s10, v6")
A(f"s_mul_i32 s10, s6, {8*3584}\ns_mul_i32 s15, s4, 1792\ns_add_u32 s10, s10, s15\ns_add_u32 s10, s10, 0x{WS_YC:x}")
for i in range(8):
    A(f"buffer_load_dword v{64+i}, v6, {srd(SWS)}, s10 offen sc1")
    A("s_add_u32 s10, s10, 3584")
A(f"s_mul_i32 s10, s6, {7*3584}\ns_add_u32 s10, s10, s15\ns_add_u32 s10, s10, 0x{WS_FP:x}")
for i in range(7):
    A(f"buffer_load_dword v{80+i}, v6, {srd(SWS)}, s10 offen sc1")
    A("s_add_u32 s10, s10, 3584")
A("v_lshrrev_b32 v7, 1, v6\ns_mul_i32 s10, s4, 896")
A(f"buffer_load_ushort v90, v7, {srd(SX)}, s10 offen")
A("s_waitcnt vmcnt(0)")
A("v_add_f32 v8, v64, v65")
for i in range(2, 8): A(f"v_add_f32 v8, v8, v{64+i}")
A("v_add_f32 v9, v80, v81")
for i in range(2, 7): A(f"v_add_f32 v9, v9, v{80+i}")
A("s_lshl_b32 s9, s6, 8\nv_lshlrev_b32 v10, 2, v1\nv_add_u32 v10, s9, v10")
A(f"ds_write_b32 v10, v8 offset:{PL}\nds_write_b32 v10, v9 offset:{PL+2048}")
A("s_waitcnt lgkmcnt(0)\ns_barrier")
A("s_cmp_eq_u32 s6, 0\ns_cbranch_scc0 L_fin_end")
A("v_lshlrev_b32 v10, 2, v1")
for g in range(8): A(f"ds_read_b32 v{12+g}, v10 offset:{PL+256*g}\nds_read_b32 v{20+g}, v10 offset:{PL+2048+256*g}")
A("s_waitcnt lgkmcnt(0)")
for g in range(1, 8): A(f"v_add_f32 v12, v12, v{12+g}\nv_add_f32 v20, v20, v{20+g}")
rbf(12, 12); rbf(20, 20)
A("v_lshlrev_b32 v90, 16, v90\nv_add_f32 v12, v90, v12")
rbf(12, 12)
A("v_add_f32 v12, v12, v20\nv_cvt_pk_bf16_f32 v12, v12, v12")
A("s_mul_i32 s10, s4, 896")
A(f"buffer_store_short v12, v7, {srd(SOUT)}, s10 offen")
stamp(6)
A("L_fin_end:")
if DIAG:
    A("s_mov_b64 exec, 1")
    for i in range(12): A(f"v_mov_b32 v{4+i}, s{88+i}")
    A(f"v_mov_b32 v20, 0\ns_lshl_b32 s9, s2, 3\ns_add_u32 s9, s9, s6\ns_lshl_b32 s9, s9, 6\ns_add_u32 s9, s9, 0x{WS_DG:x}")
    for i in range(3): A(f"buffer_store_dwordx4 v[{4+4*i}:{7+4*i}], v20, {srd(SWS)}, s9 offen offset:{16*i}")
A("L_end:\ns_endpgm")
A(f'''.section .rodata,"a"
.p2align 6
.amdhsa_kernel {KN}
  .amdhsa_next_free_vgpr 256
  .amdhsa_next_free_sgpr 102
  .amdhsa_accum_offset 256
  .amdhsa_group_segment_fixed_size 0
  .amdhsa_kernarg_size 96
  .amdhsa_user_sgpr_count 2
  .amdhsa_user_sgpr_kernarg_segment_ptr 1
  .amdhsa_system_sgpr_workgroup_id_x 1
.end_amdhsa_kernel''')
print("\n".join(out))
```

```python
import sys, struct

KN = "parallel_sum__mha_block_cached__swiglu_ffn__decode_kernel"
out = []
ARGS = sys.argv[1:]
DIAG = "diag" in ARGS
TB = "tb" in ARGS
NB = 6
NBP = 4
PACE = 0
SLP = 0
TB0 = 0
QNT = " nt" if "qnt" in ARGS else ""
for a in ARGS:
    if a.startswith("nb="): NB = int(a[3:])
    if a.startswith("nbp="): NBP = int(a[4:])
    if a.startswith("pace="): PACE = int(a[5:])
    if a.startswith("slp="): SLP = int(a[4:])
    if a.startswith("tb0="): TB0 = int(a[4:])
def A(s):
    for line in s.split("\n"):
        out.append(line)
def stamp(i):
    if not DIAG: return
    A("s_memrealtime s[100:101]\ns_waitcnt lgkmcnt(0)")
    A(f"s_mov_b32 s{88+i}, s100")

def f32bits(x):
    return struct.unpack("<I", struct.pack("<f", x))[0]

class VM:
    def __init__(self): self.q = []
    def issue(self, tag): self.q.append(tag)
    def wait(self, tag):
        idxs = [i for i, t in enumerate(self.q) if t == tag]
        if not idxs: return
        idx = max(idxs)
        n = len(self.q) - 1 - idx
        A(f"s_waitcnt vmcnt({min(n,63)})")
        self.q = self.q[idx+1:] if n <= 63 else self.q[len(self.q)-63:]
vm = VM()

XNF = 0
XNB = 3584
QB = 5376
TICK = 5888
MLS = 5952
GUS = 6016
HS = 6528
PL = 8192
OP = 16384
GP = 16384
DP = 49152
LDS_BYTES = 49152 + 28672

WS_QS = 0x00000
WS_PO = 0x80000
WS_ML = 0xC0000
WS_YC = 0xC1000
WS_FP = 0xF9000
WS_DG = 0x140000
WS_BYTES = 0x200000
NFFN = 56
NCMB = 64
NFIN = 14
NARR = NCMB
SPIN_LIMIT = 20000
for a in ARGS:
    if a.startswith("spin="): SPIN_LIMIT = int(a[5:])

SX, SK, SV, SWQ, SWO, SGU, SWD, SOUT, SDBG, SWS = 40, 44, 48, 52, 56, 60, 64, 68, 72, 76
def srd(r): return f"s[{r}:{r+3}]"

B = [64, 96, 128, 160, 192, 224][:NB]
Q = 32

A(f"; @launch grid=({256+NARR},1,1) block=(512,1,1) lds={LDS_BYTES}")
A('.amdgcn_target "amdgcn-amd-amdhsa--gfx950"')
A(".text")
A(f".globl {KN}\n.p2align 8\n.type {KN},@function\n{KN}:")
A(f"s_cmp_ge_u32 s2, {256+NARR}\ns_cbranch_scc1 L_end")
A("s_load_dwordx16 s[16:31], s[0:1], 0")
A("s_load_dwordx8 s[32:39], s[0:1], 64")
A("v_and_b32 v1, 63, v0")
A("v_lshrrev_b32 v4, 6, v0")
A("s_nop 0")
A("v_readfirstlane_b32 s6, v4")
A("""s_and_b32 s9, s2, 7
s_lshr_b32 s10, s2, 3
s_and_b32 s3, s10, 1
s_lshl_b32 s3, s3, 3
s_add_u32 s3, s3, s9
s_lshr_b32 s4, s10, 1
s_and_b32 s4, s4, 1
s_lshr_b32 s5, s10, 2
s_lshl_b32 s7, s4, 4
s_add_u32 s7, s7, s3
s_lshl_b32 s8, s7, 22
s_lshl_b32 s9, s5, 19
s_add_u32 s8, s8, s9
""")
A("s_mov_b32 s11, 0x05040100\ns_mov_b32 s12, 0x07060302")
A(f"s_mov_b32 s13, 0x{f32bits(0.0625*1.4426950408889634):08x}")
A("s_mov_b32 s14, 0xffff0000")
A("""v_and_b32 v2, 15, v1
v_lshlrev_b32 v2, 9, v2
v_lshrrev_b32 v4, 4, v1
v_lshl_or_b32 v2, v4, 4, v2
v_lshlrev_b32 v3, 4, v1
v_mov_b32 v5, 0x7f000000
v_cmp_gt_u32 vcc, 56, v1
s_nop 1
v_cndmask_b32 v31, v5, v3, vcc""")
A("s_waitcnt lgkmcnt(0)")
if DIAG:
    for i in range(12): A(f"s_mov_b32 s{88+i}, 0")
stamp(0)
def mk(r, lo, nbytes):
    A(f"s_mov_b32 s{r}, s{lo}\ns_mov_b32 s{r+1}, s{lo+1}\ns_mov_b32 s{r+2}, 0x{nbytes:x}\ns_mov_b32 s{r+3}, 0x20000")
mk(SK, 18, 1<<27); mk(SX, 16, 1792); mk(SWQ, 22, 448*4096*2)
mk(SV, 20, 1<<27); mk(SWO, 24, 4096*448*2)
mk(SWD, 32, 1792*448*2); mk(SOUT, 34, 1792); mk(SDBG, 36, 256); mk(SWS, 38, WS_BYTES)
A("s_cmp_lt_u32 s6, 4")
A(f"s_cselect_b32 s{SGU}, s28, s30\ns_cselect_b32 s{SGU+1}, s29, s31\ns_mov_b32 s{SGU+2}, 0x{448*1792*2:x}\ns_mov_b32 s{SGU+3}, 0x20000")
A("s_cmp_ge_u32 s2, 256\ns_cbranch_scc1 L_cmb")
A("s_sub_u32 s9, s6, 1")
for t in range(8):
    base = 7*t if t < 6 else 50 + 7*(t-6)
    A(f"s_add_u32 s10, s9, {base}\ns_cmp_eq_u32 s6, 0\ns_cselect_b32 s10, {42+t}, s10\ns_lshl_b32 s10, s10, 13\ns_add_u32 s{20+t}, s8, s10")

def tbuf(n): return B[(n + 3) % NB]
def issue_tile(n, track=True):
    b = tbuf(n)
    A(f"s_add_u32 s10, s{20+n%8}, 4096")
    for j in range(8):
        A(f"buffer_load_dwordx4 v[{b+4*j}:{b+4*j+3}], v3, {srd(SK if n < 8 else SV)}, {f's{20+n%8}' if j<4 else 's10'} offen offset:{1024*(j%4)} nt")
        if track: vm.issue(f"t{n}")

def row_reduce(op, v, tmp):
    for r in (8, 4, 2, 1):
        A("s_nop 1")
        A(f"{op}_dpp v{tmp}, v{v}, v{v} row_ror:{r} row_mask:0xf bank_mask:0xf")
        A(f"v_mov_b32 v{v}, v{tmp}")
def wave_sum(v, tmp):
    row_reduce("v_add_f32", v, tmp)
    A("s_nop 0")
    for i in range(4): A(f"v_readlane_b32 s{80+i}, v{v}, {16*i}")
    A("s_nop 1")
    A(f"v_mov_b32 v{v}, s80\nv_add_f32 v{v}, s81, v{v}\nv_add_f32 v{v}, s82, v{v}\nv_add_f32 v{v}, s83, v{v}")
def div448(v, tmp1, tmp2):
    A(f"v_mul_f32 v{tmp1}, 0x{f32bits(1.0/448):08x}, v{v}")
    A(f"v_mov_b32 v{tmp2}, 0x{f32bits(448.0):08x}")
    A(f"v_fma_f32 v{tmp2}, -v{tmp1}, v{tmp2}, v{v}")
    A(f"v_mul_f32 v{tmp2}, 0x{f32bits(1.0/448):08x}, v{tmp2}")
    A(f"v_add_f32 v{v}, v{tmp1}, v{tmp2}")
def rbf(vd, vs):
    A(f"v_cvt_pk_bf16_f32 v{vd}, 0, v{vs}")
def layernorm(r):
    E = 16
    for k in range(4):
        A(f"v_lshlrev_b32 v{E+2*k}, 16, v{r+k}\nv_and_b32 v{E+2*k+1}, s14, v{r+k}")
    A(f"v_add_f32 v24, v{E}, v{E+1}")
    for k in range(2, 8): A(f"v_add_f32 v24, v24, v{E+k}")
    wave_sum(24, 25)
    div448(24, 25, 26)
    A("v_mov_b32 v27, 0")
    for k in range(8):
        A(f"v_sub_f32 v25, v{E+k}, v24\nv_fmac_f32 v27, v25, v25")
    A("v_cmp_gt_u32 vcc, 56, v1\ns_nop 1\nv_cndmask_b32 v27, 0, v27, vcc")
    wave_sum(27, 25)
    div448(27, 25, 26)
    rbf(27, 27)
    rbf(24, 24)
    A(f"v_add_f32 v27, 0x{f32bits(1e-5):08x}, v27")
    rbf(27, 27)
    A("v_sqrt_f32 v27, v27\ns_nop 0")
    rbf(27, 27)
    A("v_rcp_f32 v28, v27\ns_nop 0")
    for k in range(8):
        A(f"v_sub_f32 v{E+k}, v{E+k}, v24")
        rbf(E+k, E+k)
        A(f"v_mul_f32 v25, v{E+k}, v28")
        A(f"v_fma_f32 v26, -v25, v27, v{E+k}")
        A(f"v_fma_f32 v{E+k}, v26, v28, v25")
    for k in range(4):
        A(f"v_cvt_pk_bf16_f32 v{r+k}, v{E+2*k}, v{E+2*k+1}")
    for k in range(4):
        A(f"v_lshlrev_b32 v{E+2*k}, 16, v{r+k}\nv_and_b32 v{E+2*k+1}, s14, v{r+k}")

A("s_cmp_eq_u32 s6, 0\ns_cbranch_scc1 L_qagent")
A("s_barrier")
for n in range(NBP):
    if PACE and n >= 1: A(f"s_waitcnt vmcnt({PACE-1})")
    issue_tile(n, track=False)
A("s_branch L_qjoin")
A("L_qagent:")
W = 64
XV = 128
A(f"buffer_load_dwordx4 v[8:11], v31, {srd(SX)}, 0 offen")
A(f"buffer_load_dwordx4 v[12:15], v31, {srd(SX)}, 0 offen offset:896")
A("""v_lshrrev_b32 v5, 1, v1
v_lshlrev_b32 v126, 13, v5
v_and_b32 v6, 1, v1
v_lshl_add_u32 v126, v6, 4, v126
v_lshlrev_b32 v127, 2, v5
s_lshl_b32 s15, s4, 3
s_add_u32 s15, s15, s5""")
A("s_mov_b32 s84, s15\ns_add_u32 s85, s15, 1\ns_mov_b32 s86, 0")
A("s_memrealtime s[16:17]\ns_lshl_b32 s9, s3, 2\ns_add_u32 s9, s9, 64\nv_mov_b32 v125, s9\ns_waitcnt lgkmcnt(0)\ns_or_b32 s16, s16, 1")
A("v_mov_b32 v122, s16\nv_mov_b32 v123, 0\ns_mov_b64 exec, 1")
A(f"buffer_atomic_cmpswap v[122:123], v125, {srd(SDBG)}, 0 offen sc0")
A("s_mov_b64 exec, -1")
def wq_loads():
    A("s_lshl_b32 s9, s84, 5\ns_lshl_b32 s10, s3, 9\ns_add_u32 s9, s9, s10")
    for j in range(14):
        A(f"buffer_load_dwordx4 v[{W+4*j}:{W+4*j+3}], v126, {srd(SWQ)}, s9 offen")
        if j < 13: A("s_add_u32 s9, s9, 262144")
wq_loads()
A("s_barrier")
stamp(7)
A("s_waitcnt vmcnt(15)")
stamp(8)
for bb in range(2):
    layernorm(8 + 4*bb)
    A("s_mov_b32 exec_hi, 0x00ffffff")
    A("v_lshlrev_b32 v25, 5, v1")
    A(f"ds_write_b128 v25, v[16:19] offset:{XNF+1792*bb}")
    A(f"ds_write_b128 v25, v[20:23] offset:{XNF+1792*bb+16}")
    A("s_mov_b32 exec_hi, -1")
A("s_waitcnt lgkmcnt(0)")
for bb in range(2):
    for j in range(14): A(f"ds_read_b32 v{XV+14*bb+j}, v127 offset:{XNF+1792*bb+128*j}")
stamp(1)
A("s_branch L_share_body")
A("L_share_loop:")
wq_loads()
A("s_waitcnt vmcnt(0)")
A("L_share_body:")
for k in range(16): A(f"v_mov_b32 v{4+k}, 0")
A("s_waitcnt lgkmcnt(0)")
for j in range(14):
    A(f"s_waitcnt vmcnt({13-j})")
    for k in range(4):
        w = W + 4*j + k
        A(f"v_lshlrev_b32 v28, 16, v{w}\nv_and_b32 v29, s14, v{w}")
        A(f"v_fmac_f32 v{4+2*k}, v{XV+j}, v28\nv_fmac_f32 v{5+2*k}, v{XV+j}, v29")
        A(f"v_fmac_f32 v{12+2*k}, v{XV+14+j}, v28\nv_fmac_f32 v{13+2*k}, v{XV+14+j}, v29")
stamp(9)
for r in (2, 4, 8):
    A("s_nop 1")
    for k in range(16): A(f"v_add_f32_dpp v{32+k}, v{4+k}, v{4+k} row_ror:{r} row_mask:0xf bank_mask:0xf")
    for k in range(16): A(f"v_mov_b32 v{4+k}, v{32+k}")
for sw in ("v_permlane16_swap_b32", "v_permlane32_swap_b32"):
    for k in range(16): A(f"v_mov_b32 v{32+k}, v{4+k}")
    A("s_nop 1")
    for k in range(16): A(f"{sw} v{4+k}, v{32+k}")
    A("s_nop 1")
    for k in range(16): A(f"v_add_f32 v{4+k}, v{4+k}, v{32+k}")
for k in range(8): A(f"v_cvt_pk_bf16_f32 v{32+k}, v{4+2*k}, v{5+2*k}")
A("s_cmp_eq_u32 s86, 0\ns_cbranch_scc0 L_q_fallback")
A("v_readfirstlane_b32 s9, v122\ns_nop 3\ns_cmp_eq_u32 s9, 0\ns_cselect_b32 s16, s16, s9")
A("v_bfe_u32 v28, v1, 1, 1\nv_cmp_eq_u32 vcc, 1, v28\ns_nop 1")
A("v_cndmask_b32 v40, v32, v34, vcc\nv_cndmask_b32 v41, v33, v35, vcc\nv_cndmask_b32 v42, v36, v38, vcc\nv_cndmask_b32 v43, v37, v39, vcc")
A("v_bfe_u32 v29, v1, 2, 1\nv_cmp_eq_u32 vcc, 1, v29\ns_nop 1")
A("v_cndmask_b32 v44, v40, v42, vcc\nv_cndmask_b32 v46, v41, v43, vcc\nv_mov_b32 v45, s16\nv_mov_b32 v47, s16")
A("v_lshlrev_b32 v29, 10, v29\nv_lshl_add_u32 v29, v28, 4, v29\nv_and_b32 v28, 1, v1\nv_lshl_add_u32 v29, v28, 5, v29")
A(f"s_lshl_b32 s9, s3, 11\ns_lshl_b32 s10, s15, 6\ns_add_u32 s9, s9, s10\ns_add_u32 s9, s9, 0x{WS_QS:x}")
A("s_mov_b64 exec, 0xff")
A(f"buffer_store_dwordx4 v[44:47], v29, {srd(SWS)}, s9 offen sc1")
A("s_mov_b64 exec, -1")
stamp(2)
A(f"s_lshl_b32 s9, s3, 11\ns_lshl_b32 s10, s4, 10\ns_add_u32 s9, s9, s10\ns_add_u32 s9, s9, 0x{WS_QS:x}")
A("s_mov_b32 s87, 0")
A("L_qpoll:")
A(f"buffer_load_dwordx4 v[32:35], v3, {srd(SWS)}, s9 offen sc1")
A("s_waitcnt vmcnt(0)")
A("v_cmp_eq_u32 vcc, s16, v33\nv_cmp_eq_u32 s[80:81], s16, v35\ns_nop 3\ns_and_b64 vcc, vcc, s[80:81]\ns_cmp_eq_u64 vcc, -1\ns_cbranch_scc1 L_qgot")
if SLP: A(f"s_sleep {SLP}")
A(f"s_add_u32 s87, s87, 1\ns_cmp_lt_u32 s87, {SPIN_LIMIT}\ns_cbranch_scc1 L_qpoll")
A("s_mov_b32 s84, 0\ns_mov_b32 s85, 16\ns_mov_b32 s86, 1\ns_branch L_share_loop")
A("L_qgot:")
stamp(10)
A("v_mov_b32 v33, v34\nv_lshlrev_b32 v28, 3, v1")
A(f"ds_write_b64 v28, v[32:33] offset:{QB}")
A("s_branch L_qjoin")
A("L_q_fallback:")
A("s_cmp_eq_u32 s4, 0\ns_cbranch_scc1 L_q_fb0")
for k in range(4): A(f"v_mov_b32 v{32+k}, v{36+k}")
A("L_q_fb0:")
A("v_and_b32 v28, 1, v1\nv_lshlrev_b32 v28, 4, v28\ns_lshl_b32 s9, s84, 5\nv_add_u32 v28, s9, v28")
A("s_mov_b64 exec, 3")
A(f"ds_write_b128 v28, v[32:35] offset:{QB}")
A("s_mov_b64 exec, -1")
A("s_add_u32 s84, s84, 1\ns_cmp_lt_u32 s84, s85\ns_cbranch_scc1 L_share_loop")
A("L_qjoin:")
stamp(11)
A("s_waitcnt lgkmcnt(0)\ns_barrier")
A("v_and_b32 v12, 31, v1\nv_lshlrev_b32 v12, 4, v12")
A(f"ds_read_b128 v[24:27], v12 offset:{QB}")
A("s_cmp_eq_u32 s6, 0\ns_cbranch_scc0 L_q_b")
for n in range(NBP): issue_tile(n, track=False)
A("L_q_b:")
vm.q = []
for n in range(NBP):
    for j in range(8): vm.issue(f"t{n}")
for n in range(NBP, NB): issue_tile(n)
A("s_waitcnt lgkmcnt(0)")
stamp(3)

S = 32
for t in range(8):
    b = tbuf(t)
    if TB and t >= TB0: A("s_barrier")
    vm.wait(f"t{t}")
    for k in range(4):
        for j in range(8):
            c = "0" if k == 0 else f"v{4+j}"
            A(f"v_dot2_f32_bf16 v{4+j}, v{b+4*j+k}, v{24+k}, {c}")
    issue_tile(t + NB)
    A("s_nop 1")
    for i in range(4): A(f"v_permlane16_swap_b32 v{4+2*i}, v{5+2*i}")
    A("s_nop 0")
    for i in range(4): A(f"v_add_f32 v{12+i}, v{4+2*i}, v{5+2*i}")
    for r in (8, 4, 2, 1):
        A("s_nop 0")
        for i in range(4): A(f"v_add_f32_dpp v{12+i}, v{12+i}, v{12+i} row_ror:{r} row_mask:0xf bank_mask:0xf")
    for i in range(4): rbf(S + 4*t + i, 12 + i)
stamp(4)
A(f"v_max3_f32 v30, v{S}, v{S+1}, v{S+2}")
for i in range(3, 31, 2): A(f"v_max3_f32 v30, v30, v{S+i}, v{S+i+1}")
A(f"v_max_f32 v30, v30, v{S+31}")
def cross_rows(op, v, tmp):
    for sw in ("v_permlane16_swap_b32", "v_permlane32_swap_b32"):
        A(f"v_mov_b32 v{tmp}, v{v}\ns_nop 1\n{sw} v{v}, v{tmp}\ns_nop 0\n{op} v{v}, v{v}, v{tmp}")
cross_rows("v_max_f32", 30, 12)
for i in range(32):
    A(f"v_sub_f32 v12, v{S+i}, v30\nv_mul_f32 v12, s13, v12\nv_exp_f32 v{S+i}, v12")
A("s_nop 0")
A(f"v_add_f32 v31, v{S}, v{S+1}")
for i in range(2, 32): A(f"v_add_f32 v31, v31, v{S+i}")
cross_rows("v_add_f32", 31, 12)
A("""v_lshrrev_b32 v12, 5, v1
v_lshlrev_b32 v12, 5, v12
v_bfe_u32 v13, v1, 4, 1
v_lshl_add_u32 v12, v13, 2, v12
s_lshl_b32 s15, s6, 9
v_add_u32 v12, s15, v12
s_mov_b32 exec_lo, 0x00010001
s_mov_b32 exec_hi, 0x00010001""")
for t in range(8):
    for i in range(4): A(f"ds_write_b32 v12, v{S+4*t+i} offset:{PL+64*t+8*i}")
A("s_mov_b64 exec, -1")
A("v_lshrrev_b32 v29, 5, v1\nv_lshlrev_b32 v29, 5, v29\nv_add_u32 v29, s15, v29")
for k in range(8): A(f"v_mov_b32 v{4+k}, 0")
PV = [12, 20]
A("s_waitcnt lgkmcnt(0)")
A(f"ds_read_b128 v[12:15], v29 offset:{PL}\nds_read_b128 v[16:19], v29 offset:{PL+16}")
for t in range(8):
    n = 8 + t
    b = tbuf(n)
    pv = PV[t & 1]
    A("s_waitcnt lgkmcnt(0)")
    if t < 7:
        pn = PV[(t+1) & 1]
        A(f"ds_read_b128 v[{pn}:{pn+3}], v29 offset:{PL+64*(t+1)}\nds_read_b128 v[{pn+4}:{pn+7}], v29 offset:{PL+64*(t+1)+16}")
    if TB: A("s_barrier")
    vm.wait(f"t{n}")
    for j in range(8):
        for k in range(4):
            w = b + 4*j + k
            A(f"v_lshlrev_b32 v28, 16, v{w}\nv_fmac_f32 v{4+2*k}, v{pv+j}, v28")
            A(f"v_and_b32 v28, s14, v{w}\nv_fmac_f32 v{5+2*k}, v{pv+j}, v28")
    if n + NB < 16: issue_tile(n + NB)
stamp(5)
A("s_lshl_b32 s9, s6, 11\nv_lshlrev_b32 v12, 5, v1\nv_add_u32 v12, s9, v12")
A(f"ds_write_b128 v12, v[4:7] offset:{OP}\nds_write_b128 v12, v[8:11] offset:{OP+16}")
A("s_lshl_b32 s9, s6, 3\nv_mov_b32 v12, s9\ns_mov_b64 exec, 1")
A(f"ds_write_b64 v12, v[30:31] offset:{MLS}")
A("s_mov_b64 exec, -1")
A("s_waitcnt lgkmcnt(0)\ns_barrier")
A("s_cmp_lt_u32 s6, 4\ns_cbranch_scc0 L_pub_a")
CB = 64
A("v_mov_b32 v12, 0")
for i in range(4): A(f"ds_read_b128 v[{CB+4*i}:{CB+4*i+3}], v12 offset:{MLS+16*i}")
A("v_lshlrev_b32 v12, 2, v0")
for w in range(8):
    A(f"ds_read_b32 v{CB+16+2*w}, v12 offset:{OP+2048*w}\nds_read_b32 v{CB+17+2*w}, v12 offset:{OP+2048*w+1024}")
A("s_waitcnt lgkmcnt(0)")
A(f"v_max3_f32 v30, v{CB}, v{CB+2}, v{CB+4}\nv_max3_f32 v30, v30, v{CB+6}, v{CB+8}\nv_max3_f32 v30, v30, v{CB+10}, v{CB+12}\nv_max_f32 v30, v30, v{CB+14}")
A("v_mov_b32 v31, 0\nv_mov_b32 v13, 0")
for w in range(8):
    A(f"v_sub_f32 v14, v{CB+2*w}, v30\nv_mul_f32 v14, s13, v14\nv_exp_f32 v14, v14")
    A(f"v_add_f32 v15, v{CB+16+2*w}, v{CB+17+2*w}")
    A(f"v_fmac_f32 v31, v14, v{CB+2*w+1}\nv_fmac_f32 v13, v14, v15")
A("s_lshl_b32 s15, s7, 3\ns_add_u32 s15, s15, s5")
A(f"s_lshl_b32 s9, s15, 10\ns_add_u32 s9, s9, 0x{WS_PO:x}")
A(f"buffer_store_dword v13, v12, {srd(SWS)}, s9 offen sc1")
A("s_cmp_eq_u32 s6, 0\ns_cbranch_scc0 L_pub_a")
A(f"s_lshl_b32 s9, s15, 3\ns_add_u32 s9, s9, 0x{WS_ML:x}\ns_mov_b64 exec, 1")
A(f"buffer_store_dwordx2 v[30:31], v12, {srd(SWS)}, s9 offen sc1")
A("s_mov_b64 exec, -1")
A("L_pub_a:")
A("s_waitcnt vmcnt(0)\ns_barrier")
stamp(6)
A("s_cmp_eq_u32 s6, 0\ns_cbranch_scc0 L_fin_end")
A("s_lshl_b32 s9, s3, 2\ns_add_u32 s9, s9, 128\nv_mov_b32 v28, s9\nv_mov_b32 v29, 1")
A("s_mov_b64 exec, 1")
A(f"buffer_atomic_add v29, v28, {srd(SDBG)}, 0 offen")
A("s_mov_b64 exec, -1")
A("s_branch L_fin_end")

def publish_tail(tag=""):
    A(f"s_mul_i32 s9, s6, 3584\ns_add_u32 s9, s9, {DP}\nv_lshlrev_b32 v28, 5, v1\nv_add_u32 v28, s9, v28")
    A("s_mov_b32 exec_hi, 0x00ffffff")
    A(f"ds_write_b128 v28, v[4:7]\nds_write_b128 v28, v[8:11] offset:16")
    A(f"ds_write_b128 v28, v[12:15] offset:1792\nds_write_b128 v28, v[16:19] offset:{1792+16}")
    A("s_mov_b32 exec_hi, -1")
    A("s_waitcnt lgkmcnt(0)\ns_barrier")
    A("v_cmp_gt_u32 vcc, 224, v0\ns_and_saveexec_b64 s[80:81], vcc\ns_cbranch_execz L_pt_c" + tag)
    A(f"v_lshlrev_b32 v28, 4, v0\nv_add_u32 v29, {DP}, v28")
    for w in range(8):
        A(f"ds_read_b128 v[{64+4*w}:{67+4*w}], v29 offset:{3584*w}")
    A("s_waitcnt lgkmcnt(0)")
    for w in range(1, 8):
        for k in range(4): A(f"v_add_f32 v{64+k}, v{64+k}, v{64+4*w+k}")
    A(f"buffer_store_dwordx4 v[64:67], v28, {srd(SWS)}, s15 offen sc1")
    A("L_pt_c" + tag + ":")
    A("s_mov_b64 exec, -1")

A("L_cmb:")
A(f"s_sub_u32 s5, s2, 256\ns_lshr_b32 s3, s5, 2\ns_and_b32 s4, s5, 3")
WO = 224
A("s_lshl_b32 s9, s5, 3\ns_add_u32 s9, s9, s6\ns_mul_i32 s9, s9, 7168")
for i in range(8):
    if i == 4: A("s_add_u32 s9, s9, 3584")
    A(f"buffer_load_dwordx4 v[{WO+4*i}:{WO+4*i+3}], v31, {srd(SWO)}, s9 offen offset:{896*(i%4)}")
A(f"s_cmp_lt_u32 s5, {NFFN}\ns_cbranch_scc0 L_noffn")
FG, FD = 96, 192
A(f"buffer_load_dwordx4 v[8:11], v31, {srd(SX)}, 0 offen")
A(f"buffer_load_dwordx4 v[12:15], v31, {srd(SX)}, 0 offen offset:896")
A("""v_lshrrev_b32 v6, 2, v1
s_movk_i32 s9, 3584
v_mul_lo_u32 v6, v6, s9
v_and_b32 v7, 3, v1
v_lshl_add_u32 v6, v7, 4, v6
s_and_b32 s9, s6, 3
s_mul_i32 s9, s9, 401408
s_lshl_b32 s10, s5, 6
s_add_u32 s9, s9, s10""")
for j in range(7):
    A(f"buffer_load_dwordx4 v[{FG+4*j}:{FG+4*j+3}], v6, {srd(SGU)}, s9 offen")
    if j < 6: A("s_add_u32 s9, s9, 57344")
A("s_lshl_b32 s9, s5, 3\ns_add_u32 s9, s9, s6\ns_mul_i32 s9, s9, 3584")
for j in range(4):
    A(f"buffer_load_dwordx4 v[{FD+4*j}:{FD+4*j+3}], v31, {srd(SWD)}, s9 offen offset:{896*j}")
A("s_waitcnt vmcnt(11)")
for bb in range(2):
    layernorm(8 + 4*bb)
    A("s_mov_b32 exec_hi, 0x00ffffff")
    A("v_lshlrev_b32 v25, 5, v1")
    A(f"ds_write_b128 v25, v[16:19] offset:{XNF+1792*bb}")
    A(f"ds_write_b128 v25, v[20:23] offset:{XNF+1792*bb+16}")
    A("s_mov_b32 exec_hi, -1")
A("""s_and_b32 s9, s6, 3
s_mul_i32 s9, s9, 448
v_lshrrev_b32 v26, 2, v1
v_lshlrev_b32 v26, 2, v26
v_add_u32 v26, s9, v26""")
for k in range(16): A(f"v_mov_b32 v{4+k}, 0")
A("s_waitcnt lgkmcnt(0)")
for j in range(7):
    A(f"ds_read_b32 v{128+2*j}, v26 offset:{XNF+64*j}\nds_read_b32 v{129+2*j}, v26 offset:{XNF+1792+64*j}")
A("s_waitcnt lgkmcnt(0)\ns_waitcnt vmcnt(4)")
for j in range(7):
    for k in range(4):
        w = FG + 4*j + k
        A(f"v_lshlrev_b32 v22, 16, v{w}\nv_and_b32 v23, s14, v{w}")
        A(f"v_fmac_f32 v{4+2*k}, v{128+2*j}, v22\nv_fmac_f32 v{5+2*k}, v{128+2*j}, v23")
        A(f"v_fmac_f32 v{12+2*k}, v{129+2*j}, v22\nv_fmac_f32 v{13+2*k}, v{129+2*j}, v23")
A("""v_lshrrev_b32 v27, 2, v1
v_lshlrev_b32 v27, 8, v27
v_and_b32 v22, 3, v1
v_lshl_add_u32 v27, v22, 5, v27
s_lshl_b32 s9, s6, 12
v_add_u32 v27, s9, v27""")
A(f"ds_write_b128 v27, v[4:7] offset:{GP}\nds_write_b128 v27, v[8:11] offset:{GP+16}")
A(f"ds_write_b128 v27, v[12:15] offset:{GP+128}\nds_write_b128 v27, v[16:19] offset:{GP+144}")
A("s_waitcnt lgkmcnt(0)\ns_barrier")
A("s_cmp_lt_u32 s6, 2\ns_cbranch_scc0 L_ffn_a")
A("s_lshl_b32 s9, s6, 14\nv_lshlrev_b32 v26, 2, v1\nv_add_u32 v26, s9, v26")
for g in range(4):
    for i in range(16):
        A(f"ds_read_b32 v{128+16*g+i}, v26 offset:{GP+4096*g+256*i}")
A("s_waitcnt lgkmcnt(0)")
A("v_add_f32 v4, v128, v129")
for i in range(2, 64): A(f"v_add_f32 v4, v4, v{128+i}")
rbf(4, 4)
A("s_lshl_b32 s9, s6, 8\nv_lshlrev_b32 v26, 2, v1\nv_add_u32 v26, s9, v26")
A(f"ds_write_b32 v26, v4 offset:{GUS}")
A("L_ffn_a:")
A("s_waitcnt lgkmcnt(0)\ns_barrier")
A("s_cmp_eq_u32 s6, 0\ns_cbranch_scc0 L_ffn_b")
A("v_lshlrev_b32 v26, 2, v1")
A(f"ds_read_b32 v4, v26 offset:{GUS}\nds_read_b32 v5, v26 offset:{GUS+256}")
A("s_waitcnt lgkmcnt(0)")
A(f"v_mul_f32 v6, 0x{f32bits(-1.4426950408889634):08x}, v4")
A("v_exp_f32 v6, v6\ns_nop 0\nv_add_f32 v6, 1.0, v6\nv_rcp_f32 v7, v6\ns_nop 0")
A("v_mul_f32 v8, v4, v7\nv_fma_f32 v9, -v8, v6, v4\nv_fma_f32 v8, v9, v7, v8")
rbf(8, 8)
A("v_mul_f32 v8, v8, v5")
rbf(8, 8)
A(f"ds_write_b32 v26, v8 offset:{HS}")
A("L_ffn_b:")
A("s_waitcnt lgkmcnt(0)\ns_barrier")
A("s_lshl_b32 s9, s6, 4\nv_mov_b32 v26, s9")
A(f"ds_read_b128 v[20:23], v26 offset:{HS}\nds_read_b128 v[24:27], v26 offset:{HS+128}")
for k in range(16): A(f"v_mov_b32 v{4+k}, 0")
A("s_waitcnt lgkmcnt(0)\ns_waitcnt vmcnt(0)")
for j in range(4):
    for k in range(4):
        w = FD + 4*j + k
        A(f"v_lshlrev_b32 v28, 16, v{w}\nv_and_b32 v29, s14, v{w}")
        A(f"v_fmac_f32 v{4+2*k}, v{20+j}, v28\nv_fmac_f32 v{5+2*k}, v{20+j}, v29")
        A(f"v_fmac_f32 v{12+2*k}, v{24+j}, v28\nv_fmac_f32 v{13+2*k}, v{24+j}, v29")
A(f"s_mul_i32 s15, s5, 3584\ns_add_u32 s15, s15, 0x{WS_FP:x}")
publish_tail("f")

A("L_noffn:")
stamp(7)
A("s_cmp_eq_u32 s6, 0\ns_cbranch_scc0 L_cmb_w")
A("s_lshl_b32 s9, s3, 2\ns_add_u32 s9, s9, 128\nv_mov_b32 v28, s9")
A("L_cpoll:")
A(f"buffer_load_dword v29, v28, {srd(SDBG)}, 0 offen sc1")
A("s_waitcnt vmcnt(0)\nv_readfirstlane_b32 s9, v29\ns_nop 3\ns_cmp_lt_u32 s9, 16\ns_cbranch_scc1 L_cpoll")
A("L_cmb_w:")
A("s_barrier")
stamp(1)
A("""v_and_b32 v4, 7, v1
v_bfe_u32 v5, v1, 3, 1
v_lshlrev_b32 v6, 17, v5
v_lshl_add_u32 v6, v4, 2, v6
v_lshlrev_b32 v7, 10, v5""")
A(f"s_lshl_b32 s9, s3, 13\ns_lshl_b32 s10, s4, 8\ns_add_u32 s9, s9, s10\ns_lshl_b32 s10, s6, 5\ns_add_u32 s9, s9, s10\ns_add_u32 s9, s9, 0x{WS_PO:x}")
for s in range(8):
    if s == 4: A("s_add_u32 s9, s9, 4096")
    A(f"buffer_load_dword v{128+s}, v6, {srd(SWS)}, s9 offen offset:{1024*(s%4)} sc1")
A(f"s_lshl_b32 s9, s3, 6\ns_add_u32 s9, s9, 0x{WS_ML:x}")
for i in range(4): A(f"buffer_load_dwordx4 v[{136+4*i}:{139+4*i}], v7, {srd(SWS)}, s9 offen offset:{16*i} sc1")
A("s_waitcnt vmcnt(0)")
m0 = 136
A(f"v_max3_f32 v10, v{m0}, v{m0+2}, v{m0+4}\nv_max3_f32 v10, v10, v{m0+6}, v{m0+8}\nv_max3_f32 v10, v10, v{m0+10}, v{m0+12}\nv_max_f32 v10, v10, v{m0+14}")
A("v_mov_b32 v11, 0\nv_mov_b32 v12, 0")
for s in range(8):
    A(f"v_sub_f32 v13, v{m0+2*s}, v10\nv_mul_f32 v13, s13, v13\nv_exp_f32 v13, v13\ns_nop 0")
    A(f"v_fmac_f32 v11, v13, v{m0+2*s+1}\nv_fmac_f32 v12, v13, v{128+s}")
A("v_rcp_f32 v13, v11\ns_nop 0\nv_mul_f32 v14, v12, v13\nv_fma_f32 v15, -v14, v11, v12\nv_fma_f32 v14, v15, v13, v14")
rbf(14, 14)
A("s_nop 0")
for i in range(16): A(f"v_readlane_b32 s{16+i}, v14, {i}")
for k in range(16): A(f"v_mov_b32 v{4+k}, 0")
for i in range(8):
    for k in range(4):
        w = WO + 4*i + k
        A(f"v_lshlrev_b32 v28, 16, v{w}\nv_and_b32 v29, s14, v{w}")
        A(f"v_fmac_f32 v{4+2*k}, s{16+i}, v28\nv_fmac_f32 v{5+2*k}, s{16+i}, v29")
        A(f"v_fmac_f32 v{12+2*k}, s{24+i}, v28\nv_fmac_f32 v{13+2*k}, s{24+i}, v29")
A(f"s_mul_i32 s15, s5, 3584\ns_add_u32 s15, s15, 0x{WS_YC:x}")
A("L_tail:")
stamp(2)
publish_tail()
A("s_waitcnt vmcnt(0)\ns_barrier")
stamp(3)
A("s_cmp_eq_u32 s6, 0\ns_cbranch_scc0 L_arr")
A("s_mov_b64 exec, 1\nv_mov_b32 v4, 1\nv_mov_b32 v5, 0")
A(f"buffer_atomic_add v4, v5, {srd(SDBG)}, 0 offen sc0")
A("s_waitcnt vmcnt(0)")
A(f"ds_write_b32 v5, v4 offset:{TICK}")
A("s_mov_b64 exec, -1")
A("L_arr:")
A("s_waitcnt lgkmcnt(0)\ns_barrier")
A(f"v_mov_b32 v5, 0\nds_read_b32 v4, v5 offset:{TICK}\ns_waitcnt lgkmcnt(0)")
stamp(4)
A("v_readfirstlane_b32 s9, v4")
A(f"s_nop 3\ns_cmp_lt_u32 s9, {NARR-NFIN}\ns_cbranch_scc1 L_fin_end")
A(f"s_sub_u32 s9, s9, {NARR-NFIN}\ns_and_b32 s4, s9, 1\ns_lshr_b32 s5, s9, 1")
A("s_cmp_eq_u32 s6, 0\ns_cbranch_scc0 L_fin_w")
A("L_spin:")
A(f"buffer_load_dword v4, v5, {srd(SDBG)}, 0 offen sc1")
A(f"s_waitcnt vmcnt(0)\nv_readfirstlane_b32 s9, v4\ns_nop 3\ns_cmp_lt_u32 s9, {NARR}\ns_cbranch_scc1 L_spin")
A("L_fin_w:")
A("s_barrier")
stamp(5)
A("v_lshlrev_b32 v6, 2, v1\ns_lshl_b32 s10, s5, 8\nv_add_u32 v6, s10, v6")
A(f"s_mul_i32 s10, s6, {8*3584}\ns_mul_i32 s15, s4, 1792\ns_add_u32 s10, s10, s15\ns_add_u32 s10, s10, 0x{WS_YC:x}")
for i in range(8):
    A(f"buffer_load_dword v{64+i}, v6, {srd(SWS)}, s10 offen sc1")
    A("s_add_u32 s10, s10, 3584")
A(f"s_mul_i32 s10, s6, {7*3584}\ns_add_u32 s10, s10, s15\ns_add_u32 s10, s10, 0x{WS_FP:x}")
for i in range(7):
    A(f"buffer_load_dword v{80+i}, v6, {srd(SWS)}, s10 offen sc1")
    A("s_add_u32 s10, s10, 3584")
A("v_lshrrev_b32 v7, 1, v6\ns_mul_i32 s10, s4, 896")
A(f"buffer_load_ushort v90, v7, {srd(SX)}, s10 offen")
A("s_waitcnt vmcnt(0)")
A("v_add_f32 v8, v64, v65")
for i in range(2, 8): A(f"v_add_f32 v8, v8, v{64+i}")
A("v_add_f32 v9, v80, v81")
for i in range(2, 7): A(f"v_add_f32 v9, v9, v{80+i}")
A("s_lshl_b32 s9, s6, 8\nv_lshlrev_b32 v10, 2, v1\nv_add_u32 v10, s9, v10")
A(f"ds_write_b32 v10, v8 offset:{PL}\nds_write_b32 v10, v9 offset:{PL+2048}")
A("s_waitcnt lgkmcnt(0)\ns_barrier")
A("s_cmp_eq_u32 s6, 0\ns_cbranch_scc0 L_fin_end")
A("v_lshlrev_b32 v10, 2, v1")
for g in range(8): A(f"ds_read_b32 v{12+g}, v10 offset:{PL+256*g}\nds_read_b32 v{20+g}, v10 offset:{PL+2048+256*g}")
A("s_waitcnt lgkmcnt(0)")
for g in range(1, 8): A(f"v_add_f32 v12, v12, v{12+g}\nv_add_f32 v20, v20, v{20+g}")
rbf(12, 12); rbf(20, 20)
A("v_lshlrev_b32 v90, 16, v90\nv_add_f32 v12, v90, v12")
rbf(12, 12)
A("v_add_f32 v12, v12, v20\nv_cvt_pk_bf16_f32 v12, v12, v12")
A("s_mul_i32 s10, s4, 896")
A(f"buffer_store_short v12, v7, {srd(SOUT)}, s10 offen")
stamp(6)
A("L_fin_end:")
if DIAG:
    A("s_mov_b64 exec, 1")
    for i in range(12): A(f"v_mov_b32 v{4+i}, s{88+i}")
    A(f"v_mov_b32 v20, 0\ns_lshl_b32 s9, s2, 3\ns_add_u32 s9, s9, s6\ns_lshl_b32 s9, s9, 6\ns_add_u32 s9, s9, 0x{WS_DG:x}")
    for i in range(3): A(f"buffer_store_dwordx4 v[{4+4*i}:{7+4*i}], v20, {srd(SWS)}, s9 offen offset:{16*i}")
A("L_end:\ns_endpgm")
A(f'''.section .rodata,"a"
.p2align 6
.amdhsa_kernel {KN}
  .amdhsa_next_free_vgpr 256
  .amdhsa_next_free_sgpr 102
  .amdhsa_accum_offset 256
  .amdhsa_group_segment_fixed_size 0
  .amdhsa_kernarg_size 96
  .amdhsa_user_sgpr_count 2
  .amdhsa_user_sgpr_kernarg_segment_ptr 1
  .amdhsa_system_sgpr_workgroup_id_x 1
.end_amdhsa_kernel''')
print("\n".join(out))
```

```python
import sys, struct

KN = "parallel_sum__mha_block_cached__swiglu_ffn__decode_kernel"
out = []
ARGS = sys.argv[1:]
DIAG = "diag" in ARGS
TB = "tb" in ARGS
NB = 6
NBP = 4
PACE = 0
SLP = 0
TB0 = 0
LA = 6
CSLP = 0
FSLP = 4
QNT = " nt" if "qnt" in ARGS else ""
for a in ARGS:
    if a.startswith("nb="): NB = int(a[3:])
    if a.startswith("nbp="): NBP = int(a[4:])
    if a.startswith("pace="): PACE = int(a[5:])
    if a.startswith("slp="): SLP = int(a[4:])
    if a.startswith("tb0="): TB0 = int(a[4:])
    if a.startswith("la="): LA = int(a[3:])
    if a.startswith("cslp="): CSLP = int(a[5:])
def A(s):
    for line in s.split("\n"):
        out.append(line)
def stamp(i):
    if not DIAG: return
    A("s_memrealtime s[100:101]\ns_waitcnt lgkmcnt(0)")
    A(f"s_mov_b32 s{88+i}, s100")

def f32bits(x):
    return struct.unpack("<I", struct.pack("<f", x))[0]

class VM:
    def __init__(self): self.q = []
    def issue(self, tag): self.q.append(tag)
    def wait(self, tag):
        idxs = [i for i, t in enumerate(self.q) if t == tag]
        if not idxs: return
        idx = max(idxs)
        n = len(self.q) - 1 - idx
        A(f"s_waitcnt vmcnt({min(n,63)})")
        self.q = self.q[idx+1:] if n <= 63 else self.q[len(self.q)-63:]
vm = VM()

XNF = 0
XNB = 3584
QB = 5376
TICK = 5888
MLS = 5952
GUS = 6016
HS = 6528
PL = 8192
OP = 16384
GP = 16384
DP = 49152
LDS_BYTES = 49152 + 28672

WS_QS = 0x00000
WS_PO = 0x10000
WS_ML = 0x90000
WS_YC = 0x91000
WS_FP = 0x101000
WS_DG = 0x180000
WS_BYTES = 0x200000
NONCE = 5900
NFFN = 56
NCMB = 64
NFIN = 14
NARR = NFFN + NCMB
SPIN_LIMIT = 20000
for a in ARGS:
    if a.startswith("spin="): SPIN_LIMIT = int(a[5:])

SX, SK, SV, SWQ, SWO, SGU, SWD, SOUT, SDBG, SWS = 40, 44, 48, 52, 56, 60, 64, 68, 72, 76
def srd(r): return f"s[{r}:{r+3}]"

B = [64, 96, 128, 160, 192, 224][:NB]
Q = 32

A(f"; @launch grid=(256,1,1) block=(512,1,1) lds={LDS_BYTES}")
A('.amdgcn_target "amdgcn-amd-amdhsa--gfx950"')
A(".text")
A(f".globl {KN}\n.p2align 8\n.type {KN},@function\n{KN}:")
A("s_cmp_ge_u32 s2, 256\ns_cbranch_scc1 L_end")
A("s_load_dwordx16 s[16:31], s[0:1], 0")
A("s_load_dwordx8 s[32:39], s[0:1], 64")
A("v_and_b32 v1, 63, v0")
A("v_lshrrev_b32 v4, 6, v0")
A("s_nop 0")
A("v_readfirstlane_b32 s6, v4")
A("""s_and_b32 s5, s2, 7
s_lshr_b32 s7, s2, 3
s_and_b32 s3, s7, 15
s_lshr_b32 s4, s7, 4
s_and_b32 s4, s4, 1
s_lshl_b32 s8, s7, 22
s_lshl_b32 s9, s5, 19
s_add_u32 s8, s8, s9""")
A("s_mov_b32 s11, 0x05040100\ns_mov_b32 s12, 0x07060302")
A(f"s_mov_b32 s13, 0x{f32bits(0.0625*1.4426950408889634):08x}")
A("s_mov_b32 s14, 0xffff0000")
A("""v_and_b32 v2, 15, v1
v_lshlrev_b32 v2, 9, v2
v_lshrrev_b32 v4, 4, v1
v_lshl_or_b32 v2, v4, 4, v2
v_lshlrev_b32 v3, 4, v1
v_mov_b32 v5, 0x7f000000
v_cmp_gt_u32 vcc, 56, v1
s_nop 1
v_cndmask_b32 v31, v5, v3, vcc""")
A("s_waitcnt lgkmcnt(0)")
if DIAG:
    for i in range(12): A(f"s_mov_b32 s{88+i}, 0")
stamp(0)
def mk(r, lo, nbytes):
    A(f"s_mov_b32 s{r}, s{lo}\ns_mov_b32 s{r+1}, s{lo+1}\ns_mov_b32 s{r+2}, 0x{nbytes:x}\ns_mov_b32 s{r+3}, 0x20000")
mk(SK, 18, 1<<27); mk(SX, 16, 1792); mk(SWQ, 22, 448*4096*2)
mk(SV, 20, 1<<27); mk(SWO, 24, 4096*448*2)
mk(SWD, 32, 1792*448*2); mk(SOUT, 34, 1792); mk(SDBG, 36, 256); mk(SWS, 38, WS_BYTES)
A("s_cmp_lt_u32 s6, 4")
A(f"s_cselect_b32 s{SGU}, s28, s30\ns_cselect_b32 s{SGU+1}, s29, s31\ns_mov_b32 s{SGU+2}, 0x{448*1792*2:x}\ns_mov_b32 s{SGU+3}, 0x20000")
A("s_sub_u32 s9, s6, 1")
for t in range(8):
    base = 7*t if t < 6 else 50 + 7*(t-6)
    A(f"s_add_u32 s10, s9, {base}\ns_cmp_eq_u32 s6, 0\ns_cselect_b32 s10, {42+t}, s10\ns_lshl_b32 s10, s10, 13\ns_add_u32 s{20+t}, s8, s10")

def tbuf(n): return B[(n + 3) % NB]
def issue_tile(n, track=True):
    b = tbuf(n)
    A(f"s_add_u32 s10, s{20+n%8}, 4096")
    for j in range(8):
        A(f"buffer_load_dwordx4 v[{b+4*j}:{b+4*j+3}], v3, {srd(SK if n < 8 else SV)}, {f's{20+n%8}' if j<4 else 's10'} offen offset:{1024*(j%4)} nt")
        if track: vm.issue(f"t{n}")

def row_reduce(op, v, tmp):
    for r in (8, 4, 2, 1):
        A("s_nop 1")
        A(f"{op}_dpp v{tmp}, v{v}, v{v} row_ror:{r} row_mask:0xf bank_mask:0xf")
        A(f"v_mov_b32 v{v}, v{tmp}")
def wave_sum(v, tmp):
    row_reduce("v_add_f32", v, tmp)
    A("s_nop 0")
    for i in range(4): A(f"v_readlane_b32 s{80+i}, v{v}, {16*i}")
    A("s_nop 1")
    A(f"v_mov_b32 v{v}, s80\nv_add_f32 v{v}, s81, v{v}\nv_add_f32 v{v}, s82, v{v}\nv_add_f32 v{v}, s83, v{v}")
def div448(v, tmp1, tmp2):
    A(f"v_mul_f32 v{tmp1}, 0x{f32bits(1.0/448):08x}, v{v}")
    A(f"v_mov_b32 v{tmp2}, 0x{f32bits(448.0):08x}")
    A(f"v_fma_f32 v{tmp2}, -v{tmp1}, v{tmp2}, v{v}")
    A(f"v_mul_f32 v{tmp2}, 0x{f32bits(1.0/448):08x}, v{tmp2}")
    A(f"v_add_f32 v{v}, v{tmp1}, v{tmp2}")
def rbf(vd, vs):
    A(f"v_cvt_pk_bf16_f32 v{vd}, 0, v{vs}")
def layernorm(r):
    E = 16
    for k in range(4):
        A(f"v_lshlrev_b32 v{E+2*k}, 16, v{r+k}\nv_and_b32 v{E+2*k+1}, s14, v{r+k}")
    A(f"v_add_f32 v24, v{E}, v{E+1}")
    for k in range(2, 8): A(f"v_add_f32 v24, v24, v{E+k}")
    wave_sum(24, 25)
    div448(24, 25, 26)
    A("v_mov_b32 v27, 0")
    for k in range(8):
        A(f"v_sub_f32 v25, v{E+k}, v24\nv_fmac_f32 v27, v25, v25")
    A("v_cmp_gt_u32 vcc, 56, v1\ns_nop 1\nv_cndmask_b32 v27, 0, v27, vcc")
    wave_sum(27, 25)
    div448(27, 25, 26)
    rbf(27, 27)
    rbf(24, 24)
    A(f"v_add_f32 v27, 0x{f32bits(1e-5):08x}, v27")
    rbf(27, 27)
    A("v_sqrt_f32 v27, v27\ns_nop 0")
    rbf(27, 27)
    A("v_rcp_f32 v28, v27\ns_nop 0")
    for k in range(8):
        A(f"v_sub_f32 v{E+k}, v{E+k}, v24")
        rbf(E+k, E+k)
        A(f"v_mul_f32 v25, v{E+k}, v28")
        A(f"v_fma_f32 v26, -v25, v27, v{E+k}")
        A(f"v_fma_f32 v{E+k}, v26, v28, v25")
    for k in range(4):
        A(f"v_cvt_pk_bf16_f32 v{r+k}, v{E+2*k}, v{E+2*k+1}")
    for k in range(4):
        A(f"v_lshlrev_b32 v{E+2*k}, 16, v{r+k}\nv_and_b32 v{E+2*k+1}, s14, v{r+k}")

A("s_cmp_eq_u32 s6, 0\ns_cbranch_scc1 L_qagent")
A("s_barrier")
for n in range(NBP):
    if PACE and n >= 1: A(f"s_waitcnt vmcnt({PACE-1})")
    issue_tile(n, track=False)
A("s_branch L_qjoin")
A("L_qagent:")
W = 64
XV = 128
A(f"buffer_load_dwordx4 v[8:11], v31, {srd(SX)}, 0 offen")
A(f"buffer_load_dwordx4 v[12:15], v31, {srd(SX)}, 0 offen offset:896")
A("""v_lshrrev_b32 v5, 1, v1
v_lshlrev_b32 v126, 13, v5
v_and_b32 v6, 1, v1
v_lshl_add_u32 v126, v6, 4, v126
v_lshlrev_b32 v127, 2, v5
s_lshl_b32 s15, s5, 1
s_add_u32 s15, s15, s4""")
A("s_mov_b32 s84, s15\ns_add_u32 s85, s15, 1\ns_mov_b32 s86, 0")
A("s_memrealtime s[16:17]\nv_mov_b32 v125, 64\ns_waitcnt lgkmcnt(0)\ns_or_b32 s16, s16, 1")
A("v_mov_b32 v122, s16\nv_mov_b32 v123, 0\ns_mov_b64 exec, 1")
A(f"buffer_atomic_cmpswap v[122:123], v125, {srd(SDBG)}, 0 offen sc0")
A("s_mov_b64 exec, -1")
def wq_loads():
    A("s_lshl_b32 s9, s84, 5\ns_lshl_b32 s10, s3, 9\ns_add_u32 s9, s9, s10")
    for j in range(14):
        A(f"buffer_load_dwordx4 v[{W+4*j}:{W+4*j+3}], v126, {srd(SWQ)}, s9 offen")
        if j < 13: A("s_add_u32 s9, s9, 262144")
wq_loads()
A("s_barrier")
stamp(7)
A("s_waitcnt vmcnt(15)")
stamp(8)
for bb in range(2):
    layernorm(8 + 4*bb)
    A("s_mov_b32 exec_hi, 0x00ffffff")
    A("v_lshlrev_b32 v25, 5, v1")
    A(f"ds_write_b128 v25, v[16:19] offset:{XNF+1792*bb}")
    A(f"ds_write_b128 v25, v[20:23] offset:{XNF+1792*bb+16}")
    A("s_mov_b32 exec_hi, -1")
A("s_waitcnt lgkmcnt(0)")
for bb in range(2):
    for j in range(14): A(f"ds_read_b32 v{XV+14*bb+j}, v127 offset:{XNF+1792*bb+128*j}")
stamp(1)
A("s_branch L_share_body")
A("L_share_loop:")
wq_loads()
A("s_waitcnt vmcnt(0)")
A("L_share_body:")
for k in range(16): A(f"v_mov_b32 v{4+k}, 0")
A("s_waitcnt lgkmcnt(0)")
for j in range(14):
    A(f"s_waitcnt vmcnt({13-j})")
    for k in range(4):
        w = W + 4*j + k
        A(f"v_lshlrev_b32 v28, 16, v{w}\nv_and_b32 v29, s14, v{w}")
        A(f"v_fmac_f32 v{4+2*k}, v{XV+j}, v28\nv_fmac_f32 v{5+2*k}, v{XV+j}, v29")
        A(f"v_fmac_f32 v{12+2*k}, v{XV+14+j}, v28\nv_fmac_f32 v{13+2*k}, v{XV+14+j}, v29")
stamp(9)
for r in (2, 4, 8):
    A("s_nop 1")
    for k in range(16): A(f"v_add_f32_dpp v{32+k}, v{4+k}, v{4+k} row_ror:{r} row_mask:0xf bank_mask:0xf")
    for k in range(16): A(f"v_mov_b32 v{4+k}, v{32+k}")
for sw in ("v_permlane16_swap_b32", "v_permlane32_swap_b32"):
    for k in range(16): A(f"v_mov_b32 v{32+k}, v{4+k}")
    A("s_nop 1")
    for k in range(16): A(f"{sw} v{4+k}, v{32+k}")
    A("s_nop 1")
    for k in range(16): A(f"v_add_f32 v{4+k}, v{4+k}, v{32+k}")
for k in range(8): A(f"v_cvt_pk_bf16_f32 v{32+k}, v{4+2*k}, v{5+2*k}")
A("s_cmp_eq_u32 s86, 0\ns_cbranch_scc0 L_q_fallback")
A("v_readfirstlane_b32 s9, v122\ns_nop 3\ns_cmp_eq_u32 s9, 0\ns_cselect_b32 s16, s16, s9")
A(f"v_mov_b32 v28, s16\nv_mov_b32 v29, 0\nds_write_b32 v29, v28 offset:{NONCE}")
A("v_bfe_u32 v28, v1, 1, 1\nv_cmp_eq_u32 vcc, 1, v28\ns_nop 1")
A("v_cndmask_b32 v40, v32, v34, vcc\nv_cndmask_b32 v41, v33, v35, vcc\nv_cndmask_b32 v42, v36, v38, vcc\nv_cndmask_b32 v43, v37, v39, vcc")
A("v_bfe_u32 v29, v1, 2, 1\nv_cmp_eq_u32 vcc, 1, v29\ns_nop 1")
A("v_cndmask_b32 v44, v40, v42, vcc\nv_cndmask_b32 v46, v41, v43, vcc\nv_mov_b32 v45, s16\nv_mov_b32 v47, s16")
A("v_lshlrev_b32 v29, 10, v29\nv_lshl_add_u32 v29, v28, 4, v29\nv_and_b32 v28, 1, v1\nv_lshl_add_u32 v29, v28, 5, v29")
A(f"s_lshl_b32 s9, s3, 11\ns_lshl_b32 s10, s15, 6\ns_add_u32 s9, s9, s10\ns_add_u32 s9, s9, 0x{WS_QS:x}")
A("s_mov_b64 exec, 0xff")
A(f"buffer_store_dwordx4 v[44:47], v29, {srd(SWS)}, s9 offen sc1")
A("s_mov_b64 exec, -1")
stamp(2)
A(f"s_lshl_b32 s9, s3, 11\ns_lshl_b32 s10, s4, 10\ns_add_u32 s9, s9, s10\ns_add_u32 s9, s9, 0x{WS_QS:x}")
A("s_mov_b32 s87, 0")
A("L_qpoll:")
A(f"buffer_load_dwordx4 v[32:35], v3, {srd(SWS)}, s9 offen sc1")
A("s_waitcnt vmcnt(0)")
A("v_cmp_eq_u32 vcc, s16, v33\nv_cmp_eq_u32 s[80:81], s16, v35\ns_nop 3\ns_and_b64 vcc, vcc, s[80:81]\ns_cmp_eq_u64 vcc, -1\ns_cbranch_scc1 L_qgot")
if SLP: A(f"s_sleep {SLP}")
A(f"s_add_u32 s87, s87, 1\ns_cmp_lt_u32 s87, {SPIN_LIMIT}\ns_cbranch_scc1 L_qpoll")
A("s_mov_b32 s84, 0\ns_mov_b32 s85, 16\ns_mov_b32 s86, 1\ns_branch L_share_loop")
A("L_qgot:")
stamp(10)
A("v_mov_b32 v33, v34\nv_lshlrev_b32 v28, 3, v1")
A(f"ds_write_b64 v28, v[32:33] offset:{QB}")
A("s_branch L_qjoin")
A("L_q_fallback:")
A("s_cmp_eq_u32 s4, 0\ns_cbranch_scc1 L_q_fb0")
for k in range(4): A(f"v_mov_b32 v{32+k}, v{36+k}")
A("L_q_fb0:")
A("v_and_b32 v28, 1, v1\nv_lshlrev_b32 v28, 4, v28\ns_lshl_b32 s9, s84, 5\nv_add_u32 v28, s9, v28")
A("s_mov_b64 exec, 3")
A(f"ds_write_b128 v28, v[32:35] offset:{QB}")
A("s_mov_b64 exec, -1")
A("s_add_u32 s84, s84, 1\ns_cmp_lt_u32 s84, s85\ns_cbranch_scc1 L_share_loop")
A("L_qjoin:")
stamp(11)
A("s_waitcnt lgkmcnt(0)\ns_barrier")
A("v_and_b32 v12, 31, v1\nv_lshlrev_b32 v12, 4, v12")
A(f"ds_read_b128 v[24:27], v12 offset:{QB}")
A(f"v_mov_b32 v13, 0\nds_read_b32 v13, v13 offset:{NONCE}\ns_waitcnt lgkmcnt(0)\nv_readfirstlane_b32 s16, v13")
A("s_cmp_eq_u32 s6, 0\ns_cbranch_scc0 L_q_b")
for n in range(NBP): issue_tile(n, track=False)
A("L_q_b:")
vm.q = []
for n in range(NBP):
    for j in range(8): vm.issue(f"t{n}")
nxt = [NBP]
def advance(t):
    while nxt[0] <= min(t + LA, 15):
        issue_tile(nxt[0]); nxt[0] += 1
advance(-1)
A("s_waitcnt lgkmcnt(0)")
stamp(3)

S = 32
for t in range(8):
    b = tbuf(t)
    if TB and t >= TB0: A("s_barrier")
    vm.wait(f"t{t}")
    for k in range(4):
        for j in range(8):
            c = "0" if k == 0 else f"v{4+j}"
            A(f"v_dot2_f32_bf16 v{4+j}, v{b+4*j+k}, v{24+k}, {c}")
    advance(t)
    A("s_nop 1")
    for i in range(4): A(f"v_permlane16_swap_b32 v{4+2*i}, v{5+2*i}")
    A("s_nop 0")
    for i in range(4): A(f"v_add_f32 v{12+i}, v{4+2*i}, v{5+2*i}")
    for r in (8, 4, 2, 1):
        A("s_nop 0")
        for i in range(4): A(f"v_add_f32_dpp v{12+i}, v{12+i}, v{12+i} row_ror:{r} row_mask:0xf bank_mask:0xf")
    for i in range(4): rbf(S + 4*t + i, 12 + i)
stamp(4)
A(f"v_max3_f32 v30, v{S}, v{S+1}, v{S+2}")
for i in range(3, 31, 2): A(f"v_max3_f32 v30, v30, v{S+i}, v{S+i+1}")
A(f"v_max_f32 v30, v30, v{S+31}")
def cross_rows(op, v, tmp):
    for sw in ("v_permlane16_swap_b32", "v_permlane32_swap_b32"):
        A(f"v_mov_b32 v{tmp}, v{v}\ns_nop 1\n{sw} v{v}, v{tmp}\ns_nop 0\n{op} v{v}, v{v}, v{tmp}")
cross_rows("v_max_f32", 30, 12)
for i in range(32):
    A(f"v_sub_f32 v12, v{S+i}, v30\nv_mul_f32 v12, s13, v12\nv_exp_f32 v{S+i}, v12")
A("s_nop 0")
A(f"v_add_f32 v31, v{S}, v{S+1}")
for i in range(2, 32): A(f"v_add_f32 v31, v31, v{S+i}")
cross_rows("v_add_f32", 31, 12)
A("""v_lshrrev_b32 v12, 5, v1
v_lshlrev_b32 v12, 5, v12
v_bfe_u32 v13, v1, 4, 1
v_lshl_add_u32 v12, v13, 2, v12
s_lshl_b32 s15, s6, 9
v_add_u32 v12, s15, v12
s_mov_b32 exec_lo, 0x00010001
s_mov_b32 exec_hi, 0x00010001""")
for t in range(8):
    for i in range(4): A(f"ds_write_b32 v12, v{S+4*t+i} offset:{PL+64*t+8*i}")
A("s_mov_b64 exec, -1")
A("v_lshrrev_b32 v29, 5, v1\nv_lshlrev_b32 v29, 5, v29\nv_add_u32 v29, s15, v29")
for k in range(8): A(f"v_mov_b32 v{4+k}, 0")
PV = [12, 20]
A("s_waitcnt lgkmcnt(0)")
A(f"ds_read_b128 v[12:15], v29 offset:{PL}\nds_read_b128 v[16:19], v29 offset:{PL+16}")
for t in range(8):
    n = 8 + t
    b = tbuf(n)
    pv = PV[t & 1]
    A("s_waitcnt lgkmcnt(0)")
    if t < 7:
        pn = PV[(t+1) & 1]
        A(f"ds_read_b128 v[{pn}:{pn+3}], v29 offset:{PL+64*(t+1)}\nds_read_b128 v[{pn+4}:{pn+7}], v29 offset:{PL+64*(t+1)+16}")
    if TB: A("s_barrier")
    vm.wait(f"t{n}")
    for j in range(8):
        for k in range(4):
            w = b + 4*j + k
            A(f"v_lshlrev_b32 v28, 16, v{w}\nv_fmac_f32 v{4+2*k}, v{pv+j}, v28")
            A(f"v_and_b32 v28, s14, v{w}\nv_fmac_f32 v{5+2*k}, v{pv+j}, v28")
    advance(n)
stamp(5)
A("s_lshl_b32 s9, s6, 11\nv_lshlrev_b32 v12, 5, v1\nv_add_u32 v12, s9, v12")
A(f"ds_write_b128 v12, v[4:7] offset:{OP}\nds_write_b128 v12, v[8:11] offset:{OP+16}")
A("s_lshl_b32 s9, s6, 3\nv_mov_b32 v12, s9\ns_mov_b64 exec, 1")
A(f"ds_write_b64 v12, v[30:31] offset:{MLS}")
A("s_mov_b64 exec, -1")
A("s_waitcnt lgkmcnt(0)\ns_barrier")
A("s_cmp_lt_u32 s6, 4\ns_cbranch_scc0 L_pub_a")
CB = 64
A("v_mov_b32 v12, 0")
for i in range(4): A(f"ds_read_b128 v[{CB+4*i}:{CB+4*i+3}], v12 offset:{MLS+16*i}")
A("v_lshlrev_b32 v12, 2, v0")
for w in range(8):
    A(f"ds_read_b32 v{CB+16+2*w}, v12 offset:{OP+2048*w}\nds_read_b32 v{CB+17+2*w}, v12 offset:{OP+2048*w+1024}")
A("s_waitcnt lgkmcnt(0)")
A(f"v_max3_f32 v30, v{CB}, v{CB+2}, v{CB+4}\nv_max3_f32 v30, v30, v{CB+6}, v{CB+8}\nv_max3_f32 v30, v30, v{CB+10}, v{CB+12}\nv_max_f32 v30, v30, v{CB+14}")
A("v_mov_b32 v31, 0\nv_mov_b32 v13, 0")
for w in range(8):
    A(f"v_sub_f32 v14, v{CB+2*w}, v30\nv_mul_f32 v14, s13, v14\nv_exp_f32 v14, v14")
    A(f"v_add_f32 v15, v{CB+16+2*w}, v{CB+17+2*w}")
    A(f"v_fmac_f32 v31, v14, v{CB+2*w+1}\nv_fmac_f32 v13, v14, v15")
A("s_lshl_b32 s15, s7, 3\ns_add_u32 s15, s15, s5")
A(f"s_lshl_b32 s9, s15, 11\ns_add_u32 s9, s9, 0x{WS_PO:x}")
A("v_mov_b32 v14, v13\nv_mov_b32 v15, s16\nv_lshlrev_b32 v12, 3, v0")
A(f"buffer_store_dwordx2 v[14:15], v12, {srd(SWS)}, s9 offen sc1")
A("s_cmp_eq_u32 s6, 0\ns_cbranch_scc0 L_pub_a")
A("v_mov_b32 v16, v30\nv_mov_b32 v17, s16\nv_mov_b32 v18, v31\nv_mov_b32 v19, s16")
A(f"s_lshl_b32 s9, s15, 4\ns_add_u32 s9, s9, 0x{WS_ML:x}\ns_mov_b64 exec, 1")
A(f"buffer_store_dwordx4 v[16:19], v12, {srd(SWS)}, s9 offen sc1")
A("v_mov_b32 v26, 1\nv_mov_b32 v27, 4\nv_mov_b32 v25, 0")
A(f"buffer_atomic_add v26, v27, {srd(SDBG)}, 0 offen sc0")
A("s_waitcnt vmcnt(0)")
A(f"ds_write_b32 v25, v26 offset:{TICK}")
A("s_mov_b64 exec, -1")
A("L_pub_a:")
stamp(6)
A("L_role_a:")
A("s_waitcnt lgkmcnt(0)\ns_barrier")
A(f"v_mov_b32 v5, 0\nds_read_b32 v4, v5 offset:{TICK}\ns_waitcnt lgkmcnt(0)")
A("v_readfirstlane_b32 s5, v4")
A("v_mov_b32 v5, 0x7f000000\nv_cmp_gt_u32 vcc, 56, v1\ns_nop 1\nv_cndmask_b32 v31, v5, v3, vcc")
if DIAG:
    A("s_mov_b64 exec, 1")
    for i in range(12): A(f"v_mov_b32 v{4+i}, s{88+i}")
    A(f"v_mov_b32 v20, 0\ns_lshl_b32 s9, s2, 3\ns_add_u32 s9, s9, s6\ns_lshl_b32 s9, s9, 6\ns_add_u32 s9, s9, 0x{WS_DG:x}")
    for i in range(3): A(f"buffer_store_dwordx4 v[{4+4*i}:{7+4*i}], v20, {srd(SWS)}, s9 offen offset:{16*i}")
    A("s_mov_b64 exec, -1")
    for i in range(12): A(f"s_mov_b32 s{88+i}, 0")
    A("s_add_u32 s2, s5, 256")
    stamp(0)
A(f"s_cmp_ge_u32 s5, {NARR}\ns_cbranch_scc1 L_end")
A(f"s_cmp_ge_u32 s5, {NFFN}\ns_cbranch_scc1 L_cmb")
A("s_branch L_ffn")

def publish_tail(tag=""):
    A(f"s_mul_i32 s9, s6, 3584\ns_add_u32 s9, s9, {DP}\nv_lshlrev_b32 v28, 5, v1\nv_add_u32 v28, s9, v28")
    A("s_mov_b32 exec_hi, 0x00ffffff")
    A(f"ds_write_b128 v28, v[4:7]\nds_write_b128 v28, v[8:11] offset:16")
    A(f"ds_write_b128 v28, v[12:15] offset:1792\nds_write_b128 v28, v[16:19] offset:{1792+16}")
    A("s_mov_b32 exec_hi, -1")
    A("s_waitcnt lgkmcnt(0)\ns_barrier")
    A("v_cmp_gt_u32 vcc, 224, v0\ns_and_saveexec_b64 s[80:81], vcc\ns_cbranch_execz L_pt_c" + tag)
    A(f"v_lshlrev_b32 v28, 4, v0\nv_add_u32 v29, {DP}, v28")
    for w in range(8):
        A(f"ds_read_b128 v[{64+4*w}:{67+4*w}], v29 offset:{3584*w}")
    A("s_waitcnt lgkmcnt(0)")
    for w in range(1, 8):
        for k in range(4): A(f"v_add_f32 v{64+k}, v{64+k}, v{64+4*w+k}")
    A("v_mov_b32 v72, v64\nv_mov_b32 v73, s16\nv_mov_b32 v74, v65\nv_mov_b32 v75, s16\nv_mov_b32 v76, v66\nv_mov_b32 v77, s16\nv_mov_b32 v78, v67\nv_mov_b32 v79, s16")
    A("v_lshlrev_b32 v28, 5, v0")
    A(f"buffer_store_dwordx4 v[72:75], v28, {srd(SWS)}, s15 offen sc1")
    A(f"buffer_store_dwordx4 v[76:79], v28, {srd(SWS)}, s15 offen offset:16 sc1")
    A("L_pt_c" + tag + ":")
    A("s_mov_b64 exec, -1")

A("L_ffn:")
FG, FD = 96, 192
A(f"buffer_load_dwordx4 v[8:11], v31, {srd(SX)}, 0 offen")
A(f"buffer_load_dwordx4 v[12:15], v31, {srd(SX)}, 0 offen offset:896")
A("""v_lshrrev_b32 v6, 2, v1
s_movk_i32 s9, 3584
v_mul_lo_u32 v6, v6, s9
v_and_b32 v7, 3, v1
v_lshl_add_u32 v6, v7, 4, v6
s_and_b32 s9, s6, 3
s_mul_i32 s9, s9, 401408
s_lshl_b32 s10, s5, 6
s_add_u32 s9, s9, s10""")
for j in range(7):
    A(f"buffer_load_dwordx4 v[{FG+4*j}:{FG+4*j+3}], v6, {srd(SGU)}, s9 offen")
    if j < 6: A("s_add_u32 s9, s9, 57344")
A("s_lshl_b32 s9, s5, 3\ns_add_u32 s9, s9, s6\ns_mul_i32 s9, s9, 3584")
for j in range(4):
    A(f"buffer_load_dwordx4 v[{FD+4*j}:{FD+4*j+3}], v31, {srd(SWD)}, s9 offen offset:{896*j}")
A("s_waitcnt vmcnt(11)")
for bb in range(2):
    layernorm(8 + 4*bb)
    A("s_mov_b32 exec_hi, 0x00ffffff")
    A("v_lshlrev_b32 v25, 5, v1")
    A(f"ds_write_b128 v25, v[16:19] offset:{XNF+1792*bb}")
    A(f"ds_write_b128 v25, v[20:23] offset:{XNF+1792*bb+16}")
    A("s_mov_b32 exec_hi, -1")
A("""s_and_b32 s9, s6, 3
s_mul_i32 s9, s9, 448
v_lshrrev_b32 v26, 2, v1
v_lshlrev_b32 v26, 2, v26
v_add_u32 v26, s9, v26""")
for k in range(16): A(f"v_mov_b32 v{4+k}, 0")
A("s_waitcnt lgkmcnt(0)")
for j in range(7):
    A(f"ds_read_b32 v{128+2*j}, v26 offset:{XNF+64*j}\nds_read_b32 v{129+2*j}, v26 offset:{XNF+1792+64*j}")
A("s_waitcnt lgkmcnt(0)\ns_waitcnt vmcnt(4)")
for j in range(7):
    for k in range(4):
        w = FG + 4*j + k
        A(f"v_lshlrev_b32 v22, 16, v{w}\nv_and_b32 v23, s14, v{w}")
        A(f"v_fmac_f32 v{4+2*k}, v{128+2*j}, v22\nv_fmac_f32 v{5+2*k}, v{128+2*j}, v23")
        A(f"v_fmac_f32 v{12+2*k}, v{129+2*j}, v22\nv_fmac_f32 v{13+2*k}, v{129+2*j}, v23")
A("""v_lshrrev_b32 v27, 2, v1
v_lshlrev_b32 v27, 8, v27
v_and_b32 v22, 3, v1
v_lshl_add_u32 v27, v22, 5, v27
s_lshl_b32 s9, s6, 12
v_add_u32 v27, s9, v27""")
A(f"ds_write_b128 v27, v[4:7] offset:{GP}\nds_write_b128 v27, v[8:11] offset:{GP+16}")
A(f"ds_write_b128 v27, v[12:15] offset:{GP+128}\nds_write_b128 v27, v[16:19] offset:{GP+144}")
A("s_waitcnt lgkmcnt(0)\ns_barrier")
A("s_cmp_lt_u32 s6, 2\ns_cbranch_scc0 L_ffn_a")
A("s_lshl_b32 s9, s6, 14\nv_lshlrev_b32 v26, 2, v1\nv_add_u32 v26, s9, v26")
for g in range(4):
    for i in range(16):
        A(f"ds_read_b32 v{128+16*g+i}, v26 offset:{GP+4096*g+256*i}")
A("s_waitcnt lgkmcnt(0)")
A("v_add_f32 v4, v128, v129")
for i in range(2, 64): A(f"v_add_f32 v4, v4, v{128+i}")
rbf(4, 4)
A("s_lshl_b32 s9, s6, 8\nv_lshlrev_b32 v26, 2, v1\nv_add_u32 v26, s9, v26")
A(f"ds_write_b32 v26, v4 offset:{GUS}")
A("L_ffn_a:")
A("s_waitcnt lgkmcnt(0)\ns_barrier")
A("s_cmp_eq_u32 s6, 0\ns_cbranch_scc0 L_ffn_b")
A("v_lshlrev_b32 v26, 2, v1")
A(f"ds_read_b32 v4, v26 offset:{GUS}\nds_read_b32 v5, v26 offset:{GUS+256}")
A("s_waitcnt lgkmcnt(0)")
A(f"v_mul_f32 v6, 0x{f32bits(-1.4426950408889634):08x}, v4")
A("v_exp_f32 v6, v6\ns_nop 0\nv_add_f32 v6, 1.0, v6\nv_rcp_f32 v7, v6\ns_nop 0")
A("v_mul_f32 v8, v4, v7\nv_fma_f32 v9, -v8, v6, v4\nv_fma_f32 v8, v9, v7, v8")
rbf(8, 8)
A("v_mul_f32 v8, v8, v5")
rbf(8, 8)
A(f"ds_write_b32 v26, v8 offset:{HS}")
A("L_ffn_b:")
A("s_waitcnt lgkmcnt(0)\ns_barrier")
A("s_lshl_b32 s9, s6, 4\nv_mov_b32 v26, s9")
A(f"ds_read_b128 v[20:23], v26 offset:{HS}\nds_read_b128 v[24:27], v26 offset:{HS+128}")
for k in range(16): A(f"v_mov_b32 v{4+k}, 0")
A("s_waitcnt lgkmcnt(0)\ns_waitcnt vmcnt(0)")
for j in range(4):
    for k in range(4):
        w = FD + 4*j + k
        A(f"v_lshlrev_b32 v28, 16, v{w}\nv_and_b32 v29, s14, v{w}")
        A(f"v_fmac_f32 v{4+2*k}, v{20+j}, v28\nv_fmac_f32 v{5+2*k}, v{20+j}, v29")
        A(f"v_fmac_f32 v{12+2*k}, v{24+j}, v28\nv_fmac_f32 v{13+2*k}, v{24+j}, v29")
A(f"s_mul_i32 s15, s5, 7168\ns_add_u32 s15, s15, 0x{WS_FP:x}\ns_mov_b32 s5, 99")
A("s_branch L_tail")


A("L_cmb:")
A(f"s_sub_u32 s5, s5, {NFFN}\ns_lshr_b32 s3, s5, 2\ns_and_b32 s4, s5, 3")
WO = 224
A("s_lshl_b32 s9, s5, 3\ns_add_u32 s9, s9, s6\ns_mul_i32 s9, s9, 7168")
for i in range(8):
    if i == 4: A("s_add_u32 s9, s9, 3584")
    A(f"buffer_load_dwordx4 v[{WO+4*i}:{WO+4*i+3}], v31, {srd(SWO)}, s9 offen offset:{896*(i%4)}")
A("s_cmp_eq_u32 s6, 0\ns_cbranch_scc0 L_cmb_w")
A("v_bfe_u32 v28, v1, 3, 1\nv_lshlrev_b32 v28, 11, v28\nv_and_b32 v29, 7, v1\nv_lshl_add_u32 v28, v29, 4, v28")
A(f"s_lshl_b32 s9, s3, 7\ns_add_u32 s9, s9, 0x{WS_ML:x}")
A("s_mov_b64 exec, 0xffff")
A("L_cpoll:")
A(f"buffer_load_dwordx4 v[4:7], v28, {srd(SWS)}, s9 offen sc1")
A("s_waitcnt vmcnt(0)")
A("v_cmp_eq_u32 vcc, s16, v5\nv_cmp_eq_u32 s[80:81], s16, v7\ns_nop 3\ns_and_b64 vcc, vcc, s[80:81]\ns_cmp_eq_u64 vcc, exec\ns_cbranch_scc1 L_cgot")
if CSLP: A(f"s_sleep {CSLP}")
A("s_branch L_cpoll")
A("L_cgot:")
A("s_mov_b64 exec, -1")
A("L_cmb_w:")
A("s_barrier")
stamp(1)
A("""v_and_b32 v4, 7, v1
v_bfe_u32 v5, v1, 3, 1
v_lshlrev_b32 v6, 18, v5
v_lshl_add_u32 v6, v4, 3, v6
v_lshlrev_b32 v7, 11, v5""")
A("L_cload:")
A(f"s_lshl_b32 s9, s3, 14\ns_lshl_b32 s10, s4, 9\ns_add_u32 s9, s9, s10\ns_lshl_b32 s10, s6, 6\ns_add_u32 s9, s9, s10\ns_add_u32 s9, s9, 0x{WS_PO:x}")
for sp in range(8):
    A(f"buffer_load_dwordx2 v[{128+2*sp}:{129+2*sp}], v6, {srd(SWS)}, s9 offen offset:{2048*(sp%2)} sc1")
    if sp % 2 == 1 and sp < 7: A("s_add_u32 s9, s9, 4096")
A(f"s_lshl_b32 s9, s3, 7\ns_add_u32 s9, s9, 0x{WS_ML:x}")
for sp in range(8): A(f"buffer_load_dwordx4 v[{144+4*sp}:{147+4*sp}], v7, {srd(SWS)}, s9 offen offset:{16*sp} sc1")
A("s_waitcnt vmcnt(0)")
A("s_mov_b64 s[82:83], -1")
for sp in range(8):
    A(f"v_cmp_eq_u32 vcc, s16, v{129+2*sp}\ns_nop 3\ns_and_b64 s[82:83], s[82:83], vcc")
A("s_cmp_eq_u64 s[82:83], -1\ns_cbranch_scc0 L_cload")
m0 = 144
A(f"v_max3_f32 v10, v{m0}, v{m0+4}, v{m0+8}\nv_max3_f32 v10, v10, v{m0+12}, v{m0+16}\nv_max3_f32 v10, v10, v{m0+20}, v{m0+24}\nv_max_f32 v10, v10, v{m0+28}")
A("v_mov_b32 v11, 0\nv_mov_b32 v12, 0")
for sp in range(8):
    A(f"v_sub_f32 v13, v{m0+4*sp}, v10\nv_mul_f32 v13, s13, v13\nv_exp_f32 v13, v13\ns_nop 0")
    A(f"v_fmac_f32 v11, v13, v{m0+4*sp+2}\nv_fmac_f32 v12, v13, v{128+2*sp}")
A("v_rcp_f32 v13, v11\ns_nop 0\nv_mul_f32 v14, v12, v13\nv_fma_f32 v15, -v14, v11, v12\nv_fma_f32 v14, v15, v13, v14")
rbf(14, 14)
A("s_nop 0")
for i in range(16): A(f"v_readlane_b32 s{20+i}, v14, {i}")
for k in range(16): A(f"v_mov_b32 v{4+k}, 0")
for i in range(8):
    for k in range(4):
        w = WO + 4*i + k
        A(f"v_lshlrev_b32 v28, 16, v{w}\nv_and_b32 v29, s14, v{w}")
        A(f"v_fmac_f32 v{4+2*k}, s{20+i}, v28\nv_fmac_f32 v{5+2*k}, s{20+i}, v29")
        A(f"v_fmac_f32 v{12+2*k}, s{28+i}, v28\nv_fmac_f32 v{13+2*k}, s{28+i}, v29")
A(f"s_mul_i32 s15, s5, 7168\ns_add_u32 s15, s15, 0x{WS_YC:x}")
A("L_tail:")
stamp(2)
publish_tail()
stamp(3)
A(f"s_cmp_ge_u32 s5, {NFIN}\ns_cbranch_scc1 L_fin_end")
A("s_and_b32 s4, s5, 1\ns_lshr_b32 s5, s5, 1")
A("v_lshlrev_b32 v6, 3, v1\ns_lshl_b32 s10, s5, 9\nv_add_u32 v6, s10, v6")
A("v_lshrrev_b32 v7, 2, v6\ns_mul_i32 s10, s4, 896")
A(f"buffer_load_ushort v100, v7, {srd(SX)}, s10 offen")
A("s_mul_i32 s15, s4, 3584")
A("L_fpoll:")
A(f"s_mul_i32 s10, s6, {8*7168}\ns_add_u32 s10, s10, s15\ns_add_u32 s10, s10, 0x{WS_YC:x}")
for i in range(8):
    A(f"buffer_load_dwordx2 v[{64+2*i}:{65+2*i}], v6, {srd(SWS)}, s10 offen sc1")
    A("s_add_u32 s10, s10, 7168")
A(f"s_mul_i32 s10, s6, {7*7168}\ns_add_u32 s10, s10, s15\ns_add_u32 s10, s10, 0x{WS_FP:x}")
for i in range(7):
    A(f"buffer_load_dwordx2 v[{80+2*i}:{81+2*i}], v6, {srd(SWS)}, s10 offen sc1")
    A("s_add_u32 s10, s10, 7168")
A("s_waitcnt vmcnt(0)")
A("s_mov_b64 s[82:83], -1")
for i in range(15):
    A(f"v_cmp_eq_u32 vcc, s16, v{65+2*i}\ns_nop 3\ns_and_b64 s[82:83], s[82:83], vcc")
A("s_cmp_eq_u64 s[82:83], -1\ns_cbranch_scc1 L_fgot")
if FSLP: A(f"s_sleep {FSLP}")
A("s_branch L_fpoll")
A("L_fgot:")
stamp(5)
A("v_add_f32 v8, v64, v66")
for i in range(2, 8): A(f"v_add_f32 v8, v8, v{64+2*i}")
A("v_add_f32 v9, v80, v82")
for i in range(2, 7): A(f"v_add_f32 v9, v9, v{80+2*i}")
A("s_lshl_b32 s9, s6, 8\nv_lshlrev_b32 v10, 2, v1\nv_add_u32 v10, s9, v10")
A(f"ds_write_b32 v10, v8 offset:{PL}\nds_write_b32 v10, v9 offset:{PL+2048}")
A("s_waitcnt lgkmcnt(0)\ns_barrier")
A("s_cmp_eq_u32 s6, 0\ns_cbranch_scc0 L_fin_end")
A("v_lshlrev_b32 v10, 2, v1")
for g in range(8): A(f"ds_read_b32 v{12+g}, v10 offset:{PL+256*g}\nds_read_b32 v{20+g}, v10 offset:{PL+2048+256*g}")
A("s_waitcnt lgkmcnt(0)")
for g in range(1, 8): A(f"v_add_f32 v12, v12, v{12+g}\nv_add_f32 v20, v20, v{20+g}")
rbf(12, 12); rbf(20, 20)
A("v_lshlrev_b32 v100, 16, v100\nv_add_f32 v12, v100, v12")
rbf(12, 12)
A("v_add_f32 v12, v12, v20\nv_cvt_pk_bf16_f32 v12, v12, v12")
A("s_mul_i32 s10, s4, 896")
A(f"buffer_store_short v12, v7, {srd(SOUT)}, s10 offen")
stamp(6)
A("L_fin_end:")
if DIAG:
    A("s_mov_b64 exec, 1")
    for i in range(12): A(f"v_mov_b32 v{4+i}, s{88+i}")
    A(f"v_mov_b32 v20, 0\ns_lshl_b32 s9, s2, 3\ns_add_u32 s9, s9, s6\ns_lshl_b32 s9, s9, 6\ns_add_u32 s9, s9, 0x{WS_DG:x}")
    for i in range(3): A(f"buffer_store_dwordx4 v[{4+4*i}:{7+4*i}], v20, {srd(SWS)}, s9 offen offset:{16*i}")
A("L_end:\ns_endpgm")
A(f'''.section .rodata,"a"
.p2align 6
.amdhsa_kernel {KN}
  .amdhsa_next_free_vgpr 256
  .amdhsa_next_free_sgpr 102
  .amdhsa_accum_offset 256
  .amdhsa_group_segment_fixed_size 0
  .amdhsa_kernarg_size 96
  .amdhsa_user_sgpr_count 2
  .amdhsa_user_sgpr_kernarg_segment_ptr 1
  .amdhsa_system_sgpr_workgroup_id_x 1
.end_amdhsa_kernel''')
print("\n".join(out))
```

```python
import sys, struct

KN = "parallel_sum__mha_block_cached__swiglu_ffn__decode_kernel"
out = []
ARGS = sys.argv[1:]
DIAG = "diag" in ARGS
TB = "tb" in ARGS
NB = 6
NBP = 4
PACE = 0
SLP = 0
TB0 = 0
LA = 6
CSLP = 0
NOQ = "noq" in ARGS
STD = "std" in ARGS
W0E = "w0e" in ARGS
FSLP = 4
QNT = " nt" if "qnt" in ARGS else ""
for a in ARGS:
    if a.startswith("nb="): NB = int(a[3:])
    if a.startswith("nbp="): NBP = int(a[4:])
    if a.startswith("pace="): PACE = int(a[5:])
    if a.startswith("slp="): SLP = int(a[4:])
    if a.startswith("tb0="): TB0 = int(a[4:])
    if a.startswith("la="): LA = int(a[3:])
    if a.startswith("cslp="): CSLP = int(a[5:])
def A(s):
    for line in s.split("\n"):
        out.append(line)
def stamp(i):
    if not DIAG: return
    A("s_memrealtime s[100:101]\ns_waitcnt lgkmcnt(0)")
    A(f"s_mov_b32 s{88+i}, s100")

def f32bits(x):
    return struct.unpack("<I", struct.pack("<f", x))[0]

class VM:
    def __init__(self): self.q = []
    def issue(self, tag): self.q.append(tag)
    def wait(self, tag):
        idxs = [i for i, t in enumerate(self.q) if t == tag]
        if not idxs: return
        idx = max(idxs)
        n = len(self.q) - 1 - idx
        A(f"s_waitcnt vmcnt({min(n,63)})")
        self.q = self.q[idx+1:] if n <= 63 else self.q[len(self.q)-63:]
vm = VM()

XNF = 0
XNB = 3584
QB = 5376
TICK = 5888
MLS = 5952
GUS = 6016
HS = 6528
PL = 8192
OP = 16384
GP = 16384
DP = 49152
LDS_BYTES = 49152 + 28672

WS_QS = 0x00000
WS_PO = 0x10000
WS_ML = 0x90000
WS_YC = 0x91000
WS_FP = 0x101000
WS_DG = 0x180000
WS_BYTES = 0x200000
NONCE = 5900
NFFN = 56
NCMB = 64
NFIN = 14
NARR = NFFN + NCMB
SPIN_LIMIT = 20000
for a in ARGS:
    if a.startswith("spin="): SPIN_LIMIT = int(a[5:])

SX, SK, SV, SWQ, SWO, SGU, SWD, SOUT, SDBG, SWS = 40, 44, 48, 52, 56, 60, 64, 68, 72, 76
def srd(r): return f"s[{r}:{r+3}]"

B = [64, 96, 128, 160, 192, 224][:NB]
Q = 32

A(f"; @launch grid=(256,1,1) block=(512,1,1) lds={LDS_BYTES}")
A('.amdgcn_target "amdgcn-amd-amdhsa--gfx950"')
A(".text")
A(f".globl {KN}\n.p2align 8\n.type {KN},@function\n{KN}:")
A("s_cmp_ge_u32 s2, 256\ns_cbranch_scc1 L_end")
A("s_load_dwordx16 s[16:31], s[0:1], 0")
A("s_load_dwordx8 s[32:39], s[0:1], 64")
A("v_and_b32 v1, 63, v0")
A("v_lshrrev_b32 v4, 6, v0")
A("s_nop 0")
A("v_readfirstlane_b32 s6, v4")
A("""s_and_b32 s5, s2, 7
s_lshr_b32 s7, s2, 3
s_and_b32 s3, s7, 15
s_lshr_b32 s4, s7, 4
s_and_b32 s4, s4, 1
s_lshl_b32 s8, s7, 22
s_lshl_b32 s9, s5, 19
s_add_u32 s8, s8, s9""")
A("s_mov_b32 s11, 0x05040100\ns_mov_b32 s12, 0x07060302")
A(f"s_mov_b32 s13, 0x{f32bits(0.0625*1.4426950408889634):08x}")
A("s_mov_b32 s14, 0xffff0000")
A("""v_and_b32 v2, 15, v1
v_lshlrev_b32 v2, 9, v2
v_lshrrev_b32 v4, 4, v1
v_lshl_or_b32 v2, v4, 4, v2
v_lshlrev_b32 v3, 4, v1
v_mov_b32 v5, 0x7f000000
v_cmp_gt_u32 vcc, 56, v1
s_nop 1
v_cndmask_b32 v31, v5, v3, vcc""")
A("s_waitcnt lgkmcnt(0)")
if DIAG:
    for i in range(12): A(f"s_mov_b32 s{88+i}, 0")
stamp(0)
def mk(r, lo, nbytes):
    A(f"s_mov_b32 s{r}, s{lo}\ns_mov_b32 s{r+1}, s{lo+1}\ns_mov_b32 s{r+2}, 0x{nbytes:x}\ns_mov_b32 s{r+3}, 0x20000")
mk(SK, 18, 1<<27); mk(SX, 16, 1792); mk(SWQ, 22, 448*4096*2)
mk(SV, 20, 1<<27); mk(SWO, 24, 4096*448*2)
mk(SWD, 32, 1792*448*2); mk(SOUT, 34, 1792); mk(SDBG, 36, 256); mk(SWS, 38, WS_BYTES)
A("s_cmp_lt_u32 s6, 4")
A(f"s_cselect_b32 s{SGU}, s28, s30\ns_cselect_b32 s{SGU+1}, s29, s31\ns_mov_b32 s{SGU+2}, 0x{448*1792*2:x}\ns_mov_b32 s{SGU+3}, 0x20000")
A("s_sub_u32 s9, s6, 1")
for t in range(8):
    base = 7*t if t < 6 else 50 + 7*(t-6)
    if NOQ or STD: A(f"s_add_u32 s10, s6, {8*t}\ns_lshl_b32 s10, s10, 13\ns_add_u32 s{20+t}, s8, s10")
    else: A(f"s_add_u32 s10, s9, {base}\ns_cmp_eq_u32 s6, 0\ns_cselect_b32 s10, {42+t}, s10\ns_lshl_b32 s10, s10, 13\ns_add_u32 s{20+t}, s8, s10")

def tbuf(n): return B[(n + 3) % NB]
def issue_tile(n, track=True):
    b = tbuf(n)
    A(f"s_add_u32 s10, s{20+n%8}, 4096")
    for j in range(8):
        A(f"buffer_load_dwordx4 v[{b+4*j}:{b+4*j+3}], v3, {srd(SK if n < 8 else SV)}, {f's{20+n%8}' if j<4 else 's10'} offen offset:{1024*(j%4)} nt")
        if track: vm.issue(f"t{n}")

def row_reduce(op, v, tmp):
    for r in (8, 4, 2, 1):
        A("s_nop 1")
        A(f"{op}_dpp v{tmp}, v{v}, v{v} row_ror:{r} row_mask:0xf bank_mask:0xf")
        A(f"v_mov_b32 v{v}, v{tmp}")
def wave_sum(v, tmp):
    row_reduce("v_add_f32", v, tmp)
    A("s_nop 0")
    for i in range(4): A(f"v_readlane_b32 s{80+i}, v{v}, {16*i}")
    A("s_nop 1")
    A(f"v_mov_b32 v{v}, s80\nv_add_f32 v{v}, s81, v{v}\nv_add_f32 v{v}, s82, v{v}\nv_add_f32 v{v}, s83, v{v}")
def div448(v, tmp1, tmp2):
    A(f"v_mul_f32 v{tmp1}, 0x{f32bits(1.0/448):08x}, v{v}")
    A(f"v_mov_b32 v{tmp2}, 0x{f32bits(448.0):08x}")
    A(f"v_fma_f32 v{tmp2}, -v{tmp1}, v{tmp2}, v{v}")
    A(f"v_mul_f32 v{tmp2}, 0x{f32bits(1.0/448):08x}, v{tmp2}")
    A(f"v_add_f32 v{v}, v{tmp1}, v{tmp2}")
def rbf(vd, vs):
    A(f"v_cvt_pk_bf16_f32 v{vd}, 0, v{vs}")
def layernorm(r):
    E = 16
    for k in range(4):
        A(f"v_lshlrev_b32 v{E+2*k}, 16, v{r+k}\nv_and_b32 v{E+2*k+1}, s14, v{r+k}")
    A(f"v_add_f32 v24, v{E}, v{E+1}")
    for k in range(2, 8): A(f"v_add_f32 v24, v24, v{E+k}")
    wave_sum(24, 25)
    div448(24, 25, 26)
    A("v_mov_b32 v27, 0")
    for k in range(8):
        A(f"v_sub_f32 v25, v{E+k}, v24\nv_fmac_f32 v27, v25, v25")
    A("v_cmp_gt_u32 vcc, 56, v1\ns_nop 1\nv_cndmask_b32 v27, 0, v27, vcc")
    wave_sum(27, 25)
    div448(27, 25, 26)
    rbf(27, 27)
    rbf(24, 24)
    A(f"v_add_f32 v27, 0x{f32bits(1e-5):08x}, v27")
    rbf(27, 27)
    A("v_sqrt_f32 v27, v27\ns_nop 0")
    rbf(27, 27)
    A("v_rcp_f32 v28, v27\ns_nop 0")
    for k in range(8):
        A(f"v_sub_f32 v{E+k}, v{E+k}, v24")
        rbf(E+k, E+k)
        A(f"v_mul_f32 v25, v{E+k}, v28")
        A(f"v_fma_f32 v26, -v25, v27, v{E+k}")
        A(f"v_fma_f32 v{E+k}, v26, v28, v25")
    for k in range(4):
        A(f"v_cvt_pk_bf16_f32 v{r+k}, v{E+2*k}, v{E+2*k+1}")
    for k in range(4):
        A(f"v_lshlrev_b32 v{E+2*k}, 16, v{r+k}\nv_and_b32 v{E+2*k+1}, s14, v{r+k}")

QW = 7168
QFLAG = 5904
W = 64
A("s_mul_i32 s10, s4, 896")
A(f"buffer_load_dwordx4 v[8:11], v31, {srd(SX)}, s10 offen")
A("""v_lshrrev_b32 v5, 2, v1
v_lshlrev_b32 v126, 13, v5
v_and_b32 v6, 3, v1
v_lshl_add_u32 v126, v6, 4, v126
v_lshlrev_b32 v127, 2, v5
s_lshl_b32 s9, s6, 6
v_add_u32 v127, s9, v127""")
A("s_mov_b32 s84, s5\ns_mov_b32 s86, 0")
A("s_cmp_eq_u32 s6, 0\ns_cbranch_scc0 L_nononce")
A("s_memrealtime s[16:17]\nv_mov_b32 v125, 64\ns_waitcnt lgkmcnt(0)\ns_or_b32 s16, s16, 1")
A("v_mov_b32 v122, s16\nv_mov_b32 v123, 0\ns_mov_b64 exec, 1")
A(f"buffer_atomic_cmpswap v[122:123], v125, {srd(SDBG)}, 0 offen sc0")
A("s_mov_b64 exec, -1")
A("L_nononce:")
def wq_loads():
    A("s_lshl_b32 s9, s84, 6\ns_lshl_b32 s10, s3, 9\ns_add_u32 s9, s9, s10\ns_lshl_b32 s10, s6, 17\ns_add_u32 s9, s9, s10")
    for j in range(4):
        A(f"buffer_load_dwordx4 v[{W+4*j}:{W+4*j+3}], v126, {srd(SWQ)}, s9 offen")
        if j < 3: A("s_add_u32 s9, s9, 1048576")
wq_loads()
for n in range(NBP): issue_tile(n, track=False)
stamp(7)
A(f"s_waitcnt vmcnt({4+8*NBP})")
stamp(8)
layernorm(8)
A("v_cmp_gt_u32 vcc, 56, v1\ns_nop 1")
for k in range(8): A(f"v_cndmask_b32 v{16+k}, 0, v{16+k}, vcc")
A("v_lshlrev_b32 v25, 5, v1")
A(f"ds_write_b128 v25, v[16:19] offset:{XNF}\nds_write_b128 v25, v[20:23] offset:{XNF+16}")
A("s_waitcnt lgkmcnt(0)")
for j in range(4): A(f"ds_read_b32 v{20+j}, v127 offset:{XNF+512*j}")
stamp(1)
A("s_branch L_share_body")
A("L_share_loop:")
wq_loads()
A("s_waitcnt vmcnt(0)")
A("L_share_body:")
for k in range(8): A(f"v_mov_b32 v{4+k}, 0")
A("s_waitcnt lgkmcnt(0)")
for j in range(4):
    A(f"s_waitcnt vmcnt({3-j+8*NBP})")
    for k in range(4):
        w = W + 4*j + k
        A(f"v_lshlrev_b32 v28, 16, v{w}\nv_and_b32 v29, s14, v{w}")
        A(f"v_fmac_f32 v{4+2*k}, v{20+j}, v28\nv_fmac_f32 v{5+2*k}, v{20+j}, v29")
stamp(9)
for r in (4, 8):
    A("s_nop 1")
    for k in range(8): A(f"v_add_f32_dpp v{4+k}, v{4+k}, v{4+k} row_ror:{r} row_mask:0xf bank_mask:0xf")
for sw in ("v_permlane16_swap_b32", "v_permlane32_swap_b32"):
    for k in range(8): A(f"v_mov_b32 v{12+k}, v{4+k}")
    A("s_nop 1")
    for k in range(8): A(f"{sw} v{4+k}, v{12+k}")
    A("s_nop 1")
    for k in range(8): A(f"v_add_f32 v{4+k}, v{4+k}, v{12+k}")
A("v_lshlrev_b32 v28, 5, v1\ns_lshl_b32 s9, s6, 7\nv_add_u32 v28, s9, v28\ns_mov_b64 exec, 15")
A(f"ds_write_b128 v28, v[4:7] offset:{QW}\nds_write_b128 v28, v[8:11] offset:{QW+16}")
A("s_mov_b64 exec, -1")
A("s_waitcnt lgkmcnt(0)\ns_barrier")
A("s_cmp_eq_u32 s6, 0\ns_cbranch_scc0 L_q_w")
A("v_and_b32 v28, 15, v1\nv_lshlrev_b32 v28, 3, v28")
for w in range(8): A(f"ds_read_b64 v[{32+2*w}:{33+2*w}], v28 offset:{QW+128*w}")
A("s_waitcnt lgkmcnt(0)")
for w in range(1, 8): A(f"v_add_f32 v32, v32, v{32+2*w}\nv_add_f32 v33, v33, v{33+2*w}")
A("v_cvt_pk_bf16_f32 v32, v32, v33")
A("s_cmp_eq_u32 s86, 0\ns_cbranch_scc0 L_q_fallback")
A("v_readfirstlane_b32 s9, v122\ns_nop 3\ns_cmp_eq_u32 s9, 0\ns_cselect_b32 s16, s16, s9")
A(f"v_mov_b32 v33, s16\nv_mov_b32 v29, 0\nds_write_b32 v29, v33 offset:{NONCE}")
A(f"s_lshl_b32 s9, s7, 10\ns_lshl_b32 s10, s5, 7\ns_add_u32 s10, s10, s9\ns_add_u32 s10, s10, 0x{WS_QS:x}\ns_add_u32 s9, s9, 0x{WS_QS:x}")
A("s_mov_b64 exec, 0xffff")
A(f"buffer_store_dwordx2 v[32:33], v28, {srd(SWS)}, s10 offen sc1")
A("s_mov_b64 exec, -1")
stamp(2)
A("s_mov_b32 s87, 0")
A("L_qpoll:")
A(f"buffer_load_dwordx4 v[32:35], v3, {srd(SWS)}, s9 offen sc1")
A("s_waitcnt vmcnt(0)")
A("v_cmp_eq_u32 vcc, s16, v33\nv_cmp_eq_u32 s[80:81], s16, v35\ns_nop 3\ns_and_b64 vcc, vcc, s[80:81]\ns_cmp_eq_u64 vcc, -1\ns_cbranch_scc1 L_qgot")
if SLP: A(f"s_sleep {SLP}")
A(f"s_add_u32 s87, s87, 1\ns_cmp_lt_u32 s87, {SPIN_LIMIT}\ns_cbranch_scc1 L_qpoll")
A(f"v_mov_b32 v28, 1\nv_mov_b32 v29, 0\nds_write_b32 v29, v28 offset:{QFLAG}")
A("s_branch L_q_w")
A("L_qgot:")
stamp(10)
A("v_mov_b32 v33, v34\nv_lshlrev_b32 v28, 3, v1")
A(f"ds_write_b64 v28, v[32:33] offset:{QB}")
A(f"v_mov_b32 v28, 0\nds_write_b32 v28, v28 offset:{QFLAG}")
A("s_branch L_q_w")
A("L_q_fallback:")
A("v_lshrrev_b32 v28, 1, v28\ns_lshl_b32 s9, s84, 6\nv_add_u32 v28, s9, v28\ns_mov_b64 exec, 0xffff")
A(f"ds_write_b32 v28, v32 offset:{QB}")
A("s_mov_b64 exec, -1")
A("L_q_w:")
stamp(11)
A("s_waitcnt lgkmcnt(0)\ns_barrier")
A("s_cmp_eq_u32 s86, 0\ns_cbranch_scc0 L_q_m1")
A(f"v_mov_b32 v28, 0\nds_read_b32 v28, v28 offset:{QFLAG}\ns_waitcnt lgkmcnt(0)\nv_readfirstlane_b32 s9, v28\ns_nop 3\ns_cmp_eq_u32 s9, 0\ns_cbranch_scc1 L_qdone")
A("s_mov_b32 s86, 1\ns_mov_b32 s84, 0\ns_branch L_share_loop")
A("L_q_m1:")
A("s_add_u32 s84, s84, 1\ns_cmp_lt_u32 s84, 8\ns_cbranch_scc1 L_share_loop")
A("L_qdone:")
A("v_and_b32 v12, 31, v1\nv_lshlrev_b32 v12, 4, v12")
A(f"ds_read_b128 v[24:27], v12 offset:{QB}")
A(f"v_mov_b32 v13, 0\nds_read_b32 v13, v13 offset:{NONCE}\ns_waitcnt lgkmcnt(0)\nv_readfirstlane_b32 s16, v13")
vm.q = []
for n in range(NBP):
    for j in range(8): vm.issue(f"t{n}")
nxt = [NBP]
def advance(t):
    while nxt[0] <= min(t + LA, 15):
        issue_tile(nxt[0]); nxt[0] += 1
advance(-1)
A("s_waitcnt lgkmcnt(0)")
stamp(3)

S = 32
for t in range(8):
    b = tbuf(t)
    if TB and t >= TB0: A("s_barrier")
    vm.wait(f"t{t}")
    for k in range(4):
        for j in range(8):
            c = "0" if k == 0 else f"v{4+j}"
            A(f"v_dot2_f32_bf16 v{4+j}, v{b+4*j+k}, v{24+k}, {c}")
    advance(t)
    A("s_nop 1")
    for i in range(4): A(f"v_permlane16_swap_b32 v{4+2*i}, v{5+2*i}")
    A("s_nop 0")
    for i in range(4): A(f"v_add_f32 v{12+i}, v{4+2*i}, v{5+2*i}")
    for r in (8, 4, 2, 1):
        A("s_nop 0")
        for i in range(4): A(f"v_add_f32_dpp v{12+i}, v{12+i}, v{12+i} row_ror:{r} row_mask:0xf bank_mask:0xf")
    for i in range(4): rbf(S + 4*t + i, 12 + i)
stamp(4)
A(f"v_max3_f32 v30, v{S}, v{S+1}, v{S+2}")
for i in range(3, 31, 2): A(f"v_max3_f32 v30, v30, v{S+i}, v{S+i+1}")
A(f"v_max_f32 v30, v30, v{S+31}")
def cross_rows(op, v, tmp):
    for sw in ("v_permlane16_swap_b32", "v_permlane32_swap_b32"):
        A(f"v_mov_b32 v{tmp}, v{v}\ns_nop 1\n{sw} v{v}, v{tmp}\ns_nop 0\n{op} v{v}, v{v}, v{tmp}")
cross_rows("v_max_f32", 30, 12)
for i in range(32):
    A(f"v_sub_f32 v12, v{S+i}, v30\nv_mul_f32 v12, s13, v12\nv_exp_f32 v{S+i}, v12")
A("s_nop 0")
A(f"v_add_f32 v31, v{S}, v{S+1}")
for i in range(2, 32): A(f"v_add_f32 v31, v31, v{S+i}")
cross_rows("v_add_f32", 31, 12)
A("""v_lshrrev_b32 v12, 5, v1
v_lshlrev_b32 v12, 5, v12
v_bfe_u32 v13, v1, 4, 1
v_lshl_add_u32 v12, v13, 2, v12
s_lshl_b32 s15, s6, 9
v_add_u32 v12, s15, v12
s_mov_b32 exec_lo, 0x00010001
s_mov_b32 exec_hi, 0x00010001""")
for t in range(8):
    for i in range(4): A(f"ds_write_b32 v12, v{S+4*t+i} offset:{PL+64*t+8*i}")
A("s_mov_b64 exec, -1")
A("v_lshrrev_b32 v29, 5, v1\nv_lshlrev_b32 v29, 5, v29\nv_add_u32 v29, s15, v29")
for k in range(8): A(f"v_mov_b32 v{4+k}, 0")
PV = [12, 20]
A("s_waitcnt lgkmcnt(0)")
A(f"ds_read_b128 v[12:15], v29 offset:{PL}\nds_read_b128 v[16:19], v29 offset:{PL+16}")
for t in range(8):
    n = 8 + t
    b = tbuf(n)
    pv = PV[t & 1]
    A("s_waitcnt lgkmcnt(0)")
    if t < 7:
        pn = PV[(t+1) & 1]
        A(f"ds_read_b128 v[{pn}:{pn+3}], v29 offset:{PL+64*(t+1)}\nds_read_b128 v[{pn+4}:{pn+7}], v29 offset:{PL+64*(t+1)+16}")
    if TB: A("s_barrier")
    vm.wait(f"t{n}")
    for j in range(8):
        for k in range(4):
            w = b + 4*j + k
            A(f"v_lshlrev_b32 v28, 16, v{w}\nv_fmac_f32 v{4+2*k}, v{pv+j}, v28")
            A(f"v_and_b32 v28, s14, v{w}\nv_fmac_f32 v{5+2*k}, v{pv+j}, v28")
    advance(n)
stamp(5)
A("s_lshl_b32 s9, s6, 11\nv_lshlrev_b32 v12, 5, v1\nv_add_u32 v12, s9, v12")
A(f"ds_write_b128 v12, v[4:7] offset:{OP}\nds_write_b128 v12, v[8:11] offset:{OP+16}")
A("s_lshl_b32 s9, s6, 3\nv_mov_b32 v12, s9\ns_mov_b64 exec, 1")
A(f"ds_write_b64 v12, v[30:31] offset:{MLS}")
A("s_mov_b64 exec, -1")
A("s_waitcnt lgkmcnt(0)\ns_barrier")
A("s_cmp_lt_u32 s6, 4\ns_cbranch_scc0 L_pub_a")
CB = 64
A("v_mov_b32 v12, 0")
for i in range(4): A(f"ds_read_b128 v[{CB+4*i}:{CB+4*i+3}], v12 offset:{MLS+16*i}")
A("v_lshlrev_b32 v12, 2, v0")
for w in range(8):
    A(f"ds_read_b32 v{CB+16+2*w}, v12 offset:{OP+2048*w}\nds_read_b32 v{CB+17+2*w}, v12 offset:{OP+2048*w+1024}")
A("s_waitcnt lgkmcnt(0)")
A(f"v_max3_f32 v30, v{CB}, v{CB+2}, v{CB+4}\nv_max3_f32 v30, v30, v{CB+6}, v{CB+8}\nv_max3_f32 v30, v30, v{CB+10}, v{CB+12}\nv_max_f32 v30, v30, v{CB+14}")
A("v_mov_b32 v31, 0\nv_mov_b32 v13, 0")
for w in range(8):
    A(f"v_sub_f32 v14, v{CB+2*w}, v30\nv_mul_f32 v14, s13, v14\nv_exp_f32 v14, v14")
    A(f"v_add_f32 v15, v{CB+16+2*w}, v{CB+17+2*w}")
    A(f"v_fmac_f32 v31, v14, v{CB+2*w+1}\nv_fmac_f32 v13, v14, v15")
A("s_lshl_b32 s15, s7, 3\ns_add_u32 s15, s15, s5")
A(f"s_lshl_b32 s9, s15, 11\ns_add_u32 s9, s9, 0x{WS_PO:x}")
A("v_mov_b32 v14, v13\nv_mov_b32 v15, s16\nv_lshlrev_b32 v12, 3, v0")
A(f"buffer_store_dwordx2 v[14:15], v12, {srd(SWS)}, s9 offen sc1")
A("s_cmp_eq_u32 s6, 0\ns_cbranch_scc0 L_pub_a")
A("v_mov_b32 v16, v30\nv_mov_b32 v17, s16\nv_mov_b32 v18, v31\nv_mov_b32 v19, s16")
A(f"s_lshl_b32 s9, s15, 4\ns_add_u32 s9, s9, 0x{WS_ML:x}\ns_mov_b64 exec, 1")
A(f"buffer_store_dwordx4 v[16:19], v12, {srd(SWS)}, s9 offen sc1")
A("v_mov_b32 v26, 1\nv_mov_b32 v27, 4\nv_mov_b32 v25, 0")
A(f"buffer_atomic_add v26, v27, {srd(SDBG)}, 0 offen sc0")
A("s_waitcnt vmcnt(0)")
A(f"ds_write_b32 v25, v26 offset:{TICK}")
A("s_mov_b64 exec, -1")
A("L_pub_a:")
stamp(6)
A("L_role_a:")
A("s_waitcnt lgkmcnt(0)\ns_barrier")
A(f"v_mov_b32 v5, 0\nds_read_b32 v4, v5 offset:{TICK}\ns_waitcnt lgkmcnt(0)")
A("v_readfirstlane_b32 s5, v4")
A("v_mov_b32 v5, 0x7f000000\nv_cmp_gt_u32 vcc, 56, v1\ns_nop 1\nv_cndmask_b32 v31, v5, v3, vcc")
if DIAG:
    A("s_mov_b64 exec, 1")
    for i in range(12): A(f"v_mov_b32 v{4+i}, s{88+i}")
    A(f"v_mov_b32 v20, 0\ns_lshl_b32 s9, s2, 3\ns_add_u32 s9, s9, s6\ns_lshl_b32 s9, s9, 6\ns_add_u32 s9, s9, 0x{WS_DG:x}")
    for i in range(3): A(f"buffer_store_dwordx4 v[{4+4*i}:{7+4*i}], v20, {srd(SWS)}, s9 offen offset:{16*i}")
    A("s_mov_b64 exec, -1")
    for i in range(12): A(f"s_mov_b32 s{88+i}, 0")
    A("s_add_u32 s2, s5, 256")
    stamp(0)
A(f"s_cmp_ge_u32 s5, {NARR}\ns_cbranch_scc1 L_end")
A(f"s_cmp_ge_u32 s5, {NFFN}\ns_cbranch_scc1 L_cmb")
A("s_branch L_ffn")

def publish_tail(tag=""):
    A(f"s_mul_i32 s9, s6, 3584\ns_add_u32 s9, s9, {DP}\nv_lshlrev_b32 v28, 5, v1\nv_add_u32 v28, s9, v28")
    A("s_mov_b32 exec_hi, 0x00ffffff")
    A(f"ds_write_b128 v28, v[4:7]\nds_write_b128 v28, v[8:11] offset:16")
    A(f"ds_write_b128 v28, v[12:15] offset:1792\nds_write_b128 v28, v[16:19] offset:{1792+16}")
    A("s_mov_b32 exec_hi, -1")
    A("s_waitcnt lgkmcnt(0)\ns_barrier")
    A("v_cmp_gt_u32 vcc, 224, v0\ns_and_saveexec_b64 s[80:81], vcc\ns_cbranch_execz L_pt_c" + tag)
    A(f"v_lshlrev_b32 v28, 4, v0\nv_add_u32 v29, {DP}, v28")
    for w in range(8):
        A(f"ds_read_b128 v[{64+4*w}:{67+4*w}], v29 offset:{3584*w}")
    A("s_waitcnt lgkmcnt(0)")
    for w in range(1, 8):
        for k in range(4): A(f"v_add_f32 v{64+k}, v{64+k}, v{64+4*w+k}")
    A("v_mov_b32 v72, v64\nv_mov_b32 v73, s16\nv_mov_b32 v74, v65\nv_mov_b32 v75, s16\nv_mov_b32 v76, v66\nv_mov_b32 v77, s16\nv_mov_b32 v78, v67\nv_mov_b32 v79, s16")
    A("v_lshlrev_b32 v28, 5, v0")
    A(f"buffer_store_dwordx4 v[72:75], v28, {srd(SWS)}, s15 offen sc1")
    A(f"buffer_store_dwordx4 v[76:79], v28, {srd(SWS)}, s15 offen offset:16 sc1")
    A("L_pt_c" + tag + ":")
    A("s_mov_b64 exec, -1")

A("L_ffn:")
FG, FD = 96, 192
A(f"buffer_load_dwordx4 v[8:11], v31, {srd(SX)}, 0 offen")
A(f"buffer_load_dwordx4 v[12:15], v31, {srd(SX)}, 0 offen offset:896")
A("""v_lshrrev_b32 v6, 2, v1
s_movk_i32 s9, 3584
v_mul_lo_u32 v6, v6, s9
v_and_b32 v7, 3, v1
v_lshl_add_u32 v6, v7, 4, v6
s_and_b32 s9, s6, 3
s_mul_i32 s9, s9, 401408
s_lshl_b32 s10, s5, 6
s_add_u32 s9, s9, s10""")
for j in range(7):
    A(f"buffer_load_dwordx4 v[{FG+4*j}:{FG+4*j+3}], v6, {srd(SGU)}, s9 offen")
    if j < 6: A("s_add_u32 s9, s9, 57344")
A("s_lshl_b32 s9, s5, 3\ns_add_u32 s9, s9, s6\ns_mul_i32 s9, s9, 3584")
for j in range(4):
    A(f"buffer_load_dwordx4 v[{FD+4*j}:{FD+4*j+3}], v31, {srd(SWD)}, s9 offen offset:{896*j}")
A("s_waitcnt vmcnt(11)")
for bb in range(2):
    layernorm(8 + 4*bb)
    A("s_mov_b32 exec_hi, 0x00ffffff")
    A("v_lshlrev_b32 v25, 5, v1")
    A(f"ds_write_b128 v25, v[16:19] offset:{XNF+1792*bb}")
    A(f"ds_write_b128 v25, v[20:23] offset:{XNF+1792*bb+16}")
    A("s_mov_b32 exec_hi, -1")
A("""s_and_b32 s9, s6, 3
s_mul_i32 s9, s9, 448
v_lshrrev_b32 v26, 2, v1
v_lshlrev_b32 v26, 2, v26
v_add_u32 v26, s9, v26""")
for k in range(16): A(f"v_mov_b32 v{4+k}, 0")
A("s_waitcnt lgkmcnt(0)")
for j in range(7):
    A(f"ds_read_b32 v{128+2*j}, v26 offset:{XNF+64*j}\nds_read_b32 v{129+2*j}, v26 offset:{XNF+1792+64*j}")
A("s_waitcnt lgkmcnt(0)\ns_waitcnt vmcnt(4)")
for j in range(7):
    for k in range(4):
        w = FG + 4*j + k
        A(f"v_lshlrev_b32 v22, 16, v{w}\nv_and_b32 v23, s14, v{w}")
        A(f"v_fmac_f32 v{4+2*k}, v{128+2*j}, v22\nv_fmac_f32 v{5+2*k}, v{128+2*j}, v23")
        A(f"v_fmac_f32 v{12+2*k}, v{129+2*j}, v22\nv_fmac_f32 v{13+2*k}, v{129+2*j}, v23")
A("""v_lshrrev_b32 v27, 2, v1
v_lshlrev_b32 v27, 8, v27
v_and_b32 v22, 3, v1
v_lshl_add_u32 v27, v22, 5, v27
s_lshl_b32 s9, s6, 12
v_add_u32 v27, s9, v27""")
A(f"ds_write_b128 v27, v[4:7] offset:{GP}\nds_write_b128 v27, v[8:11] offset:{GP+16}")
A(f"ds_write_b128 v27, v[12:15] offset:{GP+128}\nds_write_b128 v27, v[16:19] offset:{GP+144}")
A("s_waitcnt lgkmcnt(0)\ns_barrier")
A("s_cmp_lt_u32 s6, 2\ns_cbranch_scc0 L_ffn_a")
A("s_lshl_b32 s9, s6, 14\nv_lshlrev_b32 v26, 2, v1\nv_add_u32 v26, s9, v26")
for g in range(4):
    for i in range(16):
        A(f"ds_read_b32 v{128+16*g+i}, v26 offset:{GP+4096*g+256*i}")
A("s_waitcnt lgkmcnt(0)")
A("v_add_f32 v4, v128, v129")
for i in range(2, 64): A(f"v_add_f32 v4, v4, v{128+i}")
rbf(4, 4)
A("s_lshl_b32 s9, s6, 8\nv_lshlrev_b32 v26, 2, v1\nv_add_u32 v26, s9, v26")
A(f"ds_write_b32 v26, v4 offset:{GUS}")
A("L_ffn_a:")
A("s_waitcnt lgkmcnt(0)\ns_barrier")
A("s_cmp_eq_u32 s6, 0\ns_cbranch_scc0 L_ffn_b")
A("v_lshlrev_b32 v26, 2, v1")
A(f"ds_read_b32 v4, v26 offset:{GUS}\nds_read_b32 v5, v26 offset:{GUS+256}")
A("s_waitcnt lgkmcnt(0)")
A(f"v_mul_f32 v6, 0x{f32bits(-1.4426950408889634):08x}, v4")
A("v_exp_f32 v6, v6\ns_nop 0\nv_add_f32 v6, 1.0, v6\nv_rcp_f32 v7, v6\ns_nop 0")
A("v_mul_f32 v8, v4, v7\nv_fma_f32 v9, -v8, v6, v4\nv_fma_f32 v8, v9, v7, v8")
rbf(8, 8)
A("v_mul_f32 v8, v8, v5")
rbf(8, 8)
A(f"ds_write_b32 v26, v8 offset:{HS}")
A("L_ffn_b:")
A("s_waitcnt lgkmcnt(0)\ns_barrier")
A("s_lshl_b32 s9, s6, 4\nv_mov_b32 v26, s9")
A(f"ds_read_b128 v[20:23], v26 offset:{HS}\nds_read_b128 v[24:27], v26 offset:{HS+128}")
for k in range(16): A(f"v_mov_b32 v{4+k}, 0")
A("s_waitcnt lgkmcnt(0)\ns_waitcnt vmcnt(0)")
for j in range(4):
    for k in range(4):
        w = FD + 4*j + k
        A(f"v_lshlrev_b32 v28, 16, v{w}\nv_and_b32 v29, s14, v{w}")
        A(f"v_fmac_f32 v{4+2*k}, v{20+j}, v28\nv_fmac_f32 v{5+2*k}, v{20+j}, v29")
        A(f"v_fmac_f32 v{12+2*k}, v{24+j}, v28\nv_fmac_f32 v{13+2*k}, v{24+j}, v29")
A(f"s_mul_i32 s15, s5, 7168\ns_add_u32 s15, s15, 0x{WS_FP:x}\ns_mov_b32 s5, 99")
A("s_branch L_tail")


A("L_cmb:")
A(f"s_sub_u32 s5, s5, {NFFN}\ns_lshr_b32 s3, s5, 2\ns_and_b32 s4, s5, 3")
WO = 224
A("s_lshl_b32 s9, s5, 3\ns_add_u32 s9, s9, s6\ns_mul_i32 s9, s9, 7168")
for i in range(8):
    if i == 4: A("s_add_u32 s9, s9, 3584")
    A(f"buffer_load_dwordx4 v[{WO+4*i}:{WO+4*i+3}], v31, {srd(SWO)}, s9 offen offset:{896*(i%4)}")
A("s_cmp_eq_u32 s6, 0\ns_cbranch_scc0 L_cmb_w")
A("v_bfe_u32 v28, v1, 3, 1\nv_lshlrev_b32 v28, 11, v28\nv_and_b32 v29, 7, v1\nv_lshl_add_u32 v28, v29, 4, v28")
A(f"s_lshl_b32 s9, s3, 7\ns_add_u32 s9, s9, 0x{WS_ML:x}")
A("s_mov_b64 exec, 0xffff")
A("L_cpoll:")
A(f"buffer_load_dwordx4 v[4:7], v28, {srd(SWS)}, s9 offen sc1")
A("s_waitcnt vmcnt(0)")
A("v_cmp_eq_u32 vcc, s16, v5\nv_cmp_eq_u32 s[80:81], s16, v7\ns_nop 3\ns_and_b64 vcc, vcc, s[80:81]\ns_cmp_eq_u64 vcc, exec\ns_cbranch_scc1 L_cgot")
if CSLP: A(f"s_sleep {CSLP}")
A("s_branch L_cpoll")
A("L_cgot:")
A("s_mov_b64 exec, -1")
A("L_cmb_w:")
A("s_barrier")
stamp(1)
A("""v_and_b32 v4, 7, v1
v_bfe_u32 v5, v1, 3, 1
v_lshlrev_b32 v6, 18, v5
v_lshl_add_u32 v6, v4, 3, v6
v_lshlrev_b32 v7, 11, v5""")
A("L_cload:")
A(f"s_lshl_b32 s9, s3, 14\ns_lshl_b32 s10, s4, 9\ns_add_u32 s9, s9, s10\ns_lshl_b32 s10, s6, 6\ns_add_u32 s9, s9, s10\ns_add_u32 s9, s9, 0x{WS_PO:x}")
for sp in range(8):
    A(f"buffer_load_dwordx2 v[{128+2*sp}:{129+2*sp}], v6, {srd(SWS)}, s9 offen offset:{2048*(sp%2)} sc1")
    if sp % 2 == 1 and sp < 7: A("s_add_u32 s9, s9, 4096")
A(f"s_lshl_b32 s9, s3, 7\ns_add_u32 s9, s9, 0x{WS_ML:x}")
for sp in range(8): A(f"buffer_load_dwordx4 v[{144+4*sp}:{147+4*sp}], v7, {srd(SWS)}, s9 offen offset:{16*sp} sc1")
A("s_waitcnt vmcnt(0)")
A("s_mov_b64 s[82:83], -1")
for sp in range(8):
    A(f"v_cmp_eq_u32 vcc, s16, v{129+2*sp}\ns_nop 3\ns_and_b64 s[82:83], s[82:83], vcc")
A("s_cmp_eq_u64 s[82:83], -1\ns_cbranch_scc0 L_cload")
m0 = 144
A(f"v_max3_f32 v10, v{m0}, v{m0+4}, v{m0+8}\nv_max3_f32 v10, v10, v{m0+12}, v{m0+16}\nv_max3_f32 v10, v10, v{m0+20}, v{m0+24}\nv_max_f32 v10, v10, v{m0+28}")
A("v_mov_b32 v11, 0\nv_mov_b32 v12, 0")
for sp in range(8):
    A(f"v_sub_f32 v13, v{m0+4*sp}, v10\nv_mul_f32 v13, s13, v13\nv_exp_f32 v13, v13\ns_nop 0")
    A(f"v_fmac_f32 v11, v13, v{m0+4*sp+2}\nv_fmac_f32 v12, v13, v{128+2*sp}")
A("v_rcp_f32 v13, v11\ns_nop 0\nv_mul_f32 v14, v12, v13\nv_fma_f32 v15, -v14, v11, v12\nv_fma_f32 v14, v15, v13, v14")
rbf(14, 14)
A("s_nop 0")
for i in range(16): A(f"v_readlane_b32 s{20+i}, v14, {i}")
for k in range(16): A(f"v_mov_b32 v{4+k}, 0")
for i in range(8):
    for k in range(4):
        w = WO + 4*i + k
        A(f"v_lshlrev_b32 v28, 16, v{w}\nv_and_b32 v29, s14, v{w}")
        A(f"v_fmac_f32 v{4+2*k}, s{20+i}, v28\nv_fmac_f32 v{5+2*k}, s{20+i}, v29")
        A(f"v_fmac_f32 v{12+2*k}, s{28+i}, v28\nv_fmac_f32 v{13+2*k}, s{28+i}, v29")
A(f"s_mul_i32 s15, s5, 7168\ns_add_u32 s15, s15, 0x{WS_YC:x}")
A("L_tail:")
stamp(2)
publish_tail()
stamp(3)
A(f"s_cmp_ge_u32 s5, {NFIN}\ns_cbranch_scc1 L_fin_end")
A("s_and_b32 s4, s5, 1\ns_lshr_b32 s5, s5, 1")
A("v_lshlrev_b32 v6, 3, v1\ns_lshl_b32 s10, s5, 9\nv_add_u32 v6, s10, v6")
A("v_lshrrev_b32 v7, 2, v6\ns_mul_i32 s10, s4, 896")
A(f"buffer_load_ushort v100, v7, {srd(SX)}, s10 offen")
A("s_mul_i32 s15, s4, 3584")
A("L_fpoll:")
A(f"s_mul_i32 s10, s6, {8*7168}\ns_add_u32 s10, s10, s15\ns_add_u32 s10, s10, 0x{WS_YC:x}")
for i in range(8):
    A(f"buffer_load_dwordx2 v[{64+2*i}:{65+2*i}], v6, {srd(SWS)}, s10 offen sc1")
    A("s_add_u32 s10, s10, 7168")
A(f"s_mul_i32 s10, s6, {7*7168}\ns_add_u32 s10, s10, s15\ns_add_u32 s10, s10, 0x{WS_FP:x}")
for i in range(7):
    A(f"buffer_load_dwordx2 v[{80+2*i}:{81+2*i}], v6, {srd(SWS)}, s10 offen sc1")
    A("s_add_u32 s10, s10, 7168")
A("s_waitcnt vmcnt(0)")
A("s_mov_b64 s[82:83], -1")
for i in range(15):
    A(f"v_cmp_eq_u32 vcc, s16, v{65+2*i}\ns_nop 3\ns_and_b64 s[82:83], s[82:83], vcc")
A("s_cmp_eq_u64 s[82:83], -1\ns_cbranch_scc1 L_fgot")
if FSLP: A(f"s_sleep {FSLP}")
A("s_branch L_fpoll")
A("L_fgot:")
stamp(5)
A("v_add_f32 v8, v64, v66")
for i in range(2, 8): A(f"v_add_f32 v8, v8, v{64+2*i}")
A("v_add_f32 v9, v80, v82")
for i in range(2, 7): A(f"v_add_f32 v9, v9, v{80+2*i}")
A("s_lshl_b32 s9, s6, 8\nv_lshlrev_b32 v10, 2, v1\nv_add_u32 v10, s9, v10")
A(f"ds_write_b32 v10, v8 offset:{PL}\nds_write_b32 v10, v9 offset:{PL+2048}")
A("s_waitcnt lgkmcnt(0)\ns_barrier")
A("s_cmp_eq_u32 s6, 0\ns_cbranch_scc0 L_fin_end")
A("v_lshlrev_b32 v10, 2, v1")
for g in range(8): A(f"ds_read_b32 v{12+g}, v10 offset:{PL+256*g}\nds_read_b32 v{20+g}, v10 offset:{PL+2048+256*g}")
A("s_waitcnt lgkmcnt(0)")
for g in range(1, 8): A(f"v_add_f32 v12, v12, v{12+g}\nv_add_f32 v20, v20, v{20+g}")
rbf(12, 12); rbf(20, 20)
A("v_lshlrev_b32 v100, 16, v100\nv_add_f32 v12, v100, v12")
rbf(12, 12)
A("v_add_f32 v12, v12, v20\nv_cvt_pk_bf16_f32 v12, v12, v12")
A("s_mul_i32 s10, s4, 896")
A(f"buffer_store_short v12, v7, {srd(SOUT)}, s10 offen")
stamp(6)
A("L_fin_end:")
if DIAG:
    A("s_mov_b64 exec, 1")
    for i in range(12): A(f"v_mov_b32 v{4+i}, s{88+i}")
    A(f"v_mov_b32 v20, 0\ns_lshl_b32 s9, s2, 3\ns_add_u32 s9, s9, s6\ns_lshl_b32 s9, s9, 6\ns_add_u32 s9, s9, 0x{WS_DG:x}")
    for i in range(3): A(f"buffer_store_dwordx4 v[{4+4*i}:{7+4*i}], v20, {srd(SWS)}, s9 offen offset:{16*i}")
A("L_end:\ns_endpgm")
A(f'''.section .rodata,"a"
.p2align 6
.amdhsa_kernel {KN}
  .amdhsa_next_free_vgpr 256
  .amdhsa_next_free_sgpr 102
  .amdhsa_accum_offset 256
  .amdhsa_group_segment_fixed_size 0
  .amdhsa_kernarg_size 96
  .amdhsa_user_sgpr_count 2
  .amdhsa_user_sgpr_kernarg_segment_ptr 1
  .amdhsa_system_sgpr_workgroup_id_x 1
.end_amdhsa_kernel''')
print("\n".join(out))
```

```python
import sys, struct

KN = "parallel_sum__mha_block_cached__swiglu_ffn__decode_kernel"
out = []
ARGS = sys.argv[1:]
DIAG = "diag" in ARGS
TB = "tb" in ARGS
NB = 6
NBP = 4
PACE = 0
SLP = 0
TB0 = 0
LA = 6
CSLP = 0
NOQ = "noq" in ARGS
NB0 = 99
for a in ARGS:
    if a.startswith("nb0="): NB0 = int(a[4:])
NB0 = min(NB0, NBP)
STD = "std" in ARGS
W0E = "w0e" in ARGS
FSLP = 4
QNT = " nt" if "qnt" in ARGS else ""
for a in ARGS:
    if a.startswith("nb="): NB = int(a[3:])
    if a.startswith("nbp="): NBP = int(a[4:])
    if a.startswith("pace="): PACE = int(a[5:])
    if a.startswith("slp="): SLP = int(a[4:])
    if a.startswith("tb0="): TB0 = int(a[4:])
    if a.startswith("la="): LA = int(a[3:])
    if a.startswith("cslp="): CSLP = int(a[5:])
def A(s):
    for line in s.split("\n"):
        out.append(line)
def stamp(i):
    if not DIAG: return
    A("s_memrealtime s[100:101]\ns_waitcnt lgkmcnt(0)")
    A(f"s_mov_b32 s{88+i}, s100")

def f32bits(x):
    return struct.unpack("<I", struct.pack("<f", x))[0]

class VM:
    def __init__(self): self.q = []
    def issue(self, tag): self.q.append(tag)
    def wait(self, tag):
        idxs = [i for i, t in enumerate(self.q) if t == tag]
        if not idxs: return
        idx = max(idxs)
        n = len(self.q) - 1 - idx
        A(f"s_waitcnt vmcnt({min(n,63)})")
        self.q = self.q[idx+1:] if n <= 63 else self.q[len(self.q)-63:]
vm = VM()

XNF = 0
XNB = 3584
QB = 5376
TICK = 5888
MLS = 5952
GUS = 6016
HS = 6528
PL = 8192
OP = 16384
GP = 16384
DP = 49152
LDS_BYTES = 49152 + 28672

WS_QS = 0x00000
WS_PO = 0x10000
WS_ML = 0x90000
WS_YC = 0x91000
WS_FP = 0x101000
WS_DG = 0x180000
WS_BYTES = 0x200000
NONCE = 5900
NFFN = 56
NCMB = 64
NFIN = 14
NARR = NFFN + NCMB
SPIN_LIMIT = 20000
for a in ARGS:
    if a.startswith("spin="): SPIN_LIMIT = int(a[5:])

SX, SK, SV, SWQ, SWO, SGU, SWD, SOUT, SDBG, SWS = 40, 44, 48, 52, 56, 60, 64, 68, 72, 76
def srd(r): return f"s[{r}:{r+3}]"

B = [64, 96, 128, 160, 192, 224][:NB]
Q = 32

A(f"; @launch grid=(256,1,1) block=(512,1,1) lds={LDS_BYTES}")
A('.amdgcn_target "amdgcn-amd-amdhsa--gfx950"')
A(".text")
A(f".globl {KN}\n.p2align 8\n.type {KN},@function\n{KN}:")
A("s_cmp_ge_u32 s2, 256\ns_cbranch_scc1 L_end")
A("s_load_dwordx16 s[16:31], s[0:1], 0")
A("s_load_dwordx8 s[32:39], s[0:1], 64")
A("v_and_b32 v1, 63, v0")
A("v_lshrrev_b32 v4, 6, v0")
A("s_nop 0")
A("v_readfirstlane_b32 s6, v4")
A("""s_and_b32 s5, s2, 7
s_lshr_b32 s7, s2, 3
s_and_b32 s3, s7, 15
s_lshr_b32 s4, s7, 4
s_and_b32 s4, s4, 1
s_lshl_b32 s8, s7, 22
s_lshl_b32 s9, s5, 19
s_add_u32 s8, s8, s9""")
A("s_mov_b32 s11, 0x05040100\ns_mov_b32 s12, 0x07060302")
A(f"s_mov_b32 s13, 0x{f32bits(0.0625*1.4426950408889634):08x}")
A("s_mov_b32 s14, 0xffff0000")
A("""v_and_b32 v2, 15, v1
v_lshlrev_b32 v2, 9, v2
v_lshrrev_b32 v4, 4, v1
v_lshl_or_b32 v2, v4, 4, v2
v_lshlrev_b32 v3, 4, v1
v_mov_b32 v5, 0x7f000000
v_cmp_gt_u32 vcc, 56, v1
s_nop 1
v_cndmask_b32 v31, v5, v3, vcc""")
A("s_waitcnt lgkmcnt(0)")
if DIAG:
    for i in range(12): A(f"s_mov_b32 s{88+i}, 0")
stamp(0)
def mk(r, lo, nbytes):
    A(f"s_mov_b32 s{r}, s{lo}\ns_mov_b32 s{r+1}, s{lo+1}\ns_mov_b32 s{r+2}, 0x{nbytes:x}\ns_mov_b32 s{r+3}, 0x20000")
mk(SK, 18, 1<<27); mk(SX, 16, 1792); mk(SWQ, 22, 448*4096*2)
mk(SV, 20, 1<<27); mk(SWO, 24, 4096*448*2)
mk(SWD, 32, 1792*448*2); mk(SOUT, 34, 1792); mk(SDBG, 36, 256); mk(SWS, 38, WS_BYTES)
A("s_cmp_lt_u32 s6, 4")
A(f"s_cselect_b32 s{SGU}, s28, s30\ns_cselect_b32 s{SGU+1}, s29, s31\ns_mov_b32 s{SGU+2}, 0x{448*1792*2:x}\ns_mov_b32 s{SGU+3}, 0x20000")
A("s_sub_u32 s9, s6, 1")
for t in range(8):
    base = 7*t if t < 6 else 50 + 7*(t-6)
    if NOQ or STD: A(f"s_add_u32 s10, s6, {8*t}\ns_lshl_b32 s10, s10, 13\ns_add_u32 s{20+t}, s8, s10")
    else: A(f"s_add_u32 s10, s9, {base}\ns_cmp_eq_u32 s6, 0\ns_cselect_b32 s10, {42+t}, s10\ns_lshl_b32 s10, s10, 13\ns_add_u32 s{20+t}, s8, s10")

def tbuf(n): return B[(n + 3) % NB]
def issue_tile(n, track=True):
    b = tbuf(n)
    A(f"s_add_u32 s10, s{20+n%8}, 4096")
    for j in range(8):
        A(f"buffer_load_dwordx4 v[{b+4*j}:{b+4*j+3}], v3, {srd(SK if n < 8 else SV)}, {f's{20+n%8}' if j<4 else 's10'} offen offset:{1024*(j%4)} nt")
        if track: vm.issue(f"t{n}")

def row_reduce(op, v, tmp):
    for r in (8, 4, 2, 1):
        A("s_nop 1")
        A(f"{op}_dpp v{tmp}, v{v}, v{v} row_ror:{r} row_mask:0xf bank_mask:0xf")
        A(f"v_mov_b32 v{v}, v{tmp}")
def wave_sum(v, tmp):
    row_reduce("v_add_f32", v, tmp)
    A("s_nop 0")
    for i in range(4): A(f"v_readlane_b32 s{80+i}, v{v}, {16*i}")
    A("s_nop 1")
    A(f"v_mov_b32 v{v}, s80\nv_add_f32 v{v}, s81, v{v}\nv_add_f32 v{v}, s82, v{v}\nv_add_f32 v{v}, s83, v{v}")
def div448(v, tmp1, tmp2):
    A(f"v_mul_f32 v{tmp1}, 0x{f32bits(1.0/448):08x}, v{v}")
    A(f"v_mov_b32 v{tmp2}, 0x{f32bits(448.0):08x}")
    A(f"v_fma_f32 v{tmp2}, -v{tmp1}, v{tmp2}, v{v}")
    A(f"v_mul_f32 v{tmp2}, 0x{f32bits(1.0/448):08x}, v{tmp2}")
    A(f"v_add_f32 v{v}, v{tmp1}, v{tmp2}")
def rbf(vd, vs):
    A(f"v_cvt_pk_bf16_f32 v{vd}, 0, v{vs}")
def layernorm(r):
    E = 16
    for k in range(4):
        A(f"v_lshlrev_b32 v{E+2*k}, 16, v{r+k}\nv_and_b32 v{E+2*k+1}, s14, v{r+k}")
    A(f"v_add_f32 v24, v{E}, v{E+1}")
    for k in range(2, 8): A(f"v_add_f32 v24, v24, v{E+k}")
    wave_sum(24, 25)
    div448(24, 25, 26)
    A("v_mov_b32 v27, 0")
    for k in range(8):
        A(f"v_sub_f32 v25, v{E+k}, v24\nv_fmac_f32 v27, v25, v25")
    A("v_cmp_gt_u32 vcc, 56, v1\ns_nop 1\nv_cndmask_b32 v27, 0, v27, vcc")
    wave_sum(27, 25)
    div448(27, 25, 26)
    rbf(27, 27)
    rbf(24, 24)
    A(f"v_add_f32 v27, 0x{f32bits(1e-5):08x}, v27")
    rbf(27, 27)
    A("v_sqrt_f32 v27, v27\ns_nop 0")
    rbf(27, 27)
    A("v_rcp_f32 v28, v27\ns_nop 0")
    for k in range(8):
        A(f"v_sub_f32 v{E+k}, v{E+k}, v24")
        rbf(E+k, E+k)
        A(f"v_mul_f32 v25, v{E+k}, v28")
        A(f"v_fma_f32 v26, -v25, v27, v{E+k}")
        A(f"v_fma_f32 v{E+k}, v26, v28, v25")
    for k in range(4):
        A(f"v_cvt_pk_bf16_f32 v{r+k}, v{E+2*k}, v{E+2*k+1}")
    for k in range(4):
        A(f"v_lshlrev_b32 v{E+2*k}, 16, v{r+k}\nv_and_b32 v{E+2*k+1}, s14, v{r+k}")

QW = 7168
QFLAG = 5904
W = 64
A("s_mul_i32 s10, s4, 896")
A(f"buffer_load_dwordx4 v[8:11], v31, {srd(SX)}, s10 offen")
A("""v_lshrrev_b32 v5, 2, v1
v_lshlrev_b32 v126, 13, v5
v_and_b32 v6, 3, v1
v_lshl_add_u32 v126, v6, 4, v126
v_lshlrev_b32 v127, 2, v5
s_lshl_b32 s9, s6, 6
v_add_u32 v127, s9, v127""")
A("s_mov_b32 s84, s5\ns_mov_b32 s86, 0")
A("s_cmp_eq_u32 s6, 0\ns_cbranch_scc0 L_nononce")
A("s_memrealtime s[16:17]\nv_mov_b32 v125, 64\ns_waitcnt lgkmcnt(0)\ns_or_b32 s16, s16, 1")
A("v_mov_b32 v122, s16\nv_mov_b32 v123, 0\ns_mov_b64 exec, 1")
A(f"buffer_atomic_cmpswap v[122:123], v125, {srd(SDBG)}, 0 offen sc0")
A("s_mov_b64 exec, -1")
A("L_nononce:")
def wq_loads():
    A("s_lshl_b32 s9, s84, 6\ns_lshl_b32 s10, s3, 9\ns_add_u32 s9, s9, s10\ns_lshl_b32 s10, s6, 17\ns_add_u32 s9, s9, s10")
    for j in range(4):
        A(f"buffer_load_dwordx4 v[{W+4*j}:{W+4*j+3}], v126, {srd(SWQ)}, s9 offen")
        if j < 3: A("s_add_u32 s9, s9, 1048576")
wq_loads()
for n in range(NB0): issue_tile(n, track=False)
stamp(7)
A(f"s_waitcnt vmcnt({4+8*NB0})")
stamp(8)
layernorm(8)
A("v_cmp_gt_u32 vcc, 56, v1\ns_nop 1")
for k in range(8): A(f"v_cndmask_b32 v{16+k}, 0, v{16+k}, vcc")
A("v_lshlrev_b32 v25, 5, v1")
A(f"ds_write_b128 v25, v[16:19] offset:{XNF}\nds_write_b128 v25, v[20:23] offset:{XNF+16}")
A("s_waitcnt lgkmcnt(0)")
for j in range(4): A(f"ds_read_b32 v{20+j}, v127 offset:{XNF+512*j}")
stamp(1)
A("s_branch L_share_body")
A("L_share_loop:")
wq_loads()
A("s_waitcnt vmcnt(0)")
A("L_share_body:")
for k in range(8): A(f"v_mov_b32 v{4+k}, 0")
A("s_waitcnt lgkmcnt(0)")
for j in range(4):
    A(f"s_waitcnt vmcnt({3-j+8*NB0})")
    for k in range(4):
        w = W + 4*j + k
        A(f"v_lshlrev_b32 v28, 16, v{w}\nv_and_b32 v29, s14, v{w}")
        A(f"v_fmac_f32 v{4+2*k}, v{20+j}, v28\nv_fmac_f32 v{5+2*k}, v{20+j}, v29")
stamp(9)
for r in (4, 8):
    A("s_nop 1")
    for k in range(8): A(f"v_add_f32_dpp v{4+k}, v{4+k}, v{4+k} row_ror:{r} row_mask:0xf bank_mask:0xf")
for sw in ("v_permlane16_swap_b32", "v_permlane32_swap_b32"):
    for k in range(8): A(f"v_mov_b32 v{12+k}, v{4+k}")
    A("s_nop 1")
    for k in range(8): A(f"{sw} v{4+k}, v{12+k}")
    A("s_nop 1")
    for k in range(8): A(f"v_add_f32 v{4+k}, v{4+k}, v{12+k}")
A("v_lshlrev_b32 v28, 5, v1\ns_lshl_b32 s9, s6, 7\nv_add_u32 v28, s9, v28\ns_mov_b64 exec, 15")
A(f"ds_write_b128 v28, v[4:7] offset:{QW}\nds_write_b128 v28, v[8:11] offset:{QW+16}")
A("s_mov_b64 exec, -1")
A("s_waitcnt lgkmcnt(0)\ns_barrier")
A("s_cmp_eq_u32 s6, 0\ns_cbranch_scc1 L_q_w0")
A("s_cmp_eq_u32 s86, 0\ns_cbranch_scc0 L_q_w")
for n in range(NB0, NBP): issue_tile(n, track=False)
A("s_branch L_q_w")
A("L_q_w0:")
A("v_and_b32 v28, 15, v1\nv_lshlrev_b32 v28, 3, v28")
for w in range(8): A(f"ds_read_b64 v[{32+2*w}:{33+2*w}], v28 offset:{QW+128*w}")
A("s_waitcnt lgkmcnt(0)")
for w in range(1, 8): A(f"v_add_f32 v32, v32, v{32+2*w}\nv_add_f32 v33, v33, v{33+2*w}")
A("v_cvt_pk_bf16_f32 v32, v32, v33")
A("s_cmp_eq_u32 s86, 0\ns_cbranch_scc0 L_q_fallback")
A("v_readfirstlane_b32 s9, v122\ns_nop 3\ns_cmp_eq_u32 s9, 0\ns_cselect_b32 s16, s16, s9")
A(f"v_mov_b32 v33, s16\nv_mov_b32 v29, 0\nds_write_b32 v29, v33 offset:{NONCE}")
A(f"s_lshl_b32 s9, s7, 10\ns_lshl_b32 s10, s5, 7\ns_add_u32 s10, s10, s9\ns_add_u32 s10, s10, 0x{WS_QS:x}\ns_add_u32 s9, s9, 0x{WS_QS:x}")
A("s_mov_b64 exec, 0xffff")
A(f"buffer_store_dwordx2 v[32:33], v28, {srd(SWS)}, s10 offen sc1")
A("s_mov_b64 exec, -1")
stamp(2)
A("s_mov_b32 s85, s9")
for n in range(NB0, NBP): issue_tile(n, track=False)
A("s_mov_b32 s9, s85")
A("s_mov_b32 s87, 0")
A("L_qpoll:")
A(f"buffer_load_dwordx4 v[32:35], v3, {srd(SWS)}, s9 offen sc1")
A("s_waitcnt vmcnt(0)")
A("v_cmp_eq_u32 vcc, s16, v33\nv_cmp_eq_u32 s[80:81], s16, v35\ns_nop 3\ns_and_b64 vcc, vcc, s[80:81]\ns_cmp_eq_u64 vcc, -1\ns_cbranch_scc1 L_qgot")
if SLP: A(f"s_sleep {SLP}")
A(f"s_add_u32 s87, s87, 1\ns_cmp_lt_u32 s87, {SPIN_LIMIT}\ns_cbranch_scc1 L_qpoll")
A(f"v_mov_b32 v28, 1\nv_mov_b32 v29, 0\nds_write_b32 v29, v28 offset:{QFLAG}")
A("s_branch L_q_w")
A("L_qgot:")
stamp(10)
A("v_mov_b32 v33, v34\nv_lshlrev_b32 v28, 3, v1")
A(f"ds_write_b64 v28, v[32:33] offset:{QB}")
A(f"v_mov_b32 v28, 0\nds_write_b32 v28, v28 offset:{QFLAG}")
A("s_branch L_q_w")
A("L_q_fallback:")
A("v_lshrrev_b32 v28, 1, v28\ns_lshl_b32 s9, s84, 6\nv_add_u32 v28, s9, v28\ns_mov_b64 exec, 0xffff")
A(f"ds_write_b32 v28, v32 offset:{QB}")
A("s_mov_b64 exec, -1")
A("L_q_w:")
stamp(11)
A("s_waitcnt lgkmcnt(0)\ns_barrier")
A("s_cmp_eq_u32 s86, 0\ns_cbranch_scc0 L_q_m1")
A(f"v_mov_b32 v28, 0\nds_read_b32 v28, v28 offset:{QFLAG}\ns_waitcnt lgkmcnt(0)\nv_readfirstlane_b32 s9, v28\ns_nop 3\ns_cmp_eq_u32 s9, 0\ns_cbranch_scc1 L_qdone")
A("s_mov_b32 s86, 1\ns_mov_b32 s84, 0\ns_branch L_share_loop")
A("L_q_m1:")
A("s_add_u32 s84, s84, 1\ns_cmp_lt_u32 s84, 8\ns_cbranch_scc1 L_share_loop")
A("L_qdone:")
A("v_and_b32 v12, 31, v1\nv_lshlrev_b32 v12, 4, v12")
A(f"ds_read_b128 v[24:27], v12 offset:{QB}")
A(f"v_mov_b32 v13, 0\nds_read_b32 v13, v13 offset:{NONCE}\ns_waitcnt lgkmcnt(0)\nv_readfirstlane_b32 s16, v13")
vm.q = []
for n in range(NBP):
    for j in range(8): vm.issue(f"t{n}")
nxt = [NBP]
def advance(t):
    while nxt[0] <= min(t + LA, 15):
        issue_tile(nxt[0]); nxt[0] += 1
advance(-1)
A("s_waitcnt lgkmcnt(0)")
stamp(3)

S = 32
for t in range(8):
    b = tbuf(t)
    if TB and t >= TB0: A("s_barrier")
    vm.wait(f"t{t}")
    for k in range(4):
        for j in range(8):
            c = "0" if k == 0 else f"v{4+j}"
            A(f"v_dot2_f32_bf16 v{4+j}, v{b+4*j+k}, v{24+k}, {c}")
    advance(t)
    A("s_nop 3")
    for i in range(4): A(f"v_permlane16_swap_b32 v{4+2*i}, v{5+2*i}")
    A("s_nop 0")
    for i in range(4): A(f"v_add_f32 v{12+i}, v{4+2*i}, v{5+2*i}")
    for r in (8, 4, 2, 1):
        A("s_nop 0")
        for i in range(4): A(f"v_add_f32_dpp v{12+i}, v{12+i}, v{12+i} row_ror:{r} row_mask:0xf bank_mask:0xf")
    for i in range(4): rbf(S + 4*t + i, 12 + i)
stamp(4)
A(f"v_max3_f32 v30, v{S}, v{S+1}, v{S+2}")
for i in range(3, 31, 2): A(f"v_max3_f32 v30, v30, v{S+i}, v{S+i+1}")
A(f"v_max_f32 v30, v30, v{S+31}")
def cross_rows(op, v, tmp):
    for sw in ("v_permlane16_swap_b32", "v_permlane32_swap_b32"):
        A(f"v_mov_b32 v{tmp}, v{v}\ns_nop 1\n{sw} v{v}, v{tmp}\ns_nop 0\n{op} v{v}, v{v}, v{tmp}")
cross_rows("v_max_f32", 30, 12)
for i in range(32):
    A(f"v_sub_f32 v12, v{S+i}, v30\nv_mul_f32 v12, s13, v12\nv_exp_f32 v{S+i}, v12")
A("s_nop 0")
A(f"v_add_f32 v31, v{S}, v{S+1}")
for i in range(2, 32): A(f"v_add_f32 v31, v31, v{S+i}")
cross_rows("v_add_f32", 31, 12)
A("""v_lshrrev_b32 v12, 5, v1
v_lshlrev_b32 v12, 5, v12
v_bfe_u32 v13, v1, 4, 1
v_lshl_add_u32 v12, v13, 2, v12
s_lshl_b32 s15, s6, 9
v_add_u32 v12, s15, v12
s_mov_b32 exec_lo, 0x00010001
s_mov_b32 exec_hi, 0x00010001""")
for t in range(8):
    for i in range(4): A(f"ds_write_b32 v12, v{S+4*t+i} offset:{PL+64*t+8*i}")
A("s_mov_b64 exec, -1")
A("v_lshrrev_b32 v29, 5, v1\nv_lshlrev_b32 v29, 5, v29\nv_add_u32 v29, s15, v29")
for k in range(8): A(f"v_mov_b32 v{4+k}, 0")
PV = [12, 20]
A("s_waitcnt lgkmcnt(0)")
A(f"ds_read_b128 v[12:15], v29 offset:{PL}\nds_read_b128 v[16:19], v29 offset:{PL+16}")
for t in range(8):
    n = 8 + t
    b = tbuf(n)
    pv = PV[t & 1]
    A("s_waitcnt lgkmcnt(0)")
    if t < 7:
        pn = PV[(t+1) & 1]
        A(f"ds_read_b128 v[{pn}:{pn+3}], v29 offset:{PL+64*(t+1)}\nds_read_b128 v[{pn+4}:{pn+7}], v29 offset:{PL+64*(t+1)+16}")
    if TB: A("s_barrier")
    vm.wait(f"t{n}")
    for j in range(8):
        for k in range(4):
            w = b + 4*j + k
            A(f"v_lshlrev_b32 v28, 16, v{w}\nv_fmac_f32 v{4+2*k}, v{pv+j}, v28")
            A(f"v_and_b32 v28, s14, v{w}\nv_fmac_f32 v{5+2*k}, v{pv+j}, v28")
    advance(n)
stamp(5)
A("s_lshl_b32 s9, s6, 11\nv_lshlrev_b32 v12, 5, v1\nv_add_u32 v12, s9, v12")
A(f"ds_write_b128 v12, v[4:7] offset:{OP}\nds_write_b128 v12, v[8:11] offset:{OP+16}")
A("s_lshl_b32 s9, s6, 3\nv_mov_b32 v12, s9\ns_mov_b64 exec, 1")
A(f"ds_write_b64 v12, v[30:31] offset:{MLS}")
A("s_mov_b64 exec, -1")
A("s_waitcnt lgkmcnt(0)\ns_barrier")
A("s_cmp_lt_u32 s6, 4\ns_cbranch_scc0 L_pub_a")
CB = 64
A("v_mov_b32 v12, 0")
for i in range(4): A(f"ds_read_b128 v[{CB+4*i}:{CB+4*i+3}], v12 offset:{MLS+16*i}")
A("v_lshlrev_b32 v12, 2, v0")
for w in range(8):
    A(f"ds_read_b32 v{CB+16+2*w}, v12 offset:{OP+2048*w}\nds_read_b32 v{CB+17+2*w}, v12 offset:{OP+2048*w+1024}")
A("s_waitcnt lgkmcnt(0)")
A(f"v_max3_f32 v30, v{CB}, v{CB+2}, v{CB+4}\nv_max3_f32 v30, v30, v{CB+6}, v{CB+8}\nv_max3_f32 v30, v30, v{CB+10}, v{CB+12}\nv_max_f32 v30, v30, v{CB+14}")
A("v_mov_b32 v31, 0\nv_mov_b32 v13, 0")
for w in range(8):
    A(f"v_sub_f32 v14, v{CB+2*w}, v30\nv_mul_f32 v14, s13, v14\nv_exp_f32 v14, v14")
    A(f"v_add_f32 v15, v{CB+16+2*w}, v{CB+17+2*w}")
    A(f"v_fmac_f32 v31, v14, v{CB+2*w+1}\nv_fmac_f32 v13, v14, v15")
A("s_lshl_b32 s15, s7, 3\ns_add_u32 s15, s15, s5")
A(f"s_lshl_b32 s9, s15, 11\ns_add_u32 s9, s9, 0x{WS_PO:x}")
A("v_mov_b32 v14, v13\nv_mov_b32 v15, s16\nv_lshlrev_b32 v12, 3, v0")
A(f"buffer_store_dwordx2 v[14:15], v12, {srd(SWS)}, s9 offen sc1")
A("s_cmp_eq_u32 s6, 0\ns_cbranch_scc0 L_pub_a")
A("v_mov_b32 v16, v30\nv_mov_b32 v17, s16\nv_mov_b32 v18, v31\nv_mov_b32 v19, s16")
A(f"s_lshl_b32 s9, s15, 4\ns_add_u32 s9, s9, 0x{WS_ML:x}\ns_mov_b64 exec, 1")
A(f"buffer_store_dwordx4 v[16:19], v12, {srd(SWS)}, s9 offen sc1")
A("v_mov_b32 v26, 1\nv_mov_b32 v27, 4\nv_mov_b32 v25, 0")
A(f"buffer_atomic_add v26, v27, {srd(SDBG)}, 0 offen sc0")
A("s_waitcnt vmcnt(0)")
A(f"ds_write_b32 v25, v26 offset:{TICK}")
A("s_mov_b64 exec, -1")
A("L_pub_a:")
stamp(6)
A("L_role_a:")
A("s_waitcnt lgkmcnt(0)\ns_barrier")
A(f"v_mov_b32 v5, 0\nds_read_b32 v4, v5 offset:{TICK}\ns_waitcnt lgkmcnt(0)")
A("v_readfirstlane_b32 s5, v4")
A("v_mov_b32 v5, 0x7f000000\nv_cmp_gt_u32 vcc, 56, v1\ns_nop 1\nv_cndmask_b32 v31, v5, v3, vcc")
if DIAG:
    A("s_mov_b64 exec, 1")
    for i in range(12): A(f"v_mov_b32 v{4+i}, s{88+i}")
    A(f"v_mov_b32 v20, 0\ns_lshl_b32 s9, s2, 3\ns_add_u32 s9, s9, s6\ns_lshl_b32 s9, s9, 6\ns_add_u32 s9, s9, 0x{WS_DG:x}")
    for i in range(3): A(f"buffer_store_dwordx4 v[{4+4*i}:{7+4*i}], v20, {srd(SWS)}, s9 offen offset:{16*i}")
    A("s_mov_b64 exec, -1")
    for i in range(12): A(f"s_mov_b32 s{88+i}, 0")
    A("s_add_u32 s2, s5, 256")
    stamp(0)
A(f"s_cmp_ge_u32 s5, {NARR}\ns_cbranch_scc1 L_end")
A(f"s_cmp_ge_u32 s5, {NFFN}\ns_cbranch_scc1 L_cmb")
A("s_branch L_ffn")

def publish_tail(tag=""):
    A(f"s_mul_i32 s9, s6, 3584\ns_add_u32 s9, s9, {DP}\nv_lshlrev_b32 v28, 5, v1\nv_add_u32 v28, s9, v28")
    A("s_mov_b32 exec_hi, 0x00ffffff")
    A(f"ds_write_b128 v28, v[4:7]\nds_write_b128 v28, v[8:11] offset:16")
    A(f"ds_write_b128 v28, v[12:15] offset:1792\nds_write_b128 v28, v[16:19] offset:{1792+16}")
    A("s_mov_b32 exec_hi, -1")
    A("s_waitcnt lgkmcnt(0)\ns_barrier")
    A("v_cmp_gt_u32 vcc, 224, v0\ns_and_saveexec_b64 s[80:81], vcc\ns_cbranch_execz L_pt_c" + tag)
    A(f"v_lshlrev_b32 v28, 4, v0\nv_add_u32 v29, {DP}, v28")
    for w in range(8):
        A(f"ds_read_b128 v[{64+4*w}:{67+4*w}], v29 offset:{3584*w}")
    A("s_waitcnt lgkmcnt(0)")
    for w in range(1, 8):
        for k in range(4): A(f"v_add_f32 v{64+k}, v{64+k}, v{64+4*w+k}")
    A("v_mov_b32 v72, v64\nv_mov_b32 v73, s16\nv_mov_b32 v74, v65\nv_mov_b32 v75, s16\nv_mov_b32 v76, v66\nv_mov_b32 v77, s16\nv_mov_b32 v78, v67\nv_mov_b32 v79, s16")
    A("v_lshlrev_b32 v28, 5, v0")
    A(f"buffer_store_dwordx4 v[72:75], v28, {srd(SWS)}, s15 offen sc1")
    A(f"buffer_store_dwordx4 v[76:79], v28, {srd(SWS)}, s15 offen offset:16 sc1")
    A("L_pt_c" + tag + ":")
    A("s_mov_b64 exec, -1")

A("L_ffn:")
FG, FD = 96, 192
A(f"buffer_load_dwordx4 v[8:11], v31, {srd(SX)}, 0 offen")
A(f"buffer_load_dwordx4 v[12:15], v31, {srd(SX)}, 0 offen offset:896")
A("""v_lshrrev_b32 v6, 2, v1
s_movk_i32 s9, 3584
v_mul_lo_u32 v6, v6, s9
v_and_b32 v7, 3, v1
v_lshl_add_u32 v6, v7, 4, v6
s_and_b32 s9, s6, 3
s_mul_i32 s9, s9, 401408
s_lshl_b32 s10, s5, 6
s_add_u32 s9, s9, s10""")
for j in range(7):
    A(f"buffer_load_dwordx4 v[{FG+4*j}:{FG+4*j+3}], v6, {srd(SGU)}, s9 offen")
    if j < 6: A("s_add_u32 s9, s9, 57344")
A("s_lshl_b32 s9, s5, 3\ns_add_u32 s9, s9, s6\ns_mul_i32 s9, s9, 3584")
for j in range(4):
    A(f"buffer_load_dwordx4 v[{FD+4*j}:{FD+4*j+3}], v31, {srd(SWD)}, s9 offen offset:{896*j}")
A("s_waitcnt vmcnt(11)")
for bb in range(2):
    layernorm(8 + 4*bb)
    A("s_mov_b32 exec_hi, 0x00ffffff")
    A("v_lshlrev_b32 v25, 5, v1")
    A(f"ds_write_b128 v25, v[16:19] offset:{XNF+1792*bb}")
    A(f"ds_write_b128 v25, v[20:23] offset:{XNF+1792*bb+16}")
    A("s_mov_b32 exec_hi, -1")
A("""s_and_b32 s9, s6, 3
s_mul_i32 s9, s9, 448
v_lshrrev_b32 v26, 2, v1
v_lshlrev_b32 v26, 2, v26
v_add_u32 v26, s9, v26""")
for k in range(16): A(f"v_mov_b32 v{4+k}, 0")
A("s_waitcnt lgkmcnt(0)")
for j in range(7):
    A(f"ds_read_b32 v{128+2*j}, v26 offset:{XNF+64*j}\nds_read_b32 v{129+2*j}, v26 offset:{XNF+1792+64*j}")
A("s_waitcnt lgkmcnt(0)\ns_waitcnt vmcnt(4)")
for j in range(7):
    for k in range(4):
        w = FG + 4*j + k
        A(f"v_lshlrev_b32 v22, 16, v{w}\nv_and_b32 v23, s14, v{w}")
        A(f"v_fmac_f32 v{4+2*k}, v{128+2*j}, v22\nv_fmac_f32 v{5+2*k}, v{128+2*j}, v23")
        A(f"v_fmac_f32 v{12+2*k}, v{129+2*j}, v22\nv_fmac_f32 v{13+2*k}, v{129+2*j}, v23")
A("""v_lshrrev_b32 v27, 2, v1
v_lshlrev_b32 v27, 8, v27
v_and_b32 v22, 3, v1
v_lshl_add_u32 v27, v22, 5, v27
s_lshl_b32 s9, s6, 12
v_add_u32 v27, s9, v27""")
A(f"ds_write_b128 v27, v[4:7] offset:{GP}\nds_write_b128 v27, v[8:11] offset:{GP+16}")
A(f"ds_write_b128 v27, v[12:15] offset:{GP+128}\nds_write_b128 v27, v[16:19] offset:{GP+144}")
A("s_waitcnt lgkmcnt(0)\ns_barrier")
A("s_cmp_lt_u32 s6, 2\ns_cbranch_scc0 L_ffn_a")
A("s_lshl_b32 s9, s6, 14\nv_lshlrev_b32 v26, 2, v1\nv_add_u32 v26, s9, v26")
for g in range(4):
    for i in range(16):
        A(f"ds_read_b32 v{128+16*g+i}, v26 offset:{GP+4096*g+256*i}")
A("s_waitcnt lgkmcnt(0)")
A("v_add_f32 v4, v128, v129")
for i in range(2, 64): A(f"v_add_f32 v4, v4, v{128+i}")
rbf(4, 4)
A("s_lshl_b32 s9, s6, 8\nv_lshlrev_b32 v26, 2, v1\nv_add_u32 v26, s9, v26")
A(f"ds_write_b32 v26, v4 offset:{GUS}")
A("L_ffn_a:")
A("s_waitcnt lgkmcnt(0)\ns_barrier")
A("s_cmp_eq_u32 s6, 0\ns_cbranch_scc0 L_ffn_b")
A("v_lshlrev_b32 v26, 2, v1")
A(f"ds_read_b32 v4, v26 offset:{GUS}\nds_read_b32 v5, v26 offset:{GUS+256}")
A("s_waitcnt lgkmcnt(0)")
A(f"v_mul_f32 v6, 0x{f32bits(-1.4426950408889634):08x}, v4")
A("v_exp_f32 v6, v6\ns_nop 0\nv_add_f32 v6, 1.0, v6\nv_rcp_f32 v7, v6\ns_nop 0")
A("v_mul_f32 v8, v4, v7\nv_fma_f32 v9, -v8, v6, v4\nv_fma_f32 v8, v9, v7, v8")
rbf(8, 8)
A("v_mul_f32 v8, v8, v5")
rbf(8, 8)
A(f"ds_write_b32 v26, v8 offset:{HS}")
A("L_ffn_b:")
A("s_waitcnt lgkmcnt(0)\ns_barrier")
A("s_lshl_b32 s9, s6, 4\nv_mov_b32 v26, s9")
A(f"ds_read_b128 v[20:23], v26 offset:{HS}\nds_read_b128 v[24:27], v26 offset:{HS+128}")
for k in range(16): A(f"v_mov_b32 v{4+k}, 0")
A("s_waitcnt lgkmcnt(0)\ns_waitcnt vmcnt(0)")
for j in range(4):
    for k in range(4):
        w = FD + 4*j + k
        A(f"v_lshlrev_b32 v28, 16, v{w}\nv_and_b32 v29, s14, v{w}")
        A(f"v_fmac_f32 v{4+2*k}, v{20+j}, v28\nv_fmac_f32 v{5+2*k}, v{20+j}, v29")
        A(f"v_fmac_f32 v{12+2*k}, v{24+j}, v28\nv_fmac_f32 v{13+2*k}, v{24+j}, v29")
A(f"s_mul_i32 s15, s5, 7168\ns_add_u32 s15, s15, 0x{WS_FP:x}\ns_mov_b32 s5, 99")
A("s_branch L_tail")


A("L_cmb:")
A(f"s_sub_u32 s5, s5, {NFFN}\ns_lshr_b32 s3, s5, 2\ns_and_b32 s4, s5, 3")
WO = 224
A("s_lshl_b32 s9, s5, 3\ns_add_u32 s9, s9, s6\ns_mul_i32 s9, s9, 7168")
for i in range(8):
    if i == 4: A("s_add_u32 s9, s9, 3584")
    A(f"buffer_load_dwordx4 v[{WO+4*i}:{WO+4*i+3}], v31, {srd(SWO)}, s9 offen offset:{896*(i%4)}")
A("s_cmp_eq_u32 s6, 0\ns_cbranch_scc0 L_cmb_w")
A("v_bfe_u32 v28, v1, 3, 1\nv_lshlrev_b32 v28, 11, v28\nv_and_b32 v29, 7, v1\nv_lshl_add_u32 v28, v29, 4, v28")
A(f"s_lshl_b32 s9, s3, 7\ns_add_u32 s9, s9, 0x{WS_ML:x}")
A("s_mov_b64 exec, 0xffff")
A("L_cpoll:")
A(f"buffer_load_dwordx4 v[4:7], v28, {srd(SWS)}, s9 offen sc1")
A("s_waitcnt vmcnt(0)")
A("v_cmp_eq_u32 vcc, s16, v5\nv_cmp_eq_u32 s[80:81], s16, v7\ns_nop 3\ns_and_b64 vcc, vcc, s[80:81]\ns_cmp_eq_u64 vcc, exec\ns_cbranch_scc1 L_cgot")
if CSLP: A(f"s_sleep {CSLP}")
A("s_branch L_cpoll")
A("L_cgot:")
A("s_mov_b64 exec, -1")
A("L_cmb_w:")
A("s_barrier")
stamp(1)
A("""v_and_b32 v4, 7, v1
v_bfe_u32 v5, v1, 3, 1
v_lshlrev_b32 v6, 18, v5
v_lshl_add_u32 v6, v4, 3, v6
v_lshlrev_b32 v7, 11, v5""")
A("L_cload:")
A(f"s_lshl_b32 s9, s3, 14\ns_lshl_b32 s10, s4, 9\ns_add_u32 s9, s9, s10\ns_lshl_b32 s10, s6, 6\ns_add_u32 s9, s9, s10\ns_add_u32 s9, s9, 0x{WS_PO:x}")
for sp in range(8):
    A(f"buffer_load_dwordx2 v[{128+2*sp}:{129+2*sp}], v6, {srd(SWS)}, s9 offen offset:{2048*(sp%2)} sc1")
    if sp % 2 == 1 and sp < 7: A("s_add_u32 s9, s9, 4096")
A(f"s_lshl_b32 s9, s3, 7\ns_add_u32 s9, s9, 0x{WS_ML:x}")
for sp in range(8): A(f"buffer_load_dwordx4 v[{144+4*sp}:{147+4*sp}], v7, {srd(SWS)}, s9 offen offset:{16*sp} sc1")
A("s_waitcnt vmcnt(0)")
A("s_mov_b64 s[82:83], -1")
for sp in range(8):
    A(f"v_cmp_eq_u32 vcc, s16, v{129+2*sp}\ns_nop 3\ns_and_b64 s[82:83], s[82:83], vcc")
A("s_cmp_eq_u64 s[82:83], -1\ns_cbranch_scc0 L_cload")
m0 = 144
A(f"v_max3_f32 v10, v{m0}, v{m0+4}, v{m0+8}\nv_max3_f32 v10, v10, v{m0+12}, v{m0+16}\nv_max3_f32 v10, v10, v{m0+20}, v{m0+24}\nv_max_f32 v10, v10, v{m0+28}")
A("v_mov_b32 v11, 0\nv_mov_b32 v12, 0")
for sp in range(8):
    A(f"v_sub_f32 v13, v{m0+4*sp}, v10\nv_mul_f32 v13, s13, v13\nv_exp_f32 v13, v13\ns_nop 0")
    A(f"v_fmac_f32 v11, v13, v{m0+4*sp+2}\nv_fmac_f32 v12, v13, v{128+2*sp}")
A("v_rcp_f32 v13, v11\ns_nop 0\nv_mul_f32 v14, v12, v13\nv_fma_f32 v15, -v14, v11, v12\nv_fma_f32 v14, v15, v13, v14")
rbf(14, 14)
A("s_nop 0")
for i in range(16): A(f"v_readlane_b32 s{20+i}, v14, {i}")
for k in range(16): A(f"v_mov_b32 v{4+k}, 0")
for i in range(8):
    for k in range(4):
        w = WO + 4*i + k
        A(f"v_lshlrev_b32 v28, 16, v{w}\nv_and_b32 v29, s14, v{w}")
        A(f"v_fmac_f32 v{4+2*k}, s{20+i}, v28\nv_fmac_f32 v{5+2*k}, s{20+i}, v29")
        A(f"v_fmac_f32 v{12+2*k}, s{28+i}, v28\nv_fmac_f32 v{13+2*k}, s{28+i}, v29")
A(f"s_mul_i32 s15, s5, 7168\ns_add_u32 s15, s15, 0x{WS_YC:x}")
A("L_tail:")
stamp(2)
publish_tail()
stamp(3)
A(f"s_cmp_ge_u32 s5, {NFIN}\ns_cbranch_scc1 L_fin_end")
A("s_and_b32 s4, s5, 1\ns_lshr_b32 s5, s5, 1")
A("v_lshlrev_b32 v6, 3, v1\ns_lshl_b32 s10, s5, 9\nv_add_u32 v6, s10, v6")
A("v_lshrrev_b32 v7, 2, v6\ns_mul_i32 s10, s4, 896")
A(f"buffer_load_ushort v100, v7, {srd(SX)}, s10 offen")
A("s_mul_i32 s15, s4, 3584")
A("L_fpoll:")
A(f"s_mul_i32 s10, s6, {8*7168}\ns_add_u32 s10, s10, s15\ns_add_u32 s10, s10, 0x{WS_YC:x}")
for i in range(8):
    A(f"buffer_load_dwordx2 v[{64+2*i}:{65+2*i}], v6, {srd(SWS)}, s10 offen sc1")
    A("s_add_u32 s10, s10, 7168")
A(f"s_mul_i32 s10, s6, {7*7168}\ns_add_u32 s10, s10, s15\ns_add_u32 s10, s10, 0x{WS_FP:x}")
for i in range(7):
    A(f"buffer_load_dwordx2 v[{80+2*i}:{81+2*i}], v6, {srd(SWS)}, s10 offen sc1")
    A("s_add_u32 s10, s10, 7168")
A("s_waitcnt vmcnt(0)")
A("s_mov_b64 s[82:83], -1")
for i in range(15):
    A(f"v_cmp_eq_u32 vcc, s16, v{65+2*i}\ns_nop 3\ns_and_b64 s[82:83], s[82:83], vcc")
A("s_cmp_eq_u64 s[82:83], -1\ns_cbranch_scc1 L_fgot")
if FSLP: A(f"s_sleep {FSLP}")
A("s_branch L_fpoll")
A("L_fgot:")
stamp(5)
A("v_add_f32 v8, v64, v66")
for i in range(2, 8): A(f"v_add_f32 v8, v8, v{64+2*i}")
A("v_add_f32 v9, v80, v82")
for i in range(2, 7): A(f"v_add_f32 v9, v9, v{80+2*i}")
A("s_lshl_b32 s9, s6, 8\nv_lshlrev_b32 v10, 2, v1\nv_add_u32 v10, s9, v10")
A(f"ds_write_b32 v10, v8 offset:{PL}\nds_write_b32 v10, v9 offset:{PL+2048}")
A("s_waitcnt lgkmcnt(0)\ns_barrier")
A("s_cmp_eq_u32 s6, 0\ns_cbranch_scc0 L_fin_end")
A("v_lshlrev_b32 v10, 2, v1")
for g in range(8): A(f"ds_read_b32 v{12+g}, v10 offset:{PL+256*g}\nds_read_b32 v{20+g}, v10 offset:{PL+2048+256*g}")
A("s_waitcnt lgkmcnt(0)")
for g in range(1, 8): A(f"v_add_f32 v12, v12, v{12+g}\nv_add_f32 v20, v20, v{20+g}")
rbf(12, 12); rbf(20, 20)
A("v_lshlrev_b32 v100, 16, v100\nv_add_f32 v12, v100, v12")
rbf(12, 12)
A("v_add_f32 v12, v12, v20\nv_cvt_pk_bf16_f32 v12, v12, v12")
A("s_mul_i32 s10, s4, 896")
A(f"buffer_store_short v12, v7, {srd(SOUT)}, s10 offen")
stamp(6)
A("L_fin_end:")
if DIAG:
    A("s_mov_b64 exec, 1")
    for i in range(12): A(f"v_mov_b32 v{4+i}, s{88+i}")
    A(f"v_mov_b32 v20, 0\ns_lshl_b32 s9, s2, 3\ns_add_u32 s9, s9, s6\ns_lshl_b32 s9, s9, 6\ns_add_u32 s9, s9, 0x{WS_DG:x}")
    for i in range(3): A(f"buffer_store_dwordx4 v[{4+4*i}:{7+4*i}], v20, {srd(SWS)}, s9 offen offset:{16*i}")
A("L_end:\ns_endpgm")
A(f'''.section .rodata,"a"
.p2align 6
.amdhsa_kernel {KN}
  .amdhsa_next_free_vgpr 256
  .amdhsa_next_free_sgpr 102
  .amdhsa_accum_offset 256
  .amdhsa_group_segment_fixed_size 0
  .amdhsa_kernarg_size 96
  .amdhsa_user_sgpr_count 2
  .amdhsa_user_sgpr_kernarg_segment_ptr 1
  .amdhsa_system_sgpr_workgroup_id_x 1
.end_amdhsa_kernel''')
print("\n".join(out))
```

```python
import sys, struct

KN = "parallel_sum__mha_block_cached__swiglu_ffn__decode_kernel"
out = []
ARGS = sys.argv[1:]
DIAG = "diag" in ARGS
TB = "tb" in ARGS
NB = 6
NBP = 4
PACE = 0
SLP = 0
TB0 = 0
LA = 6
CSLP = 0
NOQ = "noq" in ARGS
WNT = " nt" if "wnt" in ARGS else ""
QNT2 = " nt" if "qnt2" in ARGS else ""
KVF = "nt"
for a in ARGS:
    if a.startswith("kvf="): KVF = a[4:].replace("_", " ")
NB0 = 99
for a in ARGS:
    if a.startswith("nb0="): NB0 = int(a[4:])
NB0 = min(NB0, NBP)
STD = "std" in ARGS
W0E = "w0e" in ARGS
FSLP = 4
for a in ARGS:
    if a.startswith("fslp="): FSLP = int(a[5:])
QNT = " nt" if "qnt" in ARGS else ""
for a in ARGS:
    if a.startswith("nb="): NB = int(a[3:])
    if a.startswith("nbp="): NBP = int(a[4:])
    if a.startswith("pace="): PACE = int(a[5:])
    if a.startswith("slp="): SLP = int(a[4:])
    if a.startswith("tb0="): TB0 = int(a[4:])
    if a.startswith("la="): LA = int(a[3:])
    if a.startswith("cslp="): CSLP = int(a[5:])
def A(s):
    for line in s.split("\n"):
        out.append(line)
def stamp(i):
    if not DIAG: return
    A("s_memrealtime s[100:101]\ns_waitcnt lgkmcnt(0)")
    A(f"s_mov_b32 s{88+i}, s100")

def f32bits(x):
    return struct.unpack("<I", struct.pack("<f", x))[0]

class VM:
    def __init__(self): self.q = []
    def issue(self, tag): self.q.append(tag)
    def wait(self, tag):
        idxs = [i for i, t in enumerate(self.q) if t == tag]
        if not idxs: return
        idx = max(idxs)
        n = len(self.q) - 1 - idx
        A(f"s_waitcnt vmcnt({min(n,63)})")
        self.q = self.q[idx+1:] if n <= 63 else self.q[len(self.q)-63:]
vm = VM()

XNF = 0
XNB = 3584
QB = 5376
TICK = 5888
MLS = 5952
GUS = 6016
HS = 6528
PL = 8192
OP = 16384
GP = 16384
DP = 49152
LDS_BYTES = 49152 + 28672

WS_QS = 0x00000
WS_PO = 0x10000
WS_ML = 0x90000
WS_YC = 0x91000
WS_FP = 0x101000
WS_DG = 0x180000
WS_BYTES = 0x200000
NONCE = 5900
NFFN = 56
NCMB = 64
NFIN = 14
NARR = NFFN + NCMB
SPIN_LIMIT = 20000
for a in ARGS:
    if a.startswith("spin="): SPIN_LIMIT = int(a[5:])

SX, SK, SV, SWQ, SWO, SGU, SWD, SOUT, SDBG, SWS = 40, 44, 48, 52, 56, 60, 64, 68, 72, 76
def srd(r): return f"s[{r}:{r+3}]"

B = [64, 96, 128, 160, 192, 224][:NB]
Q = 32

A(f"; @launch grid=(256,1,1) block=(512,1,1) lds={LDS_BYTES}")
A('.amdgcn_target "amdgcn-amd-amdhsa--gfx950"')
A(".text")
A(f".globl {KN}\n.p2align 8\n.type {KN},@function\n{KN}:")
A("s_cmp_ge_u32 s2, 256\ns_cbranch_scc1 L_end")
A("s_load_dwordx16 s[16:31], s[0:1], 0")
A("s_load_dwordx8 s[32:39], s[0:1], 64")
A("v_and_b32 v1, 63, v0")
A("v_lshrrev_b32 v4, 6, v0")
A("s_nop 0")
A("v_readfirstlane_b32 s6, v4")
A("""s_and_b32 s5, s2, 7
s_lshr_b32 s7, s2, 3
s_and_b32 s3, s7, 15
s_lshr_b32 s4, s7, 4
s_and_b32 s4, s4, 1
s_lshl_b32 s8, s7, 22
s_lshl_b32 s9, s5, 19
s_add_u32 s8, s8, s9""")
A("s_mov_b32 s11, 0x05040100\ns_mov_b32 s12, 0x07060302")
A(f"s_mov_b32 s13, 0x{f32bits(0.0625*1.4426950408889634):08x}")
A("s_mov_b32 s14, 0xffff0000")
A("""v_and_b32 v2, 15, v1
v_lshlrev_b32 v2, 9, v2
v_lshrrev_b32 v4, 4, v1
v_lshl_or_b32 v2, v4, 4, v2
v_lshlrev_b32 v3, 4, v1
v_mov_b32 v5, 0x7f000000
v_cmp_gt_u32 vcc, 56, v1
s_nop 1
v_cndmask_b32 v31, v5, v3, vcc""")
A("s_waitcnt lgkmcnt(0)")
if DIAG:
    for i in range(12): A(f"s_mov_b32 s{88+i}, 0")
stamp(0)
def mk(r, lo, nbytes):
    A(f"s_mov_b32 s{r}, s{lo}\ns_mov_b32 s{r+1}, s{lo+1}\ns_mov_b32 s{r+2}, 0x{nbytes:x}\ns_mov_b32 s{r+3}, 0x20000")
mk(SK, 18, 1<<27); mk(SX, 16, 1792); mk(SWQ, 22, 448*4096*2)
mk(SV, 20, 1<<27); mk(SWO, 24, 4096*448*2)
mk(SWD, 32, 1792*448*2); mk(SOUT, 34, 1792); mk(SDBG, 36, 256); mk(SWS, 38, WS_BYTES)
A("s_cmp_lt_u32 s6, 4")
A(f"s_cselect_b32 s{SGU}, s28, s30\ns_cselect_b32 s{SGU+1}, s29, s31\ns_mov_b32 s{SGU+2}, 0x{448*1792*2:x}\ns_mov_b32 s{SGU+3}, 0x20000")
A("s_sub_u32 s9, s6, 1")
for t in range(8):
    base = 7*t if t < 6 else 50 + 7*(t-6)
    if NOQ or STD: A(f"s_add_u32 s10, s6, {8*t}\ns_lshl_b32 s10, s10, 13\ns_add_u32 s{20+t}, s8, s10")
    else: A(f"s_add_u32 s10, s9, {base}\ns_cmp_eq_u32 s6, 0\ns_cselect_b32 s10, {42+t}, s10\ns_lshl_b32 s10, s10, 13\ns_add_u32 s{20+t}, s8, s10")

def tbuf(n): return B[(n + 3) % NB]
def issue_tile(n, track=True):
    b = tbuf(n)
    A(f"s_add_u32 s10, s{20+n%8}, 4096")
    for j in range(8):
        A(f"buffer_load_dwordx4 v[{b+4*j}:{b+4*j+3}], v3, {srd(SK if n < 8 else SV)}, {f's{20+n%8}' if j<4 else 's10'} offen offset:{1024*(j%4)} {KVF}")
        if track: vm.issue(f"t{n}")

def row_reduce(op, v, tmp):
    for r in (8, 4, 2, 1):
        A("s_nop 1")
        A(f"{op}_dpp v{tmp}, v{v}, v{v} row_ror:{r} row_mask:0xf bank_mask:0xf")
        A(f"v_mov_b32 v{v}, v{tmp}")
def wave_sum(v, tmp):
    row_reduce("v_add_f32", v, tmp)
    A("s_nop 0")
    for i in range(4): A(f"v_readlane_b32 s{80+i}, v{v}, {16*i}")
    A("s_nop 1")
    A(f"v_mov_b32 v{v}, s80\nv_add_f32 v{v}, s81, v{v}\nv_add_f32 v{v}, s82, v{v}\nv_add_f32 v{v}, s83, v{v}")
def div448(v, tmp1, tmp2):
    A(f"v_mul_f32 v{tmp1}, 0x{f32bits(1.0/448):08x}, v{v}")
    A(f"v_mov_b32 v{tmp2}, 0x{f32bits(448.0):08x}")
    A(f"v_fma_f32 v{tmp2}, -v{tmp1}, v{tmp2}, v{v}")
    A(f"v_mul_f32 v{tmp2}, 0x{f32bits(1.0/448):08x}, v{tmp2}")
    A(f"v_add_f32 v{v}, v{tmp1}, v{tmp2}")
def rbf(vd, vs):
    A(f"v_cvt_pk_bf16_f32 v{vd}, 0, v{vs}")
def layernorm(r):
    E = 16
    for k in range(4):
        A(f"v_lshlrev_b32 v{E+2*k}, 16, v{r+k}\nv_and_b32 v{E+2*k+1}, s14, v{r+k}")
    A(f"v_add_f32 v24, v{E}, v{E+1}")
    for k in range(2, 8): A(f"v_add_f32 v24, v24, v{E+k}")
    wave_sum(24, 25)
    div448(24, 25, 26)
    A("v_mov_b32 v27, 0")
    for k in range(8):
        A(f"v_sub_f32 v25, v{E+k}, v24\nv_fmac_f32 v27, v25, v25")
    A("v_cmp_gt_u32 vcc, 56, v1\ns_nop 1\nv_cndmask_b32 v27, 0, v27, vcc")
    wave_sum(27, 25)
    div448(27, 25, 26)
    rbf(27, 27)
    rbf(24, 24)
    A(f"v_add_f32 v27, 0x{f32bits(1e-5):08x}, v27")
    rbf(27, 27)
    A("v_sqrt_f32 v27, v27\ns_nop 0")
    rbf(27, 27)
    A("v_rcp_f32 v28, v27\ns_nop 0")
    for k in range(8):
        A(f"v_sub_f32 v{E+k}, v{E+k}, v24")
        rbf(E+k, E+k)
        A(f"v_mul_f32 v25, v{E+k}, v28")
        A(f"v_fma_f32 v26, -v25, v27, v{E+k}")
        A(f"v_fma_f32 v{E+k}, v26, v28, v25")
    for k in range(4):
        A(f"v_cvt_pk_bf16_f32 v{r+k}, v{E+2*k}, v{E+2*k+1}")
    for k in range(4):
        A(f"v_lshlrev_b32 v{E+2*k}, 16, v{r+k}\nv_and_b32 v{E+2*k+1}, s14, v{r+k}")

QW = 7168
QFLAG = 5904
W = 64
A("s_mul_i32 s10, s4, 896")
A(f"buffer_load_dwordx4 v[8:11], v31, {srd(SX)}, s10 offen")
A("""v_lshrrev_b32 v5, 2, v1
v_lshlrev_b32 v126, 13, v5
v_and_b32 v6, 3, v1
v_lshl_add_u32 v126, v6, 4, v126
v_lshlrev_b32 v127, 2, v5
s_lshl_b32 s9, s6, 6
v_add_u32 v127, s9, v127""")
A("s_mov_b32 s84, s5\ns_mov_b32 s86, 0")
A("s_cmp_eq_u32 s6, 0\ns_cbranch_scc0 L_nononce")
A("s_memrealtime s[16:17]\nv_mov_b32 v125, 64\ns_waitcnt lgkmcnt(0)\ns_or_b32 s16, s16, 1")
A("v_mov_b32 v122, s16\nv_mov_b32 v123, 0\ns_mov_b64 exec, 1")
A(f"buffer_atomic_cmpswap v[122:123], v125, {srd(SDBG)}, 0 offen sc0")
A("s_mov_b64 exec, -1")
A("L_nononce:")
def wq_loads():
    A("s_lshl_b32 s9, s84, 6\ns_lshl_b32 s10, s3, 9\ns_add_u32 s9, s9, s10\ns_lshl_b32 s10, s6, 17\ns_add_u32 s9, s9, s10")
    for j in range(4):
        A(f"buffer_load_dwordx4 v[{W+4*j}:{W+4*j+3}], v126, {srd(SWQ)}, s9 offen{QNT2}")
        if j < 3: A("s_add_u32 s9, s9, 1048576")
wq_loads()
for n in range(NB0): issue_tile(n, track=False)
stamp(7)
A(f"s_waitcnt vmcnt({4+8*NB0})")
stamp(8)
layernorm(8)
A("v_cmp_gt_u32 vcc, 56, v1\ns_nop 1")
for k in range(8): A(f"v_cndmask_b32 v{16+k}, 0, v{16+k}, vcc")
A("v_lshlrev_b32 v25, 5, v1")
A(f"ds_write_b128 v25, v[16:19] offset:{XNF}\nds_write_b128 v25, v[20:23] offset:{XNF+16}")
A("s_waitcnt lgkmcnt(0)")
for j in range(4): A(f"ds_read_b32 v{20+j}, v127 offset:{XNF+512*j}")
stamp(1)
A("s_branch L_share_body")
A("L_share_loop:")
wq_loads()
A("s_waitcnt vmcnt(0)")
A("L_share_body:")
for k in range(8): A(f"v_mov_b32 v{4+k}, 0")
A("s_waitcnt lgkmcnt(0)")
for j in range(4):
    A(f"s_waitcnt vmcnt({3-j+8*NB0})")
    for k in range(4):
        w = W + 4*j + k
        A(f"v_lshlrev_b32 v28, 16, v{w}\nv_and_b32 v29, s14, v{w}")
        A(f"v_fmac_f32 v{4+2*k}, v{20+j}, v28\nv_fmac_f32 v{5+2*k}, v{20+j}, v29")
stamp(9)
for r in (4, 8):
    A("s_nop 1")
    for k in range(8): A(f"v_add_f32_dpp v{4+k}, v{4+k}, v{4+k} row_ror:{r} row_mask:0xf bank_mask:0xf")
for sw in ("v_permlane16_swap_b32", "v_permlane32_swap_b32"):
    for k in range(8): A(f"v_mov_b32 v{12+k}, v{4+k}")
    A("s_nop 1")
    for k in range(8): A(f"{sw} v{4+k}, v{12+k}")
    A("s_nop 1")
    for k in range(8): A(f"v_add_f32 v{4+k}, v{4+k}, v{12+k}")
A("v_lshlrev_b32 v28, 5, v1\ns_lshl_b32 s9, s6, 7\nv_add_u32 v28, s9, v28\ns_mov_b64 exec, 15")
A(f"ds_write_b128 v28, v[4:7] offset:{QW}\nds_write_b128 v28, v[8:11] offset:{QW+16}")
A("s_mov_b64 exec, -1")
A("s_waitcnt lgkmcnt(0)\ns_barrier")
A("s_cmp_eq_u32 s6, 0\ns_cbranch_scc1 L_q_w0")
A("s_cmp_eq_u32 s86, 0\ns_cbranch_scc0 L_q_w")
for n in range(NB0, NBP): issue_tile(n, track=False)
A("s_branch L_q_w")
A("L_q_w0:")
A("v_and_b32 v28, 15, v1\nv_lshlrev_b32 v28, 3, v28")
for w in range(8): A(f"ds_read_b64 v[{32+2*w}:{33+2*w}], v28 offset:{QW+128*w}")
A("s_waitcnt lgkmcnt(0)")
for w in range(1, 8): A(f"v_add_f32 v32, v32, v{32+2*w}\nv_add_f32 v33, v33, v{33+2*w}")
A("v_cvt_pk_bf16_f32 v32, v32, v33")
A("s_cmp_eq_u32 s86, 0\ns_cbranch_scc0 L_q_fallback")
A("v_readfirstlane_b32 s9, v122\ns_nop 3\ns_cmp_eq_u32 s9, 0\ns_cselect_b32 s16, s16, s9")
A(f"v_mov_b32 v33, s16\nv_mov_b32 v29, 0\nds_write_b32 v29, v33 offset:{NONCE}")
A(f"s_lshl_b32 s9, s7, 10\ns_lshl_b32 s10, s5, 7\ns_add_u32 s10, s10, s9\ns_add_u32 s10, s10, 0x{WS_QS:x}\ns_add_u32 s9, s9, 0x{WS_QS:x}")
A("s_mov_b64 exec, 0xffff")
A(f"buffer_store_dwordx2 v[32:33], v28, {srd(SWS)}, s10 offen sc1")
A("s_mov_b64 exec, -1")
stamp(2)
A("s_mov_b32 s85, s9")
for n in range(NB0, NBP): issue_tile(n, track=False)
A("s_mov_b32 s9, s85")
A("s_mov_b32 s87, 0")
A("L_qpoll:")
A(f"buffer_load_dwordx4 v[32:35], v3, {srd(SWS)}, s9 offen sc1")
A("s_waitcnt vmcnt(0)")
A("v_cmp_eq_u32 vcc, s16, v33\nv_cmp_eq_u32 s[80:81], s16, v35\ns_nop 3\ns_and_b64 vcc, vcc, s[80:81]\ns_cmp_eq_u64 vcc, -1\ns_cbranch_scc1 L_qgot")
if SLP: A(f"s_sleep {SLP}")
A(f"s_add_u32 s87, s87, 1\ns_cmp_lt_u32 s87, {SPIN_LIMIT}\ns_cbranch_scc1 L_qpoll")
A(f"v_mov_b32 v28, 1\nv_mov_b32 v29, 0\nds_write_b32 v29, v28 offset:{QFLAG}")
A("s_branch L_q_w")
A("L_qgot:")
stamp(10)
A("v_mov_b32 v33, v34\nv_lshlrev_b32 v28, 3, v1")
A(f"ds_write_b64 v28, v[32:33] offset:{QB}")
A(f"v_mov_b32 v28, 0\nds_write_b32 v28, v28 offset:{QFLAG}")
A("s_branch L_q_w")
A("L_q_fallback:")
A("v_lshrrev_b32 v28, 1, v28\ns_lshl_b32 s9, s84, 6\nv_add_u32 v28, s9, v28\ns_mov_b64 exec, 0xffff")
A(f"ds_write_b32 v28, v32 offset:{QB}")
A("s_mov_b64 exec, -1")
A("L_q_w:")
stamp(11)
A("s_waitcnt lgkmcnt(0)\ns_barrier")
A("s_cmp_eq_u32 s86, 0\ns_cbranch_scc0 L_q_m1")
A(f"v_mov_b32 v28, 0\nds_read_b32 v28, v28 offset:{QFLAG}\ns_waitcnt lgkmcnt(0)\nv_readfirstlane_b32 s9, v28\ns_nop 3\ns_cmp_eq_u32 s9, 0\ns_cbranch_scc1 L_qdone")
A("s_mov_b32 s86, 1\ns_mov_b32 s84, 0\ns_branch L_share_loop")
A("L_q_m1:")
A("s_add_u32 s84, s84, 1\ns_cmp_lt_u32 s84, 8\ns_cbranch_scc1 L_share_loop")
A("L_qdone:")
A("v_and_b32 v12, 31, v1\nv_lshlrev_b32 v12, 4, v12")
A(f"ds_read_b128 v[24:27], v12 offset:{QB}")
A(f"v_mov_b32 v13, 0\nds_read_b32 v13, v13 offset:{NONCE}\ns_waitcnt lgkmcnt(0)\nv_readfirstlane_b32 s16, v13")
vm.q = []
for n in range(NBP):
    for j in range(8): vm.issue(f"t{n}")
nxt = [NBP]
def advance(t):
    while nxt[0] <= min(t + LA, 15):
        issue_tile(nxt[0]); nxt[0] += 1
advance(-1)
A("s_waitcnt lgkmcnt(0)")
stamp(3)

S = 32
for t in range(8):
    b = tbuf(t)
    if TB and t >= TB0: A("s_barrier")
    vm.wait(f"t{t}")
    for k in range(4):
        for j in range(8):
            c = "0" if k == 0 else f"v{4+j}"
            A(f"v_dot2_f32_bf16 v{4+j}, v{b+4*j+k}, v{24+k}, {c}")
    advance(t)
    A("s_nop 3")
    for i in range(4): A(f"v_permlane16_swap_b32 v{4+2*i}, v{5+2*i}")
    A("s_nop 0")
    for i in range(4): A(f"v_add_f32 v{12+i}, v{4+2*i}, v{5+2*i}")
    for r in (8, 4, 2, 1):
        A("s_nop 0")
        for i in range(4): A(f"v_add_f32_dpp v{12+i}, v{12+i}, v{12+i} row_ror:{r} row_mask:0xf bank_mask:0xf")
    for i in range(4): rbf(S + 4*t + i, 12 + i)
stamp(4)
A(f"v_max3_f32 v30, v{S}, v{S+1}, v{S+2}")
for i in range(3, 31, 2): A(f"v_max3_f32 v30, v30, v{S+i}, v{S+i+1}")
A(f"v_max_f32 v30, v30, v{S+31}")
def cross_rows(op, v, tmp):
    for sw in ("v_permlane16_swap_b32", "v_permlane32_swap_b32"):
        A(f"v_mov_b32 v{tmp}, v{v}\ns_nop 1\n{sw} v{v}, v{tmp}\ns_nop 0\n{op} v{v}, v{v}, v{tmp}")
cross_rows("v_max_f32", 30, 12)
for i in range(32):
    A(f"v_sub_f32 v12, v{S+i}, v30\nv_mul_f32 v12, s13, v12\nv_exp_f32 v{S+i}, v12")
A("s_nop 0")
A(f"v_add_f32 v31, v{S}, v{S+1}")
for i in range(2, 32): A(f"v_add_f32 v31, v31, v{S+i}")
cross_rows("v_add_f32", 31, 12)
A("""v_lshrrev_b32 v12, 5, v1
v_lshlrev_b32 v12, 5, v12
v_bfe_u32 v13, v1, 4, 1
v_lshl_add_u32 v12, v13, 2, v12
s_lshl_b32 s15, s6, 9
v_add_u32 v12, s15, v12
s_mov_b32 exec_lo, 0x00010001
s_mov_b32 exec_hi, 0x00010001""")
for t in range(8):
    for i in range(4): A(f"ds_write_b32 v12, v{S+4*t+i} offset:{PL+64*t+8*i}")
A("s_mov_b64 exec, -1")
A("v_lshrrev_b32 v29, 5, v1\nv_lshlrev_b32 v29, 5, v29\nv_add_u32 v29, s15, v29")
for k in range(8): A(f"v_mov_b32 v{4+k}, 0")
PV = [12, 20]
A("s_waitcnt lgkmcnt(0)")
A(f"ds_read_b128 v[12:15], v29 offset:{PL}\nds_read_b128 v[16:19], v29 offset:{PL+16}")
for t in range(8):
    n = 8 + t
    b = tbuf(n)
    pv = PV[t & 1]
    A("s_waitcnt lgkmcnt(0)")
    if t < 7:
        pn = PV[(t+1) & 1]
        A(f"ds_read_b128 v[{pn}:{pn+3}], v29 offset:{PL+64*(t+1)}\nds_read_b128 v[{pn+4}:{pn+7}], v29 offset:{PL+64*(t+1)+16}")
    if TB: A("s_barrier")
    vm.wait(f"t{n}")
    for j in range(8):
        for k in range(4):
            w = b + 4*j + k
            A(f"v_lshlrev_b32 v28, 16, v{w}\nv_fmac_f32 v{4+2*k}, v{pv+j}, v28")
            A(f"v_and_b32 v28, s14, v{w}\nv_fmac_f32 v{5+2*k}, v{pv+j}, v28")
    advance(n)
stamp(5)
A("s_lshl_b32 s9, s6, 11\nv_lshlrev_b32 v12, 5, v1\nv_add_u32 v12, s9, v12")
A(f"ds_write_b128 v12, v[4:7] offset:{OP}\nds_write_b128 v12, v[8:11] offset:{OP+16}")
A("s_lshl_b32 s9, s6, 3\nv_mov_b32 v12, s9\ns_mov_b64 exec, 1")
A(f"ds_write_b64 v12, v[30:31] offset:{MLS}")
A("s_mov_b64 exec, -1")
A("s_waitcnt lgkmcnt(0)\ns_barrier")
A("s_cmp_lt_u32 s6, 4\ns_cbranch_scc0 L_pub_a")
CB = 64
A("v_mov_b32 v12, 0")
for i in range(4): A(f"ds_read_b128 v[{CB+4*i}:{CB+4*i+3}], v12 offset:{MLS+16*i}")
A("v_lshlrev_b32 v12, 2, v0")
for w in range(8):
    A(f"ds_read_b32 v{CB+16+2*w}, v12 offset:{OP+2048*w}\nds_read_b32 v{CB+17+2*w}, v12 offset:{OP+2048*w+1024}")
A("s_waitcnt lgkmcnt(0)")
A(f"v_max3_f32 v30, v{CB}, v{CB+2}, v{CB+4}\nv_max3_f32 v30, v30, v{CB+6}, v{CB+8}\nv_max3_f32 v30, v30, v{CB+10}, v{CB+12}\nv_max_f32 v30, v30, v{CB+14}")
A("v_mov_b32 v31, 0\nv_mov_b32 v13, 0")
for w in range(8):
    A(f"v_sub_f32 v14, v{CB+2*w}, v30\nv_mul_f32 v14, s13, v14\nv_exp_f32 v14, v14")
    A(f"v_add_f32 v15, v{CB+16+2*w}, v{CB+17+2*w}")
    A(f"v_fmac_f32 v31, v14, v{CB+2*w+1}\nv_fmac_f32 v13, v14, v15")
A("s_lshl_b32 s15, s7, 3\ns_add_u32 s15, s15, s5")
A(f"s_lshl_b32 s9, s15, 11\ns_add_u32 s9, s9, 0x{WS_PO:x}")
A("v_mov_b32 v14, v13\nv_mov_b32 v15, s16\nv_lshlrev_b32 v12, 3, v0")
A(f"buffer_store_dwordx2 v[14:15], v12, {srd(SWS)}, s9 offen sc1")
A("s_cmp_eq_u32 s6, 0\ns_cbranch_scc0 L_pub_a")
A("v_mov_b32 v16, v30\nv_mov_b32 v17, s16\nv_mov_b32 v18, v31\nv_mov_b32 v19, s16")
A(f"s_lshl_b32 s9, s15, 4\ns_add_u32 s9, s9, 0x{WS_ML:x}\ns_mov_b64 exec, 1")
A(f"buffer_store_dwordx4 v[16:19], v12, {srd(SWS)}, s9 offen sc1")
A("v_mov_b32 v26, 1\nv_mov_b32 v27, 4\nv_mov_b32 v25, 0")
A(f"buffer_atomic_add v26, v27, {srd(SDBG)}, 0 offen sc0")
A("s_waitcnt vmcnt(0)")
A(f"ds_write_b32 v25, v26 offset:{TICK}")
A("s_mov_b64 exec, -1")
A("L_pub_a:")
stamp(6)
A("L_role_a:")
A("s_waitcnt lgkmcnt(0)\ns_barrier")
A(f"v_mov_b32 v5, 0\nds_read_b32 v4, v5 offset:{TICK}\ns_waitcnt lgkmcnt(0)")
A("v_readfirstlane_b32 s5, v4")
A("v_mov_b32 v5, 0x7f000000\nv_cmp_gt_u32 vcc, 56, v1\ns_nop 1\nv_cndmask_b32 v31, v5, v3, vcc")
if DIAG:
    A("s_mov_b64 exec, 1")
    for i in range(12): A(f"v_mov_b32 v{4+i}, s{88+i}")
    A(f"v_mov_b32 v20, 0\ns_lshl_b32 s9, s2, 3\ns_add_u32 s9, s9, s6\ns_lshl_b32 s9, s9, 6\ns_add_u32 s9, s9, 0x{WS_DG:x}")
    for i in range(3): A(f"buffer_store_dwordx4 v[{4+4*i}:{7+4*i}], v20, {srd(SWS)}, s9 offen offset:{16*i}")
    A("s_mov_b64 exec, -1")
    for i in range(12): A(f"s_mov_b32 s{88+i}, 0")
    A("s_add_u32 s2, s5, 256")
    stamp(0)
A(f"s_cmp_ge_u32 s5, {NARR}\ns_cbranch_scc1 L_end")
A(f"s_cmp_ge_u32 s5, {NFFN}\ns_cbranch_scc1 L_cmb")
A("s_branch L_ffn")

def publish_tail(tag=""):
    A(f"s_mul_i32 s9, s6, 3584\ns_add_u32 s9, s9, {DP}\nv_lshlrev_b32 v28, 5, v1\nv_add_u32 v28, s9, v28")
    A("s_mov_b32 exec_hi, 0x00ffffff")
    A(f"ds_write_b128 v28, v[4:7]\nds_write_b128 v28, v[8:11] offset:16")
    A(f"ds_write_b128 v28, v[12:15] offset:1792\nds_write_b128 v28, v[16:19] offset:{1792+16}")
    A("s_mov_b32 exec_hi, -1")
    A("s_waitcnt lgkmcnt(0)\ns_barrier")
    A("v_cmp_gt_u32 vcc, 224, v0\ns_and_saveexec_b64 s[80:81], vcc\ns_cbranch_execz L_pt_c" + tag)
    A(f"v_lshlrev_b32 v28, 4, v0\nv_add_u32 v29, {DP}, v28")
    for w in range(8):
        A(f"ds_read_b128 v[{64+4*w}:{67+4*w}], v29 offset:{3584*w}")
    A("s_waitcnt lgkmcnt(0)")
    for w in range(1, 8):
        for k in range(4): A(f"v_add_f32 v{64+k}, v{64+k}, v{64+4*w+k}")
    A("v_mov_b32 v72, v64\nv_mov_b32 v73, s16\nv_mov_b32 v74, v65\nv_mov_b32 v75, s16\nv_mov_b32 v76, v66\nv_mov_b32 v77, s16\nv_mov_b32 v78, v67\nv_mov_b32 v79, s16")
    A("v_lshlrev_b32 v28, 5, v0")
    A(f"buffer_store_dwordx4 v[72:75], v28, {srd(SWS)}, s15 offen sc1")
    A(f"buffer_store_dwordx4 v[76:79], v28, {srd(SWS)}, s15 offen offset:16 sc1")
    A("L_pt_c" + tag + ":")
    A("s_mov_b64 exec, -1")

A("L_ffn:")
FG, FD = 96, 192
A(f"buffer_load_dwordx4 v[8:11], v31, {srd(SX)}, 0 offen")
A(f"buffer_load_dwordx4 v[12:15], v31, {srd(SX)}, 0 offen offset:896")
A("""v_lshrrev_b32 v6, 2, v1
s_movk_i32 s9, 3584
v_mul_lo_u32 v6, v6, s9
v_and_b32 v7, 3, v1
v_lshl_add_u32 v6, v7, 4, v6
s_and_b32 s9, s6, 3
s_mul_i32 s9, s9, 401408
s_lshl_b32 s10, s5, 6
s_add_u32 s9, s9, s10""")
for j in range(7):
    A(f"buffer_load_dwordx4 v[{FG+4*j}:{FG+4*j+3}], v6, {srd(SGU)}, s9 offen{WNT}")
    if j < 6: A("s_add_u32 s9, s9, 57344")
A("s_lshl_b32 s9, s5, 3\ns_add_u32 s9, s9, s6\ns_mul_i32 s9, s9, 3584")
for j in range(4):
    A(f"buffer_load_dwordx4 v[{FD+4*j}:{FD+4*j+3}], v31, {srd(SWD)}, s9 offen offset:{896*j}{WNT}")
A("s_waitcnt vmcnt(11)")
for bb in range(2):
    layernorm(8 + 4*bb)
    A("s_mov_b32 exec_hi, 0x00ffffff")
    A("v_lshlrev_b32 v25, 5, v1")
    A(f"ds_write_b128 v25, v[16:19] offset:{XNF+1792*bb}")
    A(f"ds_write_b128 v25, v[20:23] offset:{XNF+1792*bb+16}")
    A("s_mov_b32 exec_hi, -1")
A("""s_and_b32 s9, s6, 3
s_mul_i32 s9, s9, 448
v_lshrrev_b32 v26, 2, v1
v_lshlrev_b32 v26, 2, v26
v_add_u32 v26, s9, v26""")
for k in range(16): A(f"v_mov_b32 v{4+k}, 0")
A("s_waitcnt lgkmcnt(0)")
for j in range(7):
    A(f"ds_read_b32 v{128+2*j}, v26 offset:{XNF+64*j}\nds_read_b32 v{129+2*j}, v26 offset:{XNF+1792+64*j}")
A("s_waitcnt lgkmcnt(0)\ns_waitcnt vmcnt(4)")
for j in range(7):
    for k in range(4):
        w = FG + 4*j + k
        A(f"v_lshlrev_b32 v22, 16, v{w}\nv_and_b32 v23, s14, v{w}")
        A(f"v_fmac_f32 v{4+2*k}, v{128+2*j}, v22\nv_fmac_f32 v{5+2*k}, v{128+2*j}, v23")
        A(f"v_fmac_f32 v{12+2*k}, v{129+2*j}, v22\nv_fmac_f32 v{13+2*k}, v{129+2*j}, v23")
A("""v_lshrrev_b32 v27, 2, v1
v_lshlrev_b32 v27, 8, v27
v_and_b32 v22, 3, v1
v_lshl_add_u32 v27, v22, 5, v27
s_lshl_b32 s9, s6, 12
v_add_u32 v27, s9, v27""")
A(f"ds_write_b128 v27, v[4:7] offset:{GP}\nds_write_b128 v27, v[8:11] offset:{GP+16}")
A(f"ds_write_b128 v27, v[12:15] offset:{GP+128}\nds_write_b128 v27, v[16:19] offset:{GP+144}")
A("s_waitcnt lgkmcnt(0)\ns_barrier")
A("s_cmp_lt_u32 s6, 2\ns_cbranch_scc0 L_ffn_a")
A("s_lshl_b32 s9, s6, 14\nv_lshlrev_b32 v26, 2, v1\nv_add_u32 v26, s9, v26")
for g in range(4):
    for i in range(16):
        A(f"ds_read_b32 v{128+16*g+i}, v26 offset:{GP+4096*g+256*i}")
A("s_waitcnt lgkmcnt(0)")
A("v_add_f32 v4, v128, v129")
for i in range(2, 64): A(f"v_add_f32 v4, v4, v{128+i}")
rbf(4, 4)
A("s_lshl_b32 s9, s6, 8\nv_lshlrev_b32 v26, 2, v1\nv_add_u32 v26, s9, v26")
A(f"ds_write_b32 v26, v4 offset:{GUS}")
A("L_ffn_a:")
A("s_waitcnt lgkmcnt(0)\ns_barrier")
A("s_cmp_eq_u32 s6, 0\ns_cbranch_scc0 L_ffn_b")
A("v_lshlrev_b32 v26, 2, v1")
A(f"ds_read_b32 v4, v26 offset:{GUS}\nds_read_b32 v5, v26 offset:{GUS+256}")
A("s_waitcnt lgkmcnt(0)")
A(f"v_mul_f32 v6, 0x{f32bits(-1.4426950408889634):08x}, v4")
A("v_exp_f32 v6, v6\ns_nop 0\nv_add_f32 v6, 1.0, v6\nv_rcp_f32 v7, v6\ns_nop 0")
A("v_mul_f32 v8, v4, v7\nv_fma_f32 v9, -v8, v6, v4\nv_fma_f32 v8, v9, v7, v8")
rbf(8, 8)
A("v_mul_f32 v8, v8, v5")
rbf(8, 8)
A(f"ds_write_b32 v26, v8 offset:{HS}")
A("L_ffn_b:")
A("s_waitcnt lgkmcnt(0)\ns_barrier")
A("s_lshl_b32 s9, s6, 4\nv_mov_b32 v26, s9")
A(f"ds_read_b128 v[20:23], v26 offset:{HS}\nds_read_b128 v[24:27], v26 offset:{HS+128}")
for k in range(16): A(f"v_mov_b32 v{4+k}, 0")
A("s_waitcnt lgkmcnt(0)\ns_waitcnt vmcnt(0)")
for j in range(4):
    for k in range(4):
        w = FD + 4*j + k
        A(f"v_lshlrev_b32 v28, 16, v{w}\nv_and_b32 v29, s14, v{w}")
        A(f"v_fmac_f32 v{4+2*k}, v{20+j}, v28\nv_fmac_f32 v{5+2*k}, v{20+j}, v29")
        A(f"v_fmac_f32 v{12+2*k}, v{24+j}, v28\nv_fmac_f32 v{13+2*k}, v{24+j}, v29")
A(f"s_mul_i32 s15, s5, 7168\ns_add_u32 s15, s15, 0x{WS_FP:x}\ns_mov_b32 s5, 99")
A("s_branch L_tail")


A("L_cmb:")
A(f"s_sub_u32 s5, s5, {NFFN}\ns_lshr_b32 s3, s5, 2\ns_and_b32 s4, s5, 3")
WO = 224
A("s_lshl_b32 s9, s5, 3\ns_add_u32 s9, s9, s6\ns_mul_i32 s9, s9, 7168")
for i in range(8):
    if i == 4: A("s_add_u32 s9, s9, 3584")
    A(f"buffer_load_dwordx4 v[{WO+4*i}:{WO+4*i+3}], v31, {srd(SWO)}, s9 offen offset:{896*(i%4)}{WNT}")
A("s_cmp_eq_u32 s6, 0\ns_cbranch_scc0 L_cmb_w")
A("v_bfe_u32 v28, v1, 3, 1\nv_lshlrev_b32 v28, 11, v28\nv_and_b32 v29, 7, v1\nv_lshl_add_u32 v28, v29, 4, v28")
A(f"s_lshl_b32 s9, s3, 7\ns_add_u32 s9, s9, 0x{WS_ML:x}")
A("s_mov_b64 exec, 0xffff")
A("L_cpoll:")
A(f"buffer_load_dwordx4 v[4:7], v28, {srd(SWS)}, s9 offen sc1")
A("s_waitcnt vmcnt(0)")
A("v_cmp_eq_u32 vcc, s16, v5\nv_cmp_eq_u32 s[80:81], s16, v7\ns_nop 3\ns_and_b64 vcc, vcc, s[80:81]\ns_cmp_eq_u64 vcc, exec\ns_cbranch_scc1 L_cgot")
if CSLP: A(f"s_sleep {CSLP}")
A("s_branch L_cpoll")
A("L_cgot:")
A("s_mov_b64 exec, -1")
A("L_cmb_w:")
A("s_barrier")
stamp(1)
A("""v_and_b32 v4, 7, v1
v_bfe_u32 v5, v1, 3, 1
v_lshlrev_b32 v6, 18, v5
v_lshl_add_u32 v6, v4, 3, v6
v_lshlrev_b32 v7, 11, v5""")
A("L_cload:")
A(f"s_lshl_b32 s9, s3, 14\ns_lshl_b32 s10, s4, 9\ns_add_u32 s9, s9, s10\ns_lshl_b32 s10, s6, 6\ns_add_u32 s9, s9, s10\ns_add_u32 s9, s9, 0x{WS_PO:x}")
for sp in range(8):
    A(f"buffer_load_dwordx2 v[{128+2*sp}:{129+2*sp}], v6, {srd(SWS)}, s9 offen offset:{2048*(sp%2)} sc1")
    if sp % 2 == 1 and sp < 7: A("s_add_u32 s9, s9, 4096")
A(f"s_lshl_b32 s9, s3, 7\ns_add_u32 s9, s9, 0x{WS_ML:x}")
for sp in range(8): A(f"buffer_load_dwordx4 v[{144+4*sp}:{147+4*sp}], v7, {srd(SWS)}, s9 offen offset:{16*sp} sc1")
A("s_waitcnt vmcnt(0)")
A("s_mov_b64 s[82:83], -1")
for sp in range(8):
    A(f"v_cmp_eq_u32 vcc, s16, v{129+2*sp}\ns_nop 3\ns_and_b64 s[82:83], s[82:83], vcc")
A("s_cmp_eq_u64 s[82:83], -1\ns_cbranch_scc0 L_cload")
m0 = 144
A(f"v_max3_f32 v10, v{m0}, v{m0+4}, v{m0+8}\nv_max3_f32 v10, v10, v{m0+12}, v{m0+16}\nv_max3_f32 v10, v10, v{m0+20}, v{m0+24}\nv_max_f32 v10, v10, v{m0+28}")
A("v_mov_b32 v11, 0\nv_mov_b32 v12, 0")
for sp in range(8):
    A(f"v_sub_f32 v13, v{m0+4*sp}, v10\nv_mul_f32 v13, s13, v13\nv_exp_f32 v13, v13\ns_nop 0")
    A(f"v_fmac_f32 v11, v13, v{m0+4*sp+2}\nv_fmac_f32 v12, v13, v{128+2*sp}")
A("v_rcp_f32 v13, v11\ns_nop 0\nv_mul_f32 v14, v12, v13\nv_fma_f32 v15, -v14, v11, v12\nv_fma_f32 v14, v15, v13, v14")
rbf(14, 14)
A("s_nop 0")
for i in range(16): A(f"v_readlane_b32 s{20+i}, v14, {i}")
for k in range(16): A(f"v_mov_b32 v{4+k}, 0")
for i in range(8):
    for k in range(4):
        w = WO + 4*i + k
        A(f"v_lshlrev_b32 v28, 16, v{w}\nv_and_b32 v29, s14, v{w}")
        A(f"v_fmac_f32 v{4+2*k}, s{20+i}, v28\nv_fmac_f32 v{5+2*k}, s{20+i}, v29")
        A(f"v_fmac_f32 v{12+2*k}, s{28+i}, v28\nv_fmac_f32 v{13+2*k}, s{28+i}, v29")
A(f"s_mul_i32 s15, s5, 7168\ns_add_u32 s15, s15, 0x{WS_YC:x}")
A("L_tail:")
stamp(2)
publish_tail()
stamp(3)
A(f"s_cmp_ge_u32 s5, {NFIN}\ns_cbranch_scc1 L_fin_end")
A("s_and_b32 s4, s5, 1\ns_lshr_b32 s5, s5, 1")
A("v_lshlrev_b32 v6, 3, v1\ns_lshl_b32 s10, s5, 9\nv_add_u32 v6, s10, v6")
A("v_lshrrev_b32 v7, 2, v6\ns_mul_i32 s10, s4, 896")
A(f"buffer_load_ushort v100, v7, {srd(SX)}, s10 offen")
A("s_mul_i32 s15, s4, 3584")
A("L_fpoll:")
A(f"s_mul_i32 s10, s6, {8*7168}\ns_add_u32 s10, s10, s15\ns_add_u32 s10, s10, 0x{WS_YC:x}")
for i in range(8):
    A(f"buffer_load_dwordx2 v[{64+2*i}:{65+2*i}], v6, {srd(SWS)}, s10 offen sc1")
    A("s_add_u32 s10, s10, 7168")
A(f"s_mul_i32 s10, s6, {7*7168}\ns_add_u32 s10, s10, s15\ns_add_u32 s10, s10, 0x{WS_FP:x}")
for i in range(7):
    A(f"buffer_load_dwordx2 v[{80+2*i}:{81+2*i}], v6, {srd(SWS)}, s10 offen sc1")
    A("s_add_u32 s10, s10, 7168")
A("s_waitcnt vmcnt(0)")
A("s_mov_b64 s[82:83], -1")
for i in range(15):
    A(f"v_cmp_eq_u32 vcc, s16, v{65+2*i}\ns_nop 3\ns_and_b64 s[82:83], s[82:83], vcc")
A("s_cmp_eq_u64 s[82:83], -1\ns_cbranch_scc1 L_fgot")
if FSLP: A(f"s_sleep {FSLP}")
A("s_branch L_fpoll")
A("L_fgot:")
stamp(5)
A("v_add_f32 v8, v64, v66")
for i in range(2, 8): A(f"v_add_f32 v8, v8, v{64+2*i}")
A("v_add_f32 v9, v80, v82")
for i in range(2, 7): A(f"v_add_f32 v9, v9, v{80+2*i}")
A("s_lshl_b32 s9, s6, 8\nv_lshlrev_b32 v10, 2, v1\nv_add_u32 v10, s9, v10")
A(f"ds_write_b32 v10, v8 offset:{PL}\nds_write_b32 v10, v9 offset:{PL+2048}")
A("s_waitcnt lgkmcnt(0)\ns_barrier")
A("s_cmp_eq_u32 s6, 0\ns_cbranch_scc0 L_fin_end")
A("v_lshlrev_b32 v10, 2, v1")
for g in range(8): A(f"ds_read_b32 v{12+g}, v10 offset:{PL+256*g}\nds_read_b32 v{20+g}, v10 offset:{PL+2048+256*g}")
A("s_waitcnt lgkmcnt(0)")
for g in range(1, 8): A(f"v_add_f32 v12, v12, v{12+g}\nv_add_f32 v20, v20, v{20+g}")
rbf(12, 12); rbf(20, 20)
A("v_lshlrev_b32 v100, 16, v100\nv_add_f32 v12, v100, v12")
rbf(12, 12)
A("v_add_f32 v12, v12, v20\nv_cvt_pk_bf16_f32 v12, v12, v12")
A("s_mul_i32 s10, s4, 896")
A(f"buffer_store_short v12, v7, {srd(SOUT)}, s10 offen")
stamp(6)
A("L_fin_end:")
if DIAG:
    A("s_mov_b64 exec, 1")
    for i in range(12): A(f"v_mov_b32 v{4+i}, s{88+i}")
    A(f"v_mov_b32 v20, 0\ns_lshl_b32 s9, s2, 3\ns_add_u32 s9, s9, s6\ns_lshl_b32 s9, s9, 6\ns_add_u32 s9, s9, 0x{WS_DG:x}")
    for i in range(3): A(f"buffer_store_dwordx4 v[{4+4*i}:{7+4*i}], v20, {srd(SWS)}, s9 offen offset:{16*i}")
A("L_end:\ns_endpgm")
A(f'''.section .rodata,"a"
.p2align 6
.amdhsa_kernel {KN}
  .amdhsa_next_free_vgpr 256
  .amdhsa_next_free_sgpr 102
  .amdhsa_accum_offset 256
  .amdhsa_group_segment_fixed_size 0
  .amdhsa_kernarg_size 96
  .amdhsa_user_sgpr_count 2
  .amdhsa_user_sgpr_kernarg_segment_ptr 1
  .amdhsa_system_sgpr_workgroup_id_x 1
.end_amdhsa_kernel''')
print("\n".join(out))
```

```python
import sys, struct

KN = "parallel_sum__mha_block_cached__swiglu_ffn__decode_kernel"
out = []
ARGS = sys.argv[1:]
DIAG = "diag" in ARGS
TB = "tb" in ARGS
NB = 6
NBP = 4
PACE = 0
SLP = 0
TB0 = 0
LA = 6
CSLP = 0
NOQ = "noq" in ARGS
HD = "hd" in ARGS
def hstamp(word, neg=False):
    if not HD: return
    A("s_memrealtime s[100:101]\ns_waitcnt lgkmcnt(0)")
    if neg: A("s_not_b32 s100, s100")
    A(f"v_mov_b32 v250, s100\nv_mov_b32 v251, {4*word}\ns_mov_b64 s[98:99], exec\ns_mov_b64 exec, 1")
    A(f"buffer_atomic_umax v250, v251, s[72:75], 0 offen")
    A("s_mov_b64 exec, s[98:99]")
WNT = " nt" if "wnt" in ARGS else ""
QNT2 = " nt" if "qnt2" in ARGS else ""
KVF = "nt"
for a in ARGS:
    if a.startswith("kvf="): KVF = a[4:].replace("_", " ")
NB0 = 99
for a in ARGS:
    if a.startswith("nb0="): NB0 = int(a[4:])
NB0 = min(NB0, NBP)
STD = "std" in ARGS
W0E = "w0e" in ARGS
FSLP = 4
for a in ARGS:
    if a.startswith("fslp="): FSLP = int(a[5:])
QNT = " nt" if "qnt" in ARGS else ""
for a in ARGS:
    if a.startswith("nb="): NB = int(a[3:])
    if a.startswith("nbp="): NBP = int(a[4:])
    if a.startswith("pace="): PACE = int(a[5:])
    if a.startswith("slp="): SLP = int(a[4:])
    if a.startswith("tb0="): TB0 = int(a[4:])
    if a.startswith("la="): LA = int(a[3:])
    if a.startswith("cslp="): CSLP = int(a[5:])
def A(s):
    for line in s.split("\n"):
        out.append(line)
def stamp(i):
    if not DIAG: return
    A("s_memrealtime s[100:101]\ns_waitcnt lgkmcnt(0)")
    A(f"s_mov_b32 s{88+i}, s100")

def f32bits(x):
    return struct.unpack("<I", struct.pack("<f", x))[0]

class VM:
    def __init__(self): self.q = []
    def issue(self, tag): self.q.append(tag)
    def wait(self, tag):
        idxs = [i for i, t in enumerate(self.q) if t == tag]
        if not idxs: return
        idx = max(idxs)
        n = len(self.q) - 1 - idx
        A(f"s_waitcnt vmcnt({min(n,63)})")
        self.q = self.q[idx+1:] if n <= 63 else self.q[len(self.q)-63:]
vm = VM()

XNF = 0
XNB = 3584
QB = 5376
TICK = 5888
MLS = 5952
GUS = 6016
HS = 6528
PL = 8192
OP = 16384
GP = 16384
DP = 49152
LDS_BYTES = 49152 + 28672

WS_QS = 0x00000
WS_PO = 0x10000
WS_ML = 0x90000
WS_YC = 0x91000
WS_FP = 0x101000
WS_DG = 0x180000
WS_BYTES = 0x200000
NONCE = 5900
NFFN = 56
NCMB = 64
NFIN = 14
NARR = NFFN + NCMB
SPIN_LIMIT = 20000
for a in ARGS:
    if a.startswith("spin="): SPIN_LIMIT = int(a[5:])

SX, SK, SV, SWQ, SWO, SGU, SWD, SOUT, SDBG, SWS = 40, 44, 48, 52, 56, 60, 64, 68, 72, 76
def srd(r): return f"s[{r}:{r+3}]"

B = [64, 96, 128, 160, 192, 224][:NB]
Q = 32

A(f"; @launch grid=(256,1,1) block=(512,1,1) lds={LDS_BYTES}")
A('.amdgcn_target "amdgcn-amd-amdhsa--gfx950"')
A(".text")
A(f".globl {KN}\n.p2align 8\n.type {KN},@function\n{KN}:")
A("s_cmp_ge_u32 s2, 256\ns_cbranch_scc1 L_end")
A("s_load_dwordx16 s[16:31], s[0:1], 0")
A("s_load_dwordx8 s[32:39], s[0:1], 64")
A("v_and_b32 v1, 63, v0")
A("v_lshrrev_b32 v4, 6, v0")
A("s_nop 0")
A("v_readfirstlane_b32 s6, v4")
A("""s_and_b32 s5, s2, 7
s_lshr_b32 s7, s2, 3
s_and_b32 s3, s7, 15
s_lshr_b32 s4, s7, 4
s_and_b32 s4, s4, 1
s_lshl_b32 s8, s7, 22
s_lshl_b32 s9, s5, 19
s_add_u32 s8, s8, s9""")
A("s_mov_b32 s11, 0x05040100\ns_mov_b32 s12, 0x07060302")
A(f"s_mov_b32 s13, 0x{f32bits(0.0625*1.4426950408889634):08x}")
A("s_mov_b32 s14, 0xffff0000")
A("""v_and_b32 v2, 15, v1
v_lshlrev_b32 v2, 9, v2
v_lshrrev_b32 v4, 4, v1
v_lshl_or_b32 v2, v4, 4, v2
v_lshlrev_b32 v3, 4, v1
v_mov_b32 v5, 0x7f000000
v_cmp_gt_u32 vcc, 56, v1
s_nop 1
v_cndmask_b32 v31, v5, v3, vcc""")
A("s_waitcnt lgkmcnt(0)")
if DIAG:
    for i in range(12): A(f"s_mov_b32 s{88+i}, 0")
stamp(0)
def mk(r, lo, nbytes):
    A(f"s_mov_b32 s{r}, s{lo}\ns_mov_b32 s{r+1}, s{lo+1}\ns_mov_b32 s{r+2}, 0x{nbytes:x}\ns_mov_b32 s{r+3}, 0x20000")
mk(SK, 18, 1<<27); mk(SX, 16, 1792); mk(SWQ, 22, 448*4096*2)
mk(SV, 20, 1<<27); mk(SWO, 24, 4096*448*2)
mk(SWD, 32, 1792*448*2); mk(SOUT, 34, 1792); mk(SDBG, 36, 256); mk(SWS, 38, WS_BYTES)
A("s_cmp_lt_u32 s6, 4")
A(f"s_cselect_b32 s{SGU}, s28, s30\ns_cselect_b32 s{SGU+1}, s29, s31\ns_mov_b32 s{SGU+2}, 0x{448*1792*2:x}\ns_mov_b32 s{SGU+3}, 0x20000")
hstamp(4, True)
A("s_sub_u32 s9, s6, 1")
for t in range(8):
    base = 7*t if t < 6 else 50 + 7*(t-6)
    if NOQ or STD: A(f"s_add_u32 s10, s6, {8*t}\ns_lshl_b32 s10, s10, 13\ns_add_u32 s{20+t}, s8, s10")
    else: A(f"s_add_u32 s10, s9, {base}\ns_cmp_eq_u32 s6, 0\ns_cselect_b32 s10, {42+t}, s10\ns_lshl_b32 s10, s10, 13\ns_add_u32 s{20+t}, s8, s10")

def tbuf(n): return B[(n + 3) % NB]
def issue_tile(n, track=True):
    b = tbuf(n)
    A(f"s_add_u32 s10, s{20+n%8}, 4096")
    for j in range(8):
        A(f"buffer_load_dwordx4 v[{b+4*j}:{b+4*j+3}], v3, {srd(SK if n < 8 else SV)}, {f's{20+n%8}' if j<4 else 's10'} offen offset:{1024*(j%4)} {KVF}")
        if track: vm.issue(f"t{n}")

def row_reduce(op, v, tmp):
    for r in (8, 4, 2, 1):
        A("s_nop 1")
        A(f"{op}_dpp v{tmp}, v{v}, v{v} row_ror:{r} row_mask:0xf bank_mask:0xf")
        A(f"v_mov_b32 v{v}, v{tmp}")
def wave_sum(v, tmp):
    row_reduce("v_add_f32", v, tmp)
    A("s_nop 0")
    for i in range(4): A(f"v_readlane_b32 s{80+i}, v{v}, {16*i}")
    A("s_nop 1")
    A(f"v_mov_b32 v{v}, s80\nv_add_f32 v{v}, s81, v{v}\nv_add_f32 v{v}, s82, v{v}\nv_add_f32 v{v}, s83, v{v}")
def div448(v, tmp1, tmp2):
    A(f"v_mul_f32 v{tmp1}, 0x{f32bits(1.0/448):08x}, v{v}")
    A(f"v_mov_b32 v{tmp2}, 0x{f32bits(448.0):08x}")
    A(f"v_fma_f32 v{tmp2}, -v{tmp1}, v{tmp2}, v{v}")
    A(f"v_mul_f32 v{tmp2}, 0x{f32bits(1.0/448):08x}, v{tmp2}")
    A(f"v_add_f32 v{v}, v{tmp1}, v{tmp2}")
def rbf(vd, vs):
    A(f"v_cvt_pk_bf16_f32 v{vd}, 0, v{vs}")
def layernorm(r):
    E = 16
    for k in range(4):
        A(f"v_lshlrev_b32 v{E+2*k}, 16, v{r+k}\nv_and_b32 v{E+2*k+1}, s14, v{r+k}")
    A(f"v_add_f32 v24, v{E}, v{E+1}")
    for k in range(2, 8): A(f"v_add_f32 v24, v24, v{E+k}")
    wave_sum(24, 25)
    div448(24, 25, 26)
    A("v_mov_b32 v27, 0")
    for k in range(8):
        A(f"v_sub_f32 v25, v{E+k}, v24\nv_fmac_f32 v27, v25, v25")
    A("v_cmp_gt_u32 vcc, 56, v1\ns_nop 1\nv_cndmask_b32 v27, 0, v27, vcc")
    wave_sum(27, 25)
    div448(27, 25, 26)
    rbf(27, 27)
    rbf(24, 24)
    A(f"v_add_f32 v27, 0x{f32bits(1e-5):08x}, v27")
    rbf(27, 27)
    A("v_sqrt_f32 v27, v27\ns_nop 0")
    rbf(27, 27)
    A("v_rcp_f32 v28, v27\ns_nop 0")
    for k in range(8):
        A(f"v_sub_f32 v{E+k}, v{E+k}, v24")
        rbf(E+k, E+k)
        A(f"v_mul_f32 v25, v{E+k}, v28")
        A(f"v_fma_f32 v26, -v25, v27, v{E+k}")
        A(f"v_fma_f32 v{E+k}, v26, v28, v25")
    for k in range(4):
        A(f"v_cvt_pk_bf16_f32 v{r+k}, v{E+2*k}, v{E+2*k+1}")
    for k in range(4):
        A(f"v_lshlrev_b32 v{E+2*k}, 16, v{r+k}\nv_and_b32 v{E+2*k+1}, s14, v{r+k}")

QW = 7168
QFLAG = 5904
W = 64
A("s_mul_i32 s10, s4, 896")
A(f"buffer_load_dwordx4 v[8:11], v31, {srd(SX)}, s10 offen")
A("""v_lshrrev_b32 v5, 2, v1
v_lshlrev_b32 v126, 13, v5
v_and_b32 v6, 3, v1
v_lshl_add_u32 v126, v6, 4, v126
v_lshlrev_b32 v127, 2, v5
s_lshl_b32 s9, s6, 6
v_add_u32 v127, s9, v127""")
A("s_mov_b32 s84, s5\ns_mov_b32 s86, 0")
A("s_cmp_eq_u32 s6, 0\ns_cbranch_scc0 L_nononce")
A("s_memrealtime s[16:17]\nv_mov_b32 v125, 64\ns_waitcnt lgkmcnt(0)\ns_or_b32 s16, s16, 1")
A("v_mov_b32 v122, s16\nv_mov_b32 v123, 0\ns_mov_b64 exec, 1")
A(f"buffer_atomic_cmpswap v[122:123], v125, {srd(SDBG)}, 0 offen sc0")
A("s_mov_b64 exec, -1")
A("L_nononce:")
def wq_loads():
    A("s_lshl_b32 s9, s84, 6\ns_lshl_b32 s10, s3, 9\ns_add_u32 s9, s9, s10\ns_lshl_b32 s10, s6, 17\ns_add_u32 s9, s9, s10")
    for j in range(4):
        A(f"buffer_load_dwordx4 v[{W+4*j}:{W+4*j+3}], v126, {srd(SWQ)}, s9 offen{QNT2}")
        if j < 3: A("s_add_u32 s9, s9, 1048576")
wq_loads()
for n in range(NB0): issue_tile(n, track=False)
stamp(7)
A(f"s_waitcnt vmcnt({4+8*NB0})")
stamp(8)
layernorm(8)
A("v_cmp_gt_u32 vcc, 56, v1\ns_nop 1")
for k in range(8): A(f"v_cndmask_b32 v{16+k}, 0, v{16+k}, vcc")
A("v_lshlrev_b32 v25, 5, v1")
A(f"ds_write_b128 v25, v[16:19] offset:{XNF}\nds_write_b128 v25, v[20:23] offset:{XNF+16}")
A("s_waitcnt lgkmcnt(0)")
for j in range(4): A(f"ds_read_b32 v{20+j}, v127 offset:{XNF+512*j}")
stamp(1)
A("s_branch L_share_body")
A("L_share_loop:")
wq_loads()
A("s_waitcnt vmcnt(0)")
A("L_share_body:")
for k in range(8): A(f"v_mov_b32 v{4+k}, 0")
A("s_waitcnt lgkmcnt(0)")
for j in range(4):
    A(f"s_waitcnt vmcnt({3-j+8*NB0})")
    for k in range(4):
        w = W + 4*j + k
        A(f"v_lshlrev_b32 v28, 16, v{w}\nv_and_b32 v29, s14, v{w}")
        A(f"v_fmac_f32 v{4+2*k}, v{20+j}, v28\nv_fmac_f32 v{5+2*k}, v{20+j}, v29")
stamp(9)
for r in (4, 8):
    A("s_nop 1")
    for k in range(8): A(f"v_add_f32_dpp v{4+k}, v{4+k}, v{4+k} row_ror:{r} row_mask:0xf bank_mask:0xf")
for sw in ("v_permlane16_swap_b32", "v_permlane32_swap_b32"):
    for k in range(8): A(f"v_mov_b32 v{12+k}, v{4+k}")
    A("s_nop 1")
    for k in range(8): A(f"{sw} v{4+k}, v{12+k}")
    A("s_nop 1")
    for k in range(8): A(f"v_add_f32 v{4+k}, v{4+k}, v{12+k}")
A("v_lshlrev_b32 v28, 5, v1\ns_lshl_b32 s9, s6, 7\nv_add_u32 v28, s9, v28\ns_mov_b64 exec, 15")
A(f"ds_write_b128 v28, v[4:7] offset:{QW}\nds_write_b128 v28, v[8:11] offset:{QW+16}")
A("s_mov_b64 exec, -1")
A("s_waitcnt lgkmcnt(0)\ns_barrier")
A("s_cmp_eq_u32 s6, 0\ns_cbranch_scc1 L_q_w0")
A("s_cmp_eq_u32 s86, 0\ns_cbranch_scc0 L_q_w")
for n in range(NB0, NBP): issue_tile(n, track=False)
A("s_branch L_q_w")
A("L_q_w0:")
A("v_and_b32 v28, 15, v1\nv_lshlrev_b32 v28, 3, v28")
for w in range(8): A(f"ds_read_b64 v[{32+2*w}:{33+2*w}], v28 offset:{QW+128*w}")
A("s_waitcnt lgkmcnt(0)")
for w in range(1, 8): A(f"v_add_f32 v32, v32, v{32+2*w}\nv_add_f32 v33, v33, v{33+2*w}")
A("v_cvt_pk_bf16_f32 v32, v32, v33")
A("s_cmp_eq_u32 s86, 0\ns_cbranch_scc0 L_q_fallback")
A("v_readfirstlane_b32 s9, v122\ns_nop 3\ns_cmp_eq_u32 s9, 0\ns_cselect_b32 s16, s16, s9")
A(f"v_mov_b32 v33, s16\nv_mov_b32 v29, 0\nds_write_b32 v29, v33 offset:{NONCE}")
A(f"s_lshl_b32 s9, s7, 10\ns_lshl_b32 s10, s5, 7\ns_add_u32 s10, s10, s9\ns_add_u32 s10, s10, 0x{WS_QS:x}\ns_add_u32 s9, s9, 0x{WS_QS:x}")
A("s_mov_b64 exec, 0xffff")
A(f"buffer_store_dwordx2 v[32:33], v28, {srd(SWS)}, s10 offen sc1")
A("s_mov_b64 exec, -1")
stamp(2)
A("s_mov_b32 s85, s9")
for n in range(NB0, NBP): issue_tile(n, track=False)
A("s_mov_b32 s9, s85")
A("s_mov_b32 s87, 0")
A("L_qpoll:")
A(f"buffer_load_dwordx4 v[32:35], v3, {srd(SWS)}, s9 offen sc1")
A("s_waitcnt vmcnt(0)")
A("v_cmp_eq_u32 vcc, s16, v33\nv_cmp_eq_u32 s[80:81], s16, v35\ns_nop 3\ns_and_b64 vcc, vcc, s[80:81]\ns_cmp_eq_u64 vcc, -1\ns_cbranch_scc1 L_qgot")
if SLP: A(f"s_sleep {SLP}")
A(f"s_add_u32 s87, s87, 1\ns_cmp_lt_u32 s87, {SPIN_LIMIT}\ns_cbranch_scc1 L_qpoll")
A(f"v_mov_b32 v28, 1\nv_mov_b32 v29, 0\nds_write_b32 v29, v28 offset:{QFLAG}")
A("s_branch L_q_w")
A("L_qgot:")
stamp(10)
A("v_mov_b32 v33, v34\nv_lshlrev_b32 v28, 3, v1")
A(f"ds_write_b64 v28, v[32:33] offset:{QB}")
A(f"v_mov_b32 v28, 0\nds_write_b32 v28, v28 offset:{QFLAG}")
A("s_branch L_q_w")
A("L_q_fallback:")
A("v_lshrrev_b32 v28, 1, v28\ns_lshl_b32 s9, s84, 6\nv_add_u32 v28, s9, v28\ns_mov_b64 exec, 0xffff")
A(f"ds_write_b32 v28, v32 offset:{QB}")
A("s_mov_b64 exec, -1")
A("L_q_w:")
stamp(11)
A("s_waitcnt lgkmcnt(0)\ns_barrier")
A("s_cmp_eq_u32 s86, 0\ns_cbranch_scc0 L_q_m1")
A(f"v_mov_b32 v28, 0\nds_read_b32 v28, v28 offset:{QFLAG}\ns_waitcnt lgkmcnt(0)\nv_readfirstlane_b32 s9, v28\ns_nop 3\ns_cmp_eq_u32 s9, 0\ns_cbranch_scc1 L_qdone")
A("s_mov_b32 s86, 1\ns_mov_b32 s84, 0\ns_branch L_share_loop")
A("L_q_m1:")
A("s_add_u32 s84, s84, 1\ns_cmp_lt_u32 s84, 8\ns_cbranch_scc1 L_share_loop")
A("L_qdone:")
hstamp(5)
A("v_and_b32 v12, 31, v1\nv_lshlrev_b32 v12, 4, v12")
A(f"ds_read_b128 v[24:27], v12 offset:{QB}")
A(f"v_mov_b32 v13, 0\nds_read_b32 v13, v13 offset:{NONCE}\ns_waitcnt lgkmcnt(0)\nv_readfirstlane_b32 s16, v13")
vm.q = []
for n in range(NBP):
    for j in range(8): vm.issue(f"t{n}")
nxt = [NBP]
def advance(t):
    while nxt[0] <= min(t + LA, 15):
        issue_tile(nxt[0]); nxt[0] += 1
advance(-1)
A("s_waitcnt lgkmcnt(0)")
stamp(3)

S = 32
for t in range(8):
    b = tbuf(t)
    if TB and t >= TB0: A("s_barrier")
    vm.wait(f"t{t}")
    for k in range(4):
        for j in range(8):
            c = "0" if k == 0 else f"v{4+j}"
            A(f"v_dot2_f32_bf16 v{4+j}, v{b+4*j+k}, v{24+k}, {c}")
    advance(t)
    A("s_nop 3")
    for i in range(4): A(f"v_permlane16_swap_b32 v{4+2*i}, v{5+2*i}")
    A("s_nop 0")
    for i in range(4): A(f"v_add_f32 v{12+i}, v{4+2*i}, v{5+2*i}")
    for r in (8, 4, 2, 1):
        A("s_nop 0")
        for i in range(4): A(f"v_add_f32_dpp v{12+i}, v{12+i}, v{12+i} row_ror:{r} row_mask:0xf bank_mask:0xf")
    for i in range(4): rbf(S + 4*t + i, 12 + i)
stamp(4)
A(f"v_max3_f32 v30, v{S}, v{S+1}, v{S+2}")
for i in range(3, 31, 2): A(f"v_max3_f32 v30, v30, v{S+i}, v{S+i+1}")
A(f"v_max_f32 v30, v30, v{S+31}")
def cross_rows(op, v, tmp):
    for sw in ("v_permlane16_swap_b32", "v_permlane32_swap_b32"):
        A(f"v_mov_b32 v{tmp}, v{v}\ns_nop 1\n{sw} v{v}, v{tmp}\ns_nop 0\n{op} v{v}, v{v}, v{tmp}")
cross_rows("v_max_f32", 30, 12)
for i in range(32):
    A(f"v_sub_f32 v12, v{S+i}, v30\nv_mul_f32 v12, s13, v12\nv_exp_f32 v{S+i}, v12")
A("s_nop 0")
A(f"v_add_f32 v31, v{S}, v{S+1}")
for i in range(2, 32): A(f"v_add_f32 v31, v31, v{S+i}")
cross_rows("v_add_f32", 31, 12)
A("""v_lshrrev_b32 v12, 5, v1
v_lshlrev_b32 v12, 5, v12
v_bfe_u32 v13, v1, 4, 1
v_lshl_add_u32 v12, v13, 2, v12
s_lshl_b32 s15, s6, 9
v_add_u32 v12, s15, v12
s_mov_b32 exec_lo, 0x00010001
s_mov_b32 exec_hi, 0x00010001""")
for t in range(8):
    for i in range(4): A(f"ds_write_b32 v12, v{S+4*t+i} offset:{PL+64*t+8*i}")
A("s_mov_b64 exec, -1")
A("v_lshrrev_b32 v29, 5, v1\nv_lshlrev_b32 v29, 5, v29\nv_add_u32 v29, s15, v29")
for k in range(8): A(f"v_mov_b32 v{4+k}, 0")
PV = [12, 20]
A("s_waitcnt lgkmcnt(0)")
A(f"ds_read_b128 v[12:15], v29 offset:{PL}\nds_read_b128 v[16:19], v29 offset:{PL+16}")
for t in range(8):
    n = 8 + t
    b = tbuf(n)
    pv = PV[t & 1]
    A("s_waitcnt lgkmcnt(0)")
    if t < 7:
        pn = PV[(t+1) & 1]
        A(f"ds_read_b128 v[{pn}:{pn+3}], v29 offset:{PL+64*(t+1)}\nds_read_b128 v[{pn+4}:{pn+7}], v29 offset:{PL+64*(t+1)+16}")
    if TB: A("s_barrier")
    vm.wait(f"t{n}")
    for j in range(8):
        for k in range(4):
            w = b + 4*j + k
            A(f"v_lshlrev_b32 v28, 16, v{w}\nv_fmac_f32 v{4+2*k}, v{pv+j}, v28")
            A(f"v_and_b32 v28, s14, v{w}\nv_fmac_f32 v{5+2*k}, v{pv+j}, v28")
    advance(n)
stamp(5)
hstamp(6)
hstamp(7, True)
A("s_lshl_b32 s9, s6, 11\nv_lshlrev_b32 v12, 5, v1\nv_add_u32 v12, s9, v12")
A(f"ds_write_b128 v12, v[4:7] offset:{OP}\nds_write_b128 v12, v[8:11] offset:{OP+16}")
A("s_lshl_b32 s9, s6, 3\nv_mov_b32 v12, s9\ns_mov_b64 exec, 1")
A(f"ds_write_b64 v12, v[30:31] offset:{MLS}")
A("s_mov_b64 exec, -1")
A("s_waitcnt lgkmcnt(0)\ns_barrier")
A("s_cmp_lt_u32 s6, 4\ns_cbranch_scc0 L_pub_a")
CB = 64
A("v_mov_b32 v12, 0")
for i in range(4): A(f"ds_read_b128 v[{CB+4*i}:{CB+4*i+3}], v12 offset:{MLS+16*i}")
A("v_lshlrev_b32 v12, 2, v0")
for w in range(8):
    A(f"ds_read_b32 v{CB+16+2*w}, v12 offset:{OP+2048*w}\nds_read_b32 v{CB+17+2*w}, v12 offset:{OP+2048*w+1024}")
A("s_waitcnt lgkmcnt(0)")
A(f"v_max3_f32 v30, v{CB}, v{CB+2}, v{CB+4}\nv_max3_f32 v30, v30, v{CB+6}, v{CB+8}\nv_max3_f32 v30, v30, v{CB+10}, v{CB+12}\nv_max_f32 v30, v30, v{CB+14}")
A("v_mov_b32 v31, 0\nv_mov_b32 v13, 0")
for w in range(8):
    A(f"v_sub_f32 v14, v{CB+2*w}, v30\nv_mul_f32 v14, s13, v14\nv_exp_f32 v14, v14")
    A(f"v_add_f32 v15, v{CB+16+2*w}, v{CB+17+2*w}")
    A(f"v_fmac_f32 v31, v14, v{CB+2*w+1}\nv_fmac_f32 v13, v14, v15")
A("s_lshl_b32 s15, s7, 3\ns_add_u32 s15, s15, s5")
A(f"s_lshl_b32 s9, s15, 11\ns_add_u32 s9, s9, 0x{WS_PO:x}")
A("v_mov_b32 v14, v13\nv_mov_b32 v15, s16\nv_lshlrev_b32 v12, 3, v0")
A(f"buffer_store_dwordx2 v[14:15], v12, {srd(SWS)}, s9 offen sc1")
A("s_cmp_eq_u32 s6, 0\ns_cbranch_scc0 L_pub_a")
A("v_mov_b32 v16, v30\nv_mov_b32 v17, s16\nv_mov_b32 v18, v31\nv_mov_b32 v19, s16")
A(f"s_lshl_b32 s9, s15, 4\ns_add_u32 s9, s9, 0x{WS_ML:x}\ns_mov_b64 exec, 1")
A(f"buffer_store_dwordx4 v[16:19], v12, {srd(SWS)}, s9 offen sc1")
A("v_mov_b32 v26, 1\nv_mov_b32 v27, 4\nv_mov_b32 v25, 0")
A(f"buffer_atomic_add v26, v27, {srd(SDBG)}, 0 offen sc0")
A("s_waitcnt vmcnt(0)")
A(f"ds_write_b32 v25, v26 offset:{TICK}")
A("s_mov_b64 exec, -1")
A("L_pub_a:")
stamp(6)
A("L_role_a:")
A("s_waitcnt lgkmcnt(0)\ns_barrier")
A(f"v_mov_b32 v5, 0\nds_read_b32 v4, v5 offset:{TICK}\ns_waitcnt lgkmcnt(0)")
A("v_readfirstlane_b32 s5, v4")
A("v_mov_b32 v5, 0x7f000000\nv_cmp_gt_u32 vcc, 56, v1\ns_nop 1\nv_cndmask_b32 v31, v5, v3, vcc")
if DIAG:
    A("s_mov_b64 exec, 1")
    for i in range(12): A(f"v_mov_b32 v{4+i}, s{88+i}")
    A(f"v_mov_b32 v20, 0\ns_lshl_b32 s9, s2, 3\ns_add_u32 s9, s9, s6\ns_lshl_b32 s9, s9, 6\ns_add_u32 s9, s9, 0x{WS_DG:x}")
    for i in range(3): A(f"buffer_store_dwordx4 v[{4+4*i}:{7+4*i}], v20, {srd(SWS)}, s9 offen offset:{16*i}")
    A("s_mov_b64 exec, -1")
    for i in range(12): A(f"s_mov_b32 s{88+i}, 0")
    A("s_add_u32 s2, s5, 256")
    stamp(0)
A(f"s_cmp_ge_u32 s5, {NARR}\ns_cbranch_scc1 L_end")
A(f"s_cmp_ge_u32 s5, {NFFN}\ns_cbranch_scc1 L_cmb")
A("s_branch L_ffn")

def publish_tail(tag=""):
    A(f"s_mul_i32 s9, s6, 3584\ns_add_u32 s9, s9, {DP}\nv_lshlrev_b32 v28, 5, v1\nv_add_u32 v28, s9, v28")
    A("s_mov_b32 exec_hi, 0x00ffffff")
    A(f"ds_write_b128 v28, v[4:7]\nds_write_b128 v28, v[8:11] offset:16")
    A(f"ds_write_b128 v28, v[12:15] offset:1792\nds_write_b128 v28, v[16:19] offset:{1792+16}")
    A("s_mov_b32 exec_hi, -1")
    A("s_waitcnt lgkmcnt(0)\ns_barrier")
    A("v_cmp_gt_u32 vcc, 224, v0\ns_and_saveexec_b64 s[80:81], vcc\ns_cbranch_execz L_pt_c" + tag)
    A(f"v_lshlrev_b32 v28, 4, v0\nv_add_u32 v29, {DP}, v28")
    for w in range(8):
        A(f"ds_read_b128 v[{64+4*w}:{67+4*w}], v29 offset:{3584*w}")
    A("s_waitcnt lgkmcnt(0)")
    for w in range(1, 8):
        for k in range(4): A(f"v_add_f32 v{64+k}, v{64+k}, v{64+4*w+k}")
    A("v_mov_b32 v72, v64\nv_mov_b32 v73, s16\nv_mov_b32 v74, v65\nv_mov_b32 v75, s16\nv_mov_b32 v76, v66\nv_mov_b32 v77, s16\nv_mov_b32 v78, v67\nv_mov_b32 v79, s16")
    A("v_lshlrev_b32 v28, 5, v0")
    A(f"buffer_store_dwordx4 v[72:75], v28, {srd(SWS)}, s15 offen sc1")
    A(f"buffer_store_dwordx4 v[76:79], v28, {srd(SWS)}, s15 offen offset:16 sc1")
    A("L_pt_c" + tag + ":")
    A("s_mov_b64 exec, -1")

A("L_ffn:")
FG, FD = 96, 192
A(f"buffer_load_dwordx4 v[8:11], v31, {srd(SX)}, 0 offen")
A(f"buffer_load_dwordx4 v[12:15], v31, {srd(SX)}, 0 offen offset:896")
A("""v_lshrrev_b32 v6, 2, v1
s_movk_i32 s9, 3584
v_mul_lo_u32 v6, v6, s9
v_and_b32 v7, 3, v1
v_lshl_add_u32 v6, v7, 4, v6
s_and_b32 s9, s6, 3
s_mul_i32 s9, s9, 401408
s_lshl_b32 s10, s5, 6
s_add_u32 s9, s9, s10""")
for j in range(7):
    A(f"buffer_load_dwordx4 v[{FG+4*j}:{FG+4*j+3}], v6, {srd(SGU)}, s9 offen{WNT}")
    if j < 6: A("s_add_u32 s9, s9, 57344")
A("s_lshl_b32 s9, s5, 3\ns_add_u32 s9, s9, s6\ns_mul_i32 s9, s9, 3584")
for j in range(4):
    A(f"buffer_load_dwordx4 v[{FD+4*j}:{FD+4*j+3}], v31, {srd(SWD)}, s9 offen offset:{896*j}{WNT}")
A("s_waitcnt vmcnt(11)")
for bb in range(2):
    layernorm(8 + 4*bb)
    A("s_mov_b32 exec_hi, 0x00ffffff")
    A("v_lshlrev_b32 v25, 5, v1")
    A(f"ds_write_b128 v25, v[16:19] offset:{XNF+1792*bb}")
    A(f"ds_write_b128 v25, v[20:23] offset:{XNF+1792*bb+16}")
    A("s_mov_b32 exec_hi, -1")
A("""s_and_b32 s9, s6, 3
s_mul_i32 s9, s9, 448
v_lshrrev_b32 v26, 2, v1
v_lshlrev_b32 v26, 2, v26
v_add_u32 v26, s9, v26""")
for k in range(16): A(f"v_mov_b32 v{4+k}, 0")
A("s_waitcnt lgkmcnt(0)")
for j in range(7):
    A(f"ds_read_b32 v{128+2*j}, v26 offset:{XNF+64*j}\nds_read_b32 v{129+2*j}, v26 offset:{XNF+1792+64*j}")
A("s_waitcnt lgkmcnt(0)\ns_waitcnt vmcnt(4)")
for j in range(7):
    for k in range(4):
        w = FG + 4*j + k
        A(f"v_lshlrev_b32 v22, 16, v{w}\nv_and_b32 v23, s14, v{w}")
        A(f"v_fmac_f32 v{4+2*k}, v{128+2*j}, v22\nv_fmac_f32 v{5+2*k}, v{128+2*j}, v23")
        A(f"v_fmac_f32 v{12+2*k}, v{129+2*j}, v22\nv_fmac_f32 v{13+2*k}, v{129+2*j}, v23")
A("""v_lshrrev_b32 v27, 2, v1
v_lshlrev_b32 v27, 8, v27
v_and_b32 v22, 3, v1
v_lshl_add_u32 v27, v22, 5, v27
s_lshl_b32 s9, s6, 12
v_add_u32 v27, s9, v27""")
A(f"ds_write_b128 v27, v[4:7] offset:{GP}\nds_write_b128 v27, v[8:11] offset:{GP+16}")
A(f"ds_write_b128 v27, v[12:15] offset:{GP+128}\nds_write_b128 v27, v[16:19] offset:{GP+144}")
A("s_waitcnt lgkmcnt(0)\ns_barrier")
A("s_cmp_lt_u32 s6, 2\ns_cbranch_scc0 L_ffn_a")
A("s_lshl_b32 s9, s6, 14\nv_lshlrev_b32 v26, 2, v1\nv_add_u32 v26, s9, v26")
for g in range(4):
    for i in range(16):
        A(f"ds_read_b32 v{128+16*g+i}, v26 offset:{GP+4096*g+256*i}")
A("s_waitcnt lgkmcnt(0)")
A("v_add_f32 v4, v128, v129")
for i in range(2, 64): A(f"v_add_f32 v4, v4, v{128+i}")
rbf(4, 4)
A("s_lshl_b32 s9, s6, 8\nv_lshlrev_b32 v26, 2, v1\nv_add_u32 v26, s9, v26")
A(f"ds_write_b32 v26, v4 offset:{GUS}")
A("L_ffn_a:")
A("s_waitcnt lgkmcnt(0)\ns_barrier")
A("s_cmp_eq_u32 s6, 0\ns_cbranch_scc0 L_ffn_b")
A("v_lshlrev_b32 v26, 2, v1")
A(f"ds_read_b32 v4, v26 offset:{GUS}\nds_read_b32 v5, v26 offset:{GUS+256}")
A("s_waitcnt lgkmcnt(0)")
A(f"v_mul_f32 v6, 0x{f32bits(-1.4426950408889634):08x}, v4")
A("v_exp_f32 v6, v6\ns_nop 0\nv_add_f32 v6, 1.0, v6\nv_rcp_f32 v7, v6\ns_nop 0")
A("v_mul_f32 v8, v4, v7\nv_fma_f32 v9, -v8, v6, v4\nv_fma_f32 v8, v9, v7, v8")
rbf(8, 8)
A("v_mul_f32 v8, v8, v5")
rbf(8, 8)
A(f"ds_write_b32 v26, v8 offset:{HS}")
A("L_ffn_b:")
A("s_waitcnt lgkmcnt(0)\ns_barrier")
A("s_lshl_b32 s9, s6, 4\nv_mov_b32 v26, s9")
A(f"ds_read_b128 v[20:23], v26 offset:{HS}\nds_read_b128 v[24:27], v26 offset:{HS+128}")
for k in range(16): A(f"v_mov_b32 v{4+k}, 0")
A("s_waitcnt lgkmcnt(0)\ns_waitcnt vmcnt(0)")
for j in range(4):
    for k in range(4):
        w = FD + 4*j + k
        A(f"v_lshlrev_b32 v28, 16, v{w}\nv_and_b32 v29, s14, v{w}")
        A(f"v_fmac_f32 v{4+2*k}, v{20+j}, v28\nv_fmac_f32 v{5+2*k}, v{20+j}, v29")
        A(f"v_fmac_f32 v{12+2*k}, v{24+j}, v28\nv_fmac_f32 v{13+2*k}, v{24+j}, v29")
A(f"s_mul_i32 s15, s5, 7168\ns_add_u32 s15, s15, 0x{WS_FP:x}\ns_mov_b32 s5, 99")
A("s_branch L_tail")


A("L_cmb:")
A(f"s_sub_u32 s5, s5, {NFFN}\ns_lshr_b32 s3, s5, 2\ns_and_b32 s4, s5, 3")
WO = 224
A("s_lshl_b32 s9, s5, 3\ns_add_u32 s9, s9, s6\ns_mul_i32 s9, s9, 7168")
for i in range(8):
    if i == 4: A("s_add_u32 s9, s9, 3584")
    A(f"buffer_load_dwordx4 v[{WO+4*i}:{WO+4*i+3}], v31, {srd(SWO)}, s9 offen offset:{896*(i%4)}{WNT}")
A("s_cmp_eq_u32 s6, 0\ns_cbranch_scc0 L_cmb_w")
A("v_bfe_u32 v28, v1, 3, 1\nv_lshlrev_b32 v28, 11, v28\nv_and_b32 v29, 7, v1\nv_lshl_add_u32 v28, v29, 4, v28")
A(f"s_lshl_b32 s9, s3, 7\ns_add_u32 s9, s9, 0x{WS_ML:x}")
A("s_mov_b64 exec, 0xffff")
A("L_cpoll:")
A(f"buffer_load_dwordx4 v[4:7], v28, {srd(SWS)}, s9 offen sc1")
A("s_waitcnt vmcnt(0)")
A("v_cmp_eq_u32 vcc, s16, v5\nv_cmp_eq_u32 s[80:81], s16, v7\ns_nop 3\ns_and_b64 vcc, vcc, s[80:81]\ns_cmp_eq_u64 vcc, exec\ns_cbranch_scc1 L_cgot")
if CSLP: A(f"s_sleep {CSLP}")
A("s_branch L_cpoll")
A("L_cgot:")
A("s_mov_b64 exec, -1")
A("L_cmb_w:")
A("s_barrier")
stamp(1)
A("""v_and_b32 v4, 7, v1
v_bfe_u32 v5, v1, 3, 1
v_lshlrev_b32 v6, 18, v5
v_lshl_add_u32 v6, v4, 3, v6
v_lshlrev_b32 v7, 11, v5""")
A("L_cload:")
A(f"s_lshl_b32 s9, s3, 14\ns_lshl_b32 s10, s4, 9\ns_add_u32 s9, s9, s10\ns_lshl_b32 s10, s6, 6\ns_add_u32 s9, s9, s10\ns_add_u32 s9, s9, 0x{WS_PO:x}")
for sp in range(8):
    A(f"buffer_load_dwordx2 v[{128+2*sp}:{129+2*sp}], v6, {srd(SWS)}, s9 offen offset:{2048*(sp%2)} sc1")
    if sp % 2 == 1 and sp < 7: A("s_add_u32 s9, s9, 4096")
A(f"s_lshl_b32 s9, s3, 7\ns_add_u32 s9, s9, 0x{WS_ML:x}")
for sp in range(8): A(f"buffer_load_dwordx4 v[{144+4*sp}:{147+4*sp}], v7, {srd(SWS)}, s9 offen offset:{16*sp} sc1")
A("s_waitcnt vmcnt(0)")
A("s_mov_b64 s[82:83], -1")
for sp in range(8):
    A(f"v_cmp_eq_u32 vcc, s16, v{129+2*sp}\ns_nop 3\ns_and_b64 s[82:83], s[82:83], vcc")
A("s_cmp_eq_u64 s[82:83], -1\ns_cbranch_scc0 L_cload")
m0 = 144
A(f"v_max3_f32 v10, v{m0}, v{m0+4}, v{m0+8}\nv_max3_f32 v10, v10, v{m0+12}, v{m0+16}\nv_max3_f32 v10, v10, v{m0+20}, v{m0+24}\nv_max_f32 v10, v10, v{m0+28}")
A("v_mov_b32 v11, 0\nv_mov_b32 v12, 0")
for sp in range(8):
    A(f"v_sub_f32 v13, v{m0+4*sp}, v10\nv_mul_f32 v13, s13, v13\nv_exp_f32 v13, v13\ns_nop 0")
    A(f"v_fmac_f32 v11, v13, v{m0+4*sp+2}\nv_fmac_f32 v12, v13, v{128+2*sp}")
A("v_rcp_f32 v13, v11\ns_nop 0\nv_mul_f32 v14, v12, v13\nv_fma_f32 v15, -v14, v11, v12\nv_fma_f32 v14, v15, v13, v14")
rbf(14, 14)
A("s_nop 0")
for i in range(16): A(f"v_readlane_b32 s{20+i}, v14, {i}")
for k in range(16): A(f"v_mov_b32 v{4+k}, 0")
for i in range(8):
    for k in range(4):
        w = WO + 4*i + k
        A(f"v_lshlrev_b32 v28, 16, v{w}\nv_and_b32 v29, s14, v{w}")
        A(f"v_fmac_f32 v{4+2*k}, s{20+i}, v28\nv_fmac_f32 v{5+2*k}, s{20+i}, v29")
        A(f"v_fmac_f32 v{12+2*k}, s{28+i}, v28\nv_fmac_f32 v{13+2*k}, s{28+i}, v29")
A(f"s_mul_i32 s15, s5, 7168\ns_add_u32 s15, s15, 0x{WS_YC:x}")
A("L_tail:")
hstamp(9)
stamp(2)
publish_tail()
stamp(3)
A(f"s_cmp_ge_u32 s5, {NFIN}\ns_cbranch_scc1 L_fin_end")
A("s_and_b32 s4, s5, 1\ns_lshr_b32 s5, s5, 1")
A("v_lshlrev_b32 v6, 3, v1\ns_lshl_b32 s10, s5, 9\nv_add_u32 v6, s10, v6")
A("v_lshrrev_b32 v7, 2, v6\ns_mul_i32 s10, s4, 896")
A(f"buffer_load_ushort v100, v7, {srd(SX)}, s10 offen")
A("s_mul_i32 s15, s4, 3584")
A("L_fpoll:")
A(f"s_mul_i32 s10, s6, {8*7168}\ns_add_u32 s10, s10, s15\ns_add_u32 s10, s10, 0x{WS_YC:x}")
for i in range(8):
    A(f"buffer_load_dwordx2 v[{64+2*i}:{65+2*i}], v6, {srd(SWS)}, s10 offen sc1")
    A("s_add_u32 s10, s10, 7168")
A(f"s_mul_i32 s10, s6, {7*7168}\ns_add_u32 s10, s10, s15\ns_add_u32 s10, s10, 0x{WS_FP:x}")
for i in range(7):
    A(f"buffer_load_dwordx2 v[{80+2*i}:{81+2*i}], v6, {srd(SWS)}, s10 offen sc1")
    A("s_add_u32 s10, s10, 7168")
A("s_waitcnt vmcnt(0)")
A("s_mov_b64 s[82:83], -1")
for i in range(15):
    A(f"v_cmp_eq_u32 vcc, s16, v{65+2*i}\ns_nop 3\ns_and_b64 s[82:83], s[82:83], vcc")
A("s_cmp_eq_u64 s[82:83], -1\ns_cbranch_scc1 L_fgot")
if FSLP: A(f"s_sleep {FSLP}")
A("s_branch L_fpoll")
A("L_fgot:")
hstamp(8)
stamp(5)
A("v_add_f32 v8, v64, v66")
for i in range(2, 8): A(f"v_add_f32 v8, v8, v{64+2*i}")
A("v_add_f32 v9, v80, v82")
for i in range(2, 7): A(f"v_add_f32 v9, v9, v{80+2*i}")
A("s_lshl_b32 s9, s6, 8\nv_lshlrev_b32 v10, 2, v1\nv_add_u32 v10, s9, v10")
A(f"ds_write_b32 v10, v8 offset:{PL}\nds_write_b32 v10, v9 offset:{PL+2048}")
A("s_waitcnt lgkmcnt(0)\ns_barrier")
A("s_cmp_eq_u32 s6, 0\ns_cbranch_scc0 L_fin_end")
A("v_lshlrev_b32 v10, 2, v1")
for g in range(8): A(f"ds_read_b32 v{12+g}, v10 offset:{PL+256*g}\nds_read_b32 v{20+g}, v10 offset:{PL+2048+256*g}")
A("s_waitcnt lgkmcnt(0)")
for g in range(1, 8): A(f"v_add_f32 v12, v12, v{12+g}\nv_add_f32 v20, v20, v{20+g}")
rbf(12, 12); rbf(20, 20)
A("v_lshlrev_b32 v100, 16, v100\nv_add_f32 v12, v100, v12")
rbf(12, 12)
A("v_add_f32 v12, v12, v20\nv_cvt_pk_bf16_f32 v12, v12, v12")
A("s_mul_i32 s10, s4, 896")
A(f"buffer_store_short v12, v7, {srd(SOUT)}, s10 offen")
stamp(6)
A("L_fin_end:")
if DIAG:
    A("s_mov_b64 exec, 1")
    for i in range(12): A(f"v_mov_b32 v{4+i}, s{88+i}")
    A(f"v_mov_b32 v20, 0\ns_lshl_b32 s9, s2, 3\ns_add_u32 s9, s9, s6\ns_lshl_b32 s9, s9, 6\ns_add_u32 s9, s9, 0x{WS_DG:x}")
    for i in range(3): A(f"buffer_store_dwordx4 v[{4+4*i}:{7+4*i}], v20, {srd(SWS)}, s9 offen offset:{16*i}")
A("L_end:\ns_endpgm")
A(f'''.section .rodata,"a"
.p2align 6
.amdhsa_kernel {KN}
  .amdhsa_next_free_vgpr 256
  .amdhsa_next_free_sgpr 102
  .amdhsa_accum_offset 256
  .amdhsa_group_segment_fixed_size 0
  .amdhsa_kernarg_size 96
  .amdhsa_user_sgpr_count 2
  .amdhsa_user_sgpr_kernarg_segment_ptr 1
  .amdhsa_system_sgpr_workgroup_id_x 1
.end_amdhsa_kernel''')
print("\n".join(out))
```

```python
import sys, struct

KN = "parallel_sum__mha_block_cached__swiglu_ffn__decode_kernel"
out = []
ARGS = sys.argv[1:]
DIAG = "diag" in ARGS
TB = "tb" in ARGS
NB = 6
NBP = 4
PACE = 0
SLP = 0
TB0 = 0
LA = 6
CSLP = 0
NOQ = "noq" in ARGS
HD = "hd" in ARGS
hs_n = [0]
def hstamp(word, neg=False):
    if not HD: return
    hs_n[0] += 1
    A(f"s_cmp_eq_u32 s6, 0\ns_cbranch_scc0 L_hs{hs_n[0]}\ns_and_b32 s100, s2, 7\ns_lshr_b32 s101, s2, 3\ns_and_b32 s101, s101, 7\ns_cmp_eq_u32 s100, s101\ns_cbranch_scc0 L_hs{hs_n[0]}")
    A("s_memrealtime s[100:101]\ns_waitcnt lgkmcnt(0)")
    if neg: A("s_not_b32 s100, s100")
    A(f"v_mov_b32 v250, s100\nv_mov_b32 v251, {4*word}\ns_mov_b64 s[98:99], exec\ns_mov_b64 exec, 1")
    A(f"buffer_atomic_umax v250, v251, s[72:75], 0 offen")
    A("s_mov_b64 exec, s[98:99]")
    A(f"L_hs{hs_n[0]}:")
WNT = " nt" if "wnt" in ARGS else ""
QNT2 = " nt" if "qnt2" in ARGS else ""
KVF = "nt"
for a in ARGS:
    if a.startswith("kvf="): KVF = a[4:].replace("_", " ")
NB0 = 99
for a in ARGS:
    if a.startswith("nb0="): NB0 = int(a[4:])
NB0 = min(NB0, NBP)
STD = "std" in ARGS
W0E = "w0e" in ARGS
FSLP = 4
for a in ARGS:
    if a.startswith("fslp="): FSLP = int(a[5:])
QNT = " nt" if "qnt" in ARGS else ""
for a in ARGS:
    if a.startswith("nb="): NB = int(a[3:])
    if a.startswith("nbp="): NBP = int(a[4:])
    if a.startswith("pace="): PACE = int(a[5:])
    if a.startswith("slp="): SLP = int(a[4:])
    if a.startswith("tb0="): TB0 = int(a[4:])
    if a.startswith("la="): LA = int(a[3:])
    if a.startswith("cslp="): CSLP = int(a[5:])
def A(s):
    for line in s.split("\n"):
        out.append(line)
def stamp(i):
    if not DIAG: return
    A("s_memrealtime s[100:101]\ns_waitcnt lgkmcnt(0)")
    A(f"s_mov_b32 s{88+i}, s100")

def f32bits(x):
    return struct.unpack("<I", struct.pack("<f", x))[0]

class VM:
    def __init__(self): self.q = []
    def issue(self, tag): self.q.append(tag)
    def wait(self, tag):
        idxs = [i for i, t in enumerate(self.q) if t == tag]
        if not idxs: return
        idx = max(idxs)
        n = len(self.q) - 1 - idx
        A(f"s_waitcnt vmcnt({min(n,63)})")
        self.q = self.q[idx+1:] if n <= 63 else self.q[len(self.q)-63:]
vm = VM()

XNF = 0
XNB = 3584
QB = 5376
TICK = 5888
MLS = 5952
GUS = 6016
HS = 6528
PL = 8192
OP = 16384
GP = 16384
DP = 49152
LDS_BYTES = 49152 + 28672

WS_QS = 0x00000
WS_PO = 0x10000
WS_ML = 0x90000
WS_YC = 0x91000
WS_FP = 0x101000
WS_DG = 0x180000
WS_BYTES = 0x200000
NONCE = 5900
NFFN = 56
NCMB = 64
NFIN = 14
NARR = NFFN + NCMB
SPIN_LIMIT = 20000
for a in ARGS:
    if a.startswith("spin="): SPIN_LIMIT = int(a[5:])

SX, SK, SV, SWQ, SWO, SGU, SWD, SOUT, SDBG, SWS = 40, 44, 48, 52, 56, 60, 64, 68, 72, 76
def srd(r): return f"s[{r}:{r+3}]"

B = [64, 96, 128, 160, 192, 224][:NB]
Q = 32

A(f"; @launch grid=(256,1,1) block=(512,1,1) lds={LDS_BYTES}")
A('.amdgcn_target "amdgcn-amd-amdhsa--gfx950"')
A(".text")
A(f".globl {KN}\n.p2align 8\n.type {KN},@function\n{KN}:")
A("s_cmp_ge_u32 s2, 256\ns_cbranch_scc1 L_end")
A("s_load_dwordx16 s[16:31], s[0:1], 0")
A("s_load_dwordx8 s[32:39], s[0:1], 64")
A("v_and_b32 v1, 63, v0")
A("v_lshrrev_b32 v4, 6, v0")
A("s_nop 0")
A("v_readfirstlane_b32 s6, v4")
A("""s_and_b32 s5, s2, 7
s_lshr_b32 s7, s2, 3
s_and_b32 s3, s7, 15
s_lshr_b32 s4, s7, 4
s_and_b32 s4, s4, 1
s_lshl_b32 s8, s7, 22
s_lshl_b32 s9, s5, 19
s_add_u32 s8, s8, s9""")
A("s_mov_b32 s11, 0x05040100\ns_mov_b32 s12, 0x07060302")
A(f"s_mov_b32 s13, 0x{f32bits(0.0625*1.4426950408889634):08x}")
A("s_mov_b32 s14, 0xffff0000")
A("""v_and_b32 v2, 15, v1
v_lshlrev_b32 v2, 9, v2
v_lshrrev_b32 v4, 4, v1
v_lshl_or_b32 v2, v4, 4, v2
v_lshlrev_b32 v3, 4, v1
v_mov_b32 v5, 0x7f000000
v_cmp_gt_u32 vcc, 56, v1
s_nop 1
v_cndmask_b32 v31, v5, v3, vcc""")
A("s_waitcnt lgkmcnt(0)")
if DIAG:
    for i in range(12): A(f"s_mov_b32 s{88+i}, 0")
stamp(0)
def mk(r, lo, nbytes):
    A(f"s_mov_b32 s{r}, s{lo}\ns_mov_b32 s{r+1}, s{lo+1}\ns_mov_b32 s{r+2}, 0x{nbytes:x}\ns_mov_b32 s{r+3}, 0x20000")
mk(SK, 18, 1<<27); mk(SX, 16, 1792); mk(SWQ, 22, 448*4096*2)
mk(SV, 20, 1<<27); mk(SWO, 24, 4096*448*2)
mk(SWD, 32, 1792*448*2); mk(SOUT, 34, 1792); mk(SDBG, 36, 256); mk(SWS, 38, WS_BYTES)
A("s_cmp_lt_u32 s6, 4")
A(f"s_cselect_b32 s{SGU}, s28, s30\ns_cselect_b32 s{SGU+1}, s29, s31\ns_mov_b32 s{SGU+2}, 0x{448*1792*2:x}\ns_mov_b32 s{SGU+3}, 0x20000")
hstamp(4, True)
A("s_sub_u32 s9, s6, 1")
for t in range(8):
    base = 7*t if t < 6 else 50 + 7*(t-6)
    if NOQ or STD: A(f"s_add_u32 s10, s6, {8*t}\ns_lshl_b32 s10, s10, 13\ns_add_u32 s{20+t}, s8, s10")
    else: A(f"s_add_u32 s10, s9, {base}\ns_cmp_eq_u32 s6, 0\ns_cselect_b32 s10, {42+t}, s10\ns_lshl_b32 s10, s10, 13\ns_add_u32 s{20+t}, s8, s10")

def tbuf(n): return B[(n + 3) % NB]
def issue_tile(n, track=True):
    b = tbuf(n)
    A(f"s_add_u32 s10, s{20+n%8}, 4096")
    for j in range(8):
        A(f"buffer_load_dwordx4 v[{b+4*j}:{b+4*j+3}], v3, {srd(SK if n < 8 else SV)}, {f's{20+n%8}' if j<4 else 's10'} offen offset:{1024*(j%4)} {KVF}")
        if track: vm.issue(f"t{n}")

def row_reduce(op, v, tmp):
    for r in (8, 4, 2, 1):
        A("s_nop 1")
        A(f"{op}_dpp v{tmp}, v{v}, v{v} row_ror:{r} row_mask:0xf bank_mask:0xf")
        A(f"v_mov_b32 v{v}, v{tmp}")
def wave_sum(v, tmp):
    row_reduce("v_add_f32", v, tmp)
    A("s_nop 0")
    for i in range(4): A(f"v_readlane_b32 s{80+i}, v{v}, {16*i}")
    A("s_nop 1")
    A(f"v_mov_b32 v{v}, s80\nv_add_f32 v{v}, s81, v{v}\nv_add_f32 v{v}, s82, v{v}\nv_add_f32 v{v}, s83, v{v}")
def div448(v, tmp1, tmp2):
    A(f"v_mul_f32 v{tmp1}, 0x{f32bits(1.0/448):08x}, v{v}")
    A(f"v_mov_b32 v{tmp2}, 0x{f32bits(448.0):08x}")
    A(f"v_fma_f32 v{tmp2}, -v{tmp1}, v{tmp2}, v{v}")
    A(f"v_mul_f32 v{tmp2}, 0x{f32bits(1.0/448):08x}, v{tmp2}")
    A(f"v_add_f32 v{v}, v{tmp1}, v{tmp2}")
def rbf(vd, vs):
    A(f"v_cvt_pk_bf16_f32 v{vd}, 0, v{vs}")
def layernorm(r):
    E = 16
    for k in range(4):
        A(f"v_lshlrev_b32 v{E+2*k}, 16, v{r+k}\nv_and_b32 v{E+2*k+1}, s14, v{r+k}")
    A(f"v_add_f32 v24, v{E}, v{E+1}")
    for k in range(2, 8): A(f"v_add_f32 v24, v24, v{E+k}")
    wave_sum(24, 25)
    div448(24, 25, 26)
    A("v_mov_b32 v27, 0")
    for k in range(8):
        A(f"v_sub_f32 v25, v{E+k}, v24\nv_fmac_f32 v27, v25, v25")
    A("v_cmp_gt_u32 vcc, 56, v1\ns_nop 1\nv_cndmask_b32 v27, 0, v27, vcc")
    wave_sum(27, 25)
    div448(27, 25, 26)
    rbf(27, 27)
    rbf(24, 24)
    A(f"v_add_f32 v27, 0x{f32bits(1e-5):08x}, v27")
    rbf(27, 27)
    A("v_sqrt_f32 v27, v27\ns_nop 0")
    rbf(27, 27)
    A("v_rcp_f32 v28, v27\ns_nop 0")
    for k in range(8):
        A(f"v_sub_f32 v{E+k}, v{E+k}, v24")
        rbf(E+k, E+k)
        A(f"v_mul_f32 v25, v{E+k}, v28")
        A(f"v_fma_f32 v26, -v25, v27, v{E+k}")
        A(f"v_fma_f32 v{E+k}, v26, v28, v25")
    for k in range(4):
        A(f"v_cvt_pk_bf16_f32 v{r+k}, v{E+2*k}, v{E+2*k+1}")
    for k in range(4):
        A(f"v_lshlrev_b32 v{E+2*k}, 16, v{r+k}\nv_and_b32 v{E+2*k+1}, s14, v{r+k}")

QW = 7168
QFLAG = 5904
W = 64
A("s_mul_i32 s10, s4, 896")
A(f"buffer_load_dwordx4 v[8:11], v31, {srd(SX)}, s10 offen")
A("""v_lshrrev_b32 v5, 2, v1
v_lshlrev_b32 v126, 13, v5
v_and_b32 v6, 3, v1
v_lshl_add_u32 v126, v6, 4, v126
v_lshlrev_b32 v127, 2, v5
s_lshl_b32 s9, s6, 6
v_add_u32 v127, s9, v127""")
A("s_mov_b32 s84, s5\ns_mov_b32 s86, 0")
A("s_cmp_eq_u32 s6, 0\ns_cbranch_scc0 L_nononce")
A("s_memrealtime s[16:17]\nv_mov_b32 v125, 64\ns_waitcnt lgkmcnt(0)\ns_or_b32 s16, s16, 1")
A("v_mov_b32 v122, s16\nv_mov_b32 v123, 0\ns_mov_b64 exec, 1")
A(f"buffer_atomic_cmpswap v[122:123], v125, {srd(SDBG)}, 0 offen sc0")
A("s_mov_b64 exec, -1")
A("L_nononce:")
def wq_loads():
    A("s_lshl_b32 s9, s84, 6\ns_lshl_b32 s10, s3, 9\ns_add_u32 s9, s9, s10\ns_lshl_b32 s10, s6, 17\ns_add_u32 s9, s9, s10")
    for j in range(4):
        A(f"buffer_load_dwordx4 v[{W+4*j}:{W+4*j+3}], v126, {srd(SWQ)}, s9 offen{QNT2}")
        if j < 3: A("s_add_u32 s9, s9, 1048576")
wq_loads()
for n in range(NB0): issue_tile(n, track=False)
stamp(7)
A(f"s_waitcnt vmcnt({4+8*NB0})")
stamp(8)
layernorm(8)
A("v_cmp_gt_u32 vcc, 56, v1\ns_nop 1")
for k in range(8): A(f"v_cndmask_b32 v{16+k}, 0, v{16+k}, vcc")
A("v_lshlrev_b32 v25, 5, v1")
A(f"ds_write_b128 v25, v[16:19] offset:{XNF}\nds_write_b128 v25, v[20:23] offset:{XNF+16}")
A("s_waitcnt lgkmcnt(0)")
for j in range(4): A(f"ds_read_b32 v{20+j}, v127 offset:{XNF+512*j}")
stamp(1)
A("s_branch L_share_body")
A("L_share_loop:")
wq_loads()
A("s_waitcnt vmcnt(0)")
A("L_share_body:")
for k in range(8): A(f"v_mov_b32 v{4+k}, 0")
A("s_waitcnt lgkmcnt(0)")
for j in range(4):
    A(f"s_waitcnt vmcnt({3-j+8*NB0})")
    for k in range(4):
        w = W + 4*j + k
        A(f"v_lshlrev_b32 v28, 16, v{w}\nv_and_b32 v29, s14, v{w}")
        A(f"v_fmac_f32 v{4+2*k}, v{20+j}, v28\nv_fmac_f32 v{5+2*k}, v{20+j}, v29")
stamp(9)
for r in (4, 8):
    A("s_nop 1")
    for k in range(8): A(f"v_add_f32_dpp v{4+k}, v{4+k}, v{4+k} row_ror:{r} row_mask:0xf bank_mask:0xf")
for sw in ("v_permlane16_swap_b32", "v_permlane32_swap_b32"):
    for k in range(8): A(f"v_mov_b32 v{12+k}, v{4+k}")
    A("s_nop 1")
    for k in range(8): A(f"{sw} v{4+k}, v{12+k}")
    A("s_nop 1")
    for k in range(8): A(f"v_add_f32 v{4+k}, v{4+k}, v{12+k}")
A("v_lshlrev_b32 v28, 5, v1\ns_lshl_b32 s9, s6, 7\nv_add_u32 v28, s9, v28\ns_mov_b64 exec, 15")
A(f"ds_write_b128 v28, v[4:7] offset:{QW}\nds_write_b128 v28, v[8:11] offset:{QW+16}")
A("s_mov_b64 exec, -1")
A("s_waitcnt lgkmcnt(0)\ns_barrier")
A("s_cmp_eq_u32 s6, 0\ns_cbranch_scc1 L_q_w0")
A("s_cmp_eq_u32 s86, 0\ns_cbranch_scc0 L_q_w")
for n in range(NB0, NBP): issue_tile(n, track=False)
A("s_branch L_q_w")
A("L_q_w0:")
A("v_and_b32 v28, 15, v1\nv_lshlrev_b32 v28, 3, v28")
for w in range(8): A(f"ds_read_b64 v[{32+2*w}:{33+2*w}], v28 offset:{QW+128*w}")
A("s_waitcnt lgkmcnt(0)")
for w in range(1, 8): A(f"v_add_f32 v32, v32, v{32+2*w}\nv_add_f32 v33, v33, v{33+2*w}")
A("v_cvt_pk_bf16_f32 v32, v32, v33")
A("s_cmp_eq_u32 s86, 0\ns_cbranch_scc0 L_q_fallback")
A("v_readfirstlane_b32 s9, v122\ns_nop 3\ns_cmp_eq_u32 s9, 0\ns_cselect_b32 s16, s16, s9")
A(f"v_mov_b32 v33, s16\nv_mov_b32 v29, 0\nds_write_b32 v29, v33 offset:{NONCE}")
A(f"s_lshl_b32 s9, s7, 10\ns_lshl_b32 s10, s5, 7\ns_add_u32 s10, s10, s9\ns_add_u32 s10, s10, 0x{WS_QS:x}\ns_add_u32 s9, s9, 0x{WS_QS:x}")
A("s_mov_b64 exec, 0xffff")
A(f"buffer_store_dwordx2 v[32:33], v28, {srd(SWS)}, s10 offen sc1")
A("s_mov_b64 exec, -1")
stamp(2)
A("s_mov_b32 s85, s9")
for n in range(NB0, NBP): issue_tile(n, track=False)
A("s_mov_b32 s9, s85")
A("s_mov_b32 s87, 0")
A("L_qpoll:")
A(f"buffer_load_dwordx4 v[32:35], v3, {srd(SWS)}, s9 offen sc1")
A("s_waitcnt vmcnt(0)")
A("v_cmp_eq_u32 vcc, s16, v33\nv_cmp_eq_u32 s[80:81], s16, v35\ns_nop 3\ns_and_b64 vcc, vcc, s[80:81]\ns_cmp_eq_u64 vcc, -1\ns_cbranch_scc1 L_qgot")
if SLP: A(f"s_sleep {SLP}")
A(f"s_add_u32 s87, s87, 1\ns_cmp_lt_u32 s87, {SPIN_LIMIT}\ns_cbranch_scc1 L_qpoll")
A(f"v_mov_b32 v28, 1\nv_mov_b32 v29, 0\nds_write_b32 v29, v28 offset:{QFLAG}")
A("s_branch L_q_w")
A("L_qgot:")
stamp(10)
A("v_mov_b32 v33, v34\nv_lshlrev_b32 v28, 3, v1")
A(f"ds_write_b64 v28, v[32:33] offset:{QB}")
A(f"v_mov_b32 v28, 0\nds_write_b32 v28, v28 offset:{QFLAG}")
A("s_branch L_q_w")
A("L_q_fallback:")
A("v_lshrrev_b32 v28, 1, v28\ns_lshl_b32 s9, s84, 6\nv_add_u32 v28, s9, v28\ns_mov_b64 exec, 0xffff")
A(f"ds_write_b32 v28, v32 offset:{QB}")
A("s_mov_b64 exec, -1")
A("L_q_w:")
stamp(11)
A("s_waitcnt lgkmcnt(0)\ns_barrier")
A("s_cmp_eq_u32 s86, 0\ns_cbranch_scc0 L_q_m1")
A(f"v_mov_b32 v28, 0\nds_read_b32 v28, v28 offset:{QFLAG}\ns_waitcnt lgkmcnt(0)\nv_readfirstlane_b32 s9, v28\ns_nop 3\ns_cmp_eq_u32 s9, 0\ns_cbranch_scc1 L_qdone")
A("s_mov_b32 s86, 1\ns_mov_b32 s84, 0\ns_branch L_share_loop")
A("L_q_m1:")
A("s_add_u32 s84, s84, 1\ns_cmp_lt_u32 s84, 8\ns_cbranch_scc1 L_share_loop")
A("L_qdone:")
hstamp(5)
A("v_and_b32 v12, 31, v1\nv_lshlrev_b32 v12, 4, v12")
A(f"ds_read_b128 v[24:27], v12 offset:{QB}")
A(f"v_mov_b32 v13, 0\nds_read_b32 v13, v13 offset:{NONCE}\ns_waitcnt lgkmcnt(0)\nv_readfirstlane_b32 s16, v13")
vm.q = []
for n in range(NBP):
    for j in range(8): vm.issue(f"t{n}")
nxt = [NBP]
def advance(t):
    while nxt[0] <= min(t + LA, 15):
        issue_tile(nxt[0]); nxt[0] += 1
advance(-1)
A("s_waitcnt lgkmcnt(0)")
stamp(3)

S = 32
for t in range(8):
    b = tbuf(t)
    if TB and t >= TB0: A("s_barrier")
    vm.wait(f"t{t}")
    for k in range(4):
        for j in range(8):
            c = "0" if k == 0 else f"v{4+j}"
            A(f"v_dot2_f32_bf16 v{4+j}, v{b+4*j+k}, v{24+k}, {c}")
    advance(t)
    A("s_nop 3")
    for i in range(4): A(f"v_permlane16_swap_b32 v{4+2*i}, v{5+2*i}")
    A("s_nop 0")
    for i in range(4): A(f"v_add_f32 v{12+i}, v{4+2*i}, v{5+2*i}")
    for r in (8, 4, 2, 1):
        A("s_nop 0")
        for i in range(4): A(f"v_add_f32_dpp v{12+i}, v{12+i}, v{12+i} row_ror:{r} row_mask:0xf bank_mask:0xf")
    for i in range(4): rbf(S + 4*t + i, 12 + i)
stamp(4)
A(f"v_max3_f32 v30, v{S}, v{S+1}, v{S+2}")
for i in range(3, 31, 2): A(f"v_max3_f32 v30, v30, v{S+i}, v{S+i+1}")
A(f"v_max_f32 v30, v30, v{S+31}")
def cross_rows(op, v, tmp):
    for sw in ("v_permlane16_swap_b32", "v_permlane32_swap_b32"):
        A(f"v_mov_b32 v{tmp}, v{v}\ns_nop 1\n{sw} v{v}, v{tmp}\ns_nop 0\n{op} v{v}, v{v}, v{tmp}")
cross_rows("v_max_f32", 30, 12)
for i in range(32):
    A(f"v_sub_f32 v12, v{S+i}, v30\nv_mul_f32 v12, s13, v12\nv_exp_f32 v{S+i}, v12")
A("s_nop 0")
A(f"v_add_f32 v31, v{S}, v{S+1}")
for i in range(2, 32): A(f"v_add_f32 v31, v31, v{S+i}")
cross_rows("v_add_f32", 31, 12)
A("""v_lshrrev_b32 v12, 5, v1
v_lshlrev_b32 v12, 5, v12
v_bfe_u32 v13, v1, 4, 1
v_lshl_add_u32 v12, v13, 2, v12
s_lshl_b32 s15, s6, 9
v_add_u32 v12, s15, v12
s_mov_b32 exec_lo, 0x00010001
s_mov_b32 exec_hi, 0x00010001""")
for t in range(8):
    for i in range(4): A(f"ds_write_b32 v12, v{S+4*t+i} offset:{PL+64*t+8*i}")
A("s_mov_b64 exec, -1")
A("v_lshrrev_b32 v29, 5, v1\nv_lshlrev_b32 v29, 5, v29\nv_add_u32 v29, s15, v29")
for k in range(8): A(f"v_mov_b32 v{4+k}, 0")
PV = [12, 20]
A("s_waitcnt lgkmcnt(0)")
A(f"ds_read_b128 v[12:15], v29 offset:{PL}\nds_read_b128 v[16:19], v29 offset:{PL+16}")
for t in range(8):
    n = 8 + t
    b = tbuf(n)
    pv = PV[t & 1]
    A("s_waitcnt lgkmcnt(0)")
    if t < 7:
        pn = PV[(t+1) & 1]
        A(f"ds_read_b128 v[{pn}:{pn+3}], v29 offset:{PL+64*(t+1)}\nds_read_b128 v[{pn+4}:{pn+7}], v29 offset:{PL+64*(t+1)+16}")
    if TB: A("s_barrier")
    vm.wait(f"t{n}")
    for j in range(8):
        for k in range(4):
            w = b + 4*j + k
            A(f"v_lshlrev_b32 v28, 16, v{w}\nv_fmac_f32 v{4+2*k}, v{pv+j}, v28")
            A(f"v_and_b32 v28, s14, v{w}\nv_fmac_f32 v{5+2*k}, v{pv+j}, v28")
    advance(n)
stamp(5)
hstamp(6)
hstamp(7, True)
A("s_lshl_b32 s9, s6, 11\nv_lshlrev_b32 v12, 5, v1\nv_add_u32 v12, s9, v12")
A(f"ds_write_b128 v12, v[4:7] offset:{OP}\nds_write_b128 v12, v[8:11] offset:{OP+16}")
A("s_lshl_b32 s9, s6, 3\nv_mov_b32 v12, s9\ns_mov_b64 exec, 1")
A(f"ds_write_b64 v12, v[30:31] offset:{MLS}")
A("s_mov_b64 exec, -1")
A("s_waitcnt lgkmcnt(0)\ns_barrier")
A("s_cmp_lt_u32 s6, 4\ns_cbranch_scc0 L_pub_a")
CB = 64
A("v_mov_b32 v12, 0")
for i in range(4): A(f"ds_read_b128 v[{CB+4*i}:{CB+4*i+3}], v12 offset:{MLS+16*i}")
A("v_lshlrev_b32 v12, 2, v0")
for w in range(8):
    A(f"ds_read_b32 v{CB+16+2*w}, v12 offset:{OP+2048*w}\nds_read_b32 v{CB+17+2*w}, v12 offset:{OP+2048*w+1024}")
A("s_waitcnt lgkmcnt(0)")
A(f"v_max3_f32 v30, v{CB}, v{CB+2}, v{CB+4}\nv_max3_f32 v30, v30, v{CB+6}, v{CB+8}\nv_max3_f32 v30, v30, v{CB+10}, v{CB+12}\nv_max_f32 v30, v30, v{CB+14}")
A("v_mov_b32 v31, 0\nv_mov_b32 v13, 0")
for w in range(8):
    A(f"v_sub_f32 v14, v{CB+2*w}, v30\nv_mul_f32 v14, s13, v14\nv_exp_f32 v14, v14")
    A(f"v_add_f32 v15, v{CB+16+2*w}, v{CB+17+2*w}")
    A(f"v_fmac_f32 v31, v14, v{CB+2*w+1}\nv_fmac_f32 v13, v14, v15")
A("s_lshl_b32 s15, s7, 3\ns_add_u32 s15, s15, s5")
A(f"s_lshl_b32 s9, s15, 11\ns_add_u32 s9, s9, 0x{WS_PO:x}")
A("v_mov_b32 v14, v13\nv_mov_b32 v15, s16\nv_lshlrev_b32 v12, 3, v0")
A(f"buffer_store_dwordx2 v[14:15], v12, {srd(SWS)}, s9 offen sc1")
A("s_cmp_eq_u32 s6, 0\ns_cbranch_scc0 L_pub_a")
A("v_mov_b32 v16, v30\nv_mov_b32 v17, s16\nv_mov_b32 v18, v31\nv_mov_b32 v19, s16")
A(f"s_lshl_b32 s9, s15, 4\ns_add_u32 s9, s9, 0x{WS_ML:x}\ns_mov_b64 exec, 1")
A(f"buffer_store_dwordx4 v[16:19], v12, {srd(SWS)}, s9 offen sc1")
A("v_mov_b32 v26, 1\nv_mov_b32 v27, 4\nv_mov_b32 v25, 0")
A(f"buffer_atomic_add v26, v27, {srd(SDBG)}, 0 offen sc0")
A("s_waitcnt vmcnt(0)")
A(f"ds_write_b32 v25, v26 offset:{TICK}")
A("s_mov_b64 exec, -1")
A("L_pub_a:")
stamp(6)
A("L_role_a:")
A("s_waitcnt lgkmcnt(0)\ns_barrier")
A(f"v_mov_b32 v5, 0\nds_read_b32 v4, v5 offset:{TICK}\ns_waitcnt lgkmcnt(0)")
A("v_readfirstlane_b32 s5, v4")
A("v_mov_b32 v5, 0x7f000000\nv_cmp_gt_u32 vcc, 56, v1\ns_nop 1\nv_cndmask_b32 v31, v5, v3, vcc")
if DIAG:
    A("s_mov_b64 exec, 1")
    for i in range(12): A(f"v_mov_b32 v{4+i}, s{88+i}")
    A(f"v_mov_b32 v20, 0\ns_lshl_b32 s9, s2, 3\ns_add_u32 s9, s9, s6\ns_lshl_b32 s9, s9, 6\ns_add_u32 s9, s9, 0x{WS_DG:x}")
    for i in range(3): A(f"buffer_store_dwordx4 v[{4+4*i}:{7+4*i}], v20, {srd(SWS)}, s9 offen offset:{16*i}")
    A("s_mov_b64 exec, -1")
    for i in range(12): A(f"s_mov_b32 s{88+i}, 0")
    A("s_add_u32 s2, s5, 256")
    stamp(0)
A(f"s_cmp_ge_u32 s5, {NARR}\ns_cbranch_scc1 L_end")
A(f"s_cmp_ge_u32 s5, {NFFN}\ns_cbranch_scc1 L_cmb")
A("s_branch L_ffn")

def publish_tail(tag=""):
    A(f"s_mul_i32 s9, s6, 3584\ns_add_u32 s9, s9, {DP}\nv_lshlrev_b32 v28, 5, v1\nv_add_u32 v28, s9, v28")
    A("s_mov_b32 exec_hi, 0x00ffffff")
    A(f"ds_write_b128 v28, v[4:7]\nds_write_b128 v28, v[8:11] offset:16")
    A(f"ds_write_b128 v28, v[12:15] offset:1792\nds_write_b128 v28, v[16:19] offset:{1792+16}")
    A("s_mov_b32 exec_hi, -1")
    A("s_waitcnt lgkmcnt(0)\ns_barrier")
    A("v_cmp_gt_u32 vcc, 224, v0\ns_and_saveexec_b64 s[80:81], vcc\ns_cbranch_execz L_pt_c" + tag)
    A(f"v_lshlrev_b32 v28, 4, v0\nv_add_u32 v29, {DP}, v28")
    for w in range(8):
        A(f"ds_read_b128 v[{64+4*w}:{67+4*w}], v29 offset:{3584*w}")
    A("s_waitcnt lgkmcnt(0)")
    for w in range(1, 8):
        for k in range(4): A(f"v_add_f32 v{64+k}, v{64+k}, v{64+4*w+k}")
    A("v_mov_b32 v72, v64\nv_mov_b32 v73, s16\nv_mov_b32 v74, v65\nv_mov_b32 v75, s16\nv_mov_b32 v76, v66\nv_mov_b32 v77, s16\nv_mov_b32 v78, v67\nv_mov_b32 v79, s16")
    A("v_lshlrev_b32 v28, 5, v0")
    A(f"buffer_store_dwordx4 v[72:75], v28, {srd(SWS)}, s15 offen sc1")
    A(f"buffer_store_dwordx4 v[76:79], v28, {srd(SWS)}, s15 offen offset:16 sc1")
    A("L_pt_c" + tag + ":")
    A("s_mov_b64 exec, -1")

A("L_ffn:")
FG, FD = 96, 192
A(f"buffer_load_dwordx4 v[8:11], v31, {srd(SX)}, 0 offen")
A(f"buffer_load_dwordx4 v[12:15], v31, {srd(SX)}, 0 offen offset:896")
A("""v_lshrrev_b32 v6, 2, v1
s_movk_i32 s9, 3584
v_mul_lo_u32 v6, v6, s9
v_and_b32 v7, 3, v1
v_lshl_add_u32 v6, v7, 4, v6
s_and_b32 s9, s6, 3
s_mul_i32 s9, s9, 401408
s_lshl_b32 s10, s5, 6
s_add_u32 s9, s9, s10""")
for j in range(7):
    A(f"buffer_load_dwordx4 v[{FG+4*j}:{FG+4*j+3}], v6, {srd(SGU)}, s9 offen{WNT}")
    if j < 6: A("s_add_u32 s9, s9, 57344")
A("s_lshl_b32 s9, s5, 3\ns_add_u32 s9, s9, s6\ns_mul_i32 s9, s9, 3584")
for j in range(4):
    A(f"buffer_load_dwordx4 v[{FD+4*j}:{FD+4*j+3}], v31, {srd(SWD)}, s9 offen offset:{896*j}{WNT}")
A("s_waitcnt vmcnt(11)")
for bb in range(2):
    layernorm(8 + 4*bb)
    A("s_mov_b32 exec_hi, 0x00ffffff")
    A("v_lshlrev_b32 v25, 5, v1")
    A(f"ds_write_b128 v25, v[16:19] offset:{XNF+1792*bb}")
    A(f"ds_write_b128 v25, v[20:23] offset:{XNF+1792*bb+16}")
    A("s_mov_b32 exec_hi, -1")
A("""s_and_b32 s9, s6, 3
s_mul_i32 s9, s9, 448
v_lshrrev_b32 v26, 2, v1
v_lshlrev_b32 v26, 2, v26
v_add_u32 v26, s9, v26""")
for k in range(16): A(f"v_mov_b32 v{4+k}, 0")
A("s_waitcnt lgkmcnt(0)")
for j in range(7):
    A(f"ds_read_b32 v{128+2*j}, v26 offset:{XNF+64*j}\nds_read_b32 v{129+2*j}, v26 offset:{XNF+1792+64*j}")
A("s_waitcnt lgkmcnt(0)\ns_waitcnt vmcnt(4)")
for j in range(7):
    for k in range(4):
        w = FG + 4*j + k
        A(f"v_lshlrev_b32 v22, 16, v{w}\nv_and_b32 v23, s14, v{w}")
        A(f"v_fmac_f32 v{4+2*k}, v{128+2*j}, v22\nv_fmac_f32 v{5+2*k}, v{128+2*j}, v23")
        A(f"v_fmac_f32 v{12+2*k}, v{129+2*j}, v22\nv_fmac_f32 v{13+2*k}, v{129+2*j}, v23")
A("""v_lshrrev_b32 v27, 2, v1
v_lshlrev_b32 v27, 8, v27
v_and_b32 v22, 3, v1
v_lshl_add_u32 v27, v22, 5, v27
s_lshl_b32 s9, s6, 12
v_add_u32 v27, s9, v27""")
A(f"ds_write_b128 v27, v[4:7] offset:{GP}\nds_write_b128 v27, v[8:11] offset:{GP+16}")
A(f"ds_write_b128 v27, v[12:15] offset:{GP+128}\nds_write_b128 v27, v[16:19] offset:{GP+144}")
A("s_waitcnt lgkmcnt(0)\ns_barrier")
A("s_cmp_lt_u32 s6, 2\ns_cbranch_scc0 L_ffn_a")
A("s_lshl_b32 s9, s6, 14\nv_lshlrev_b32 v26, 2, v1\nv_add_u32 v26, s9, v26")
for g in range(4):
    for i in range(16):
        A(f"ds_read_b32 v{128+16*g+i}, v26 offset:{GP+4096*g+256*i}")
A("s_waitcnt lgkmcnt(0)")
A("v_add_f32 v4, v128, v129")
for i in range(2, 64): A(f"v_add_f32 v4, v4, v{128+i}")
rbf(4, 4)
A("s_lshl_b32 s9, s6, 8\nv_lshlrev_b32 v26, 2, v1\nv_add_u32 v26, s9, v26")
A(f"ds_write_b32 v26, v4 offset:{GUS}")
A("L_ffn_a:")
A("s_waitcnt lgkmcnt(0)\ns_barrier")
A("s_cmp_eq_u32 s6, 0\ns_cbranch_scc0 L_ffn_b")
A("v_lshlrev_b32 v26, 2, v1")
A(f"ds_read_b32 v4, v26 offset:{GUS}\nds_read_b32 v5, v26 offset:{GUS+256}")
A("s_waitcnt lgkmcnt(0)")
A(f"v_mul_f32 v6, 0x{f32bits(-1.4426950408889634):08x}, v4")
A("v_exp_f32 v6, v6\ns_nop 0\nv_add_f32 v6, 1.0, v6\nv_rcp_f32 v7, v6\ns_nop 0")
A("v_mul_f32 v8, v4, v7\nv_fma_f32 v9, -v8, v6, v4\nv_fma_f32 v8, v9, v7, v8")
rbf(8, 8)
A("v_mul_f32 v8, v8, v5")
rbf(8, 8)
A(f"ds_write_b32 v26, v8 offset:{HS}")
A("L_ffn_b:")
A("s_waitcnt lgkmcnt(0)\ns_barrier")
A("s_lshl_b32 s9, s6, 4\nv_mov_b32 v26, s9")
A(f"ds_read_b128 v[20:23], v26 offset:{HS}\nds_read_b128 v[24:27], v26 offset:{HS+128}")
for k in range(16): A(f"v_mov_b32 v{4+k}, 0")
A("s_waitcnt lgkmcnt(0)\ns_waitcnt vmcnt(0)")
for j in range(4):
    for k in range(4):
        w = FD + 4*j + k
        A(f"v_lshlrev_b32 v28, 16, v{w}\nv_and_b32 v29, s14, v{w}")
        A(f"v_fmac_f32 v{4+2*k}, v{20+j}, v28\nv_fmac_f32 v{5+2*k}, v{20+j}, v29")
        A(f"v_fmac_f32 v{12+2*k}, v{24+j}, v28\nv_fmac_f32 v{13+2*k}, v{24+j}, v29")
A(f"s_mul_i32 s15, s5, 7168\ns_add_u32 s15, s15, 0x{WS_FP:x}\ns_mov_b32 s5, 99")
A("s_branch L_tail")


A("L_cmb:")
A(f"s_sub_u32 s5, s5, {NFFN}\ns_lshr_b32 s3, s5, 2\ns_and_b32 s4, s5, 3")
WO = 224
A("s_lshl_b32 s9, s5, 3\ns_add_u32 s9, s9, s6\ns_mul_i32 s9, s9, 7168")
for i in range(8):
    if i == 4: A("s_add_u32 s9, s9, 3584")
    A(f"buffer_load_dwordx4 v[{WO+4*i}:{WO+4*i+3}], v31, {srd(SWO)}, s9 offen offset:{896*(i%4)}{WNT}")
A("s_cmp_eq_u32 s6, 0\ns_cbranch_scc0 L_cmb_w")
A("v_bfe_u32 v28, v1, 3, 1\nv_lshlrev_b32 v28, 11, v28\nv_and_b32 v29, 7, v1\nv_lshl_add_u32 v28, v29, 4, v28")
A(f"s_lshl_b32 s9, s3, 7\ns_add_u32 s9, s9, 0x{WS_ML:x}")
A("s_mov_b64 exec, 0xffff")
A("L_cpoll:")
A(f"buffer_load_dwordx4 v[4:7], v28, {srd(SWS)}, s9 offen sc1")
A("s_waitcnt vmcnt(0)")
A("v_cmp_eq_u32 vcc, s16, v5\nv_cmp_eq_u32 s[80:81], s16, v7\ns_nop 3\ns_and_b64 vcc, vcc, s[80:81]\ns_cmp_eq_u64 vcc, exec\ns_cbranch_scc1 L_cgot")
if CSLP: A(f"s_sleep {CSLP}")
A("s_branch L_cpoll")
A("L_cgot:")
A("s_mov_b64 exec, -1")
A("L_cmb_w:")
A("s_barrier")
stamp(1)
A("""v_and_b32 v4, 7, v1
v_bfe_u32 v5, v1, 3, 1
v_lshlrev_b32 v6, 18, v5
v_lshl_add_u32 v6, v4, 3, v6
v_lshlrev_b32 v7, 11, v5""")
A("L_cload:")
A(f"s_lshl_b32 s9, s3, 14\ns_lshl_b32 s10, s4, 9\ns_add_u32 s9, s9, s10\ns_lshl_b32 s10, s6, 6\ns_add_u32 s9, s9, s10\ns_add_u32 s9, s9, 0x{WS_PO:x}")
for sp in range(8):
    A(f"buffer_load_dwordx2 v[{128+2*sp}:{129+2*sp}], v6, {srd(SWS)}, s9 offen offset:{2048*(sp%2)} sc1")
    if sp % 2 == 1 and sp < 7: A("s_add_u32 s9, s9, 4096")
A(f"s_lshl_b32 s9, s3, 7\ns_add_u32 s9, s9, 0x{WS_ML:x}")
for sp in range(8): A(f"buffer_load_dwordx4 v[{144+4*sp}:{147+4*sp}], v7, {srd(SWS)}, s9 offen offset:{16*sp} sc1")
A("s_waitcnt vmcnt(0)")
A("s_mov_b64 s[82:83], -1")
for sp in range(8):
    A(f"v_cmp_eq_u32 vcc, s16, v{129+2*sp}\ns_nop 3\ns_and_b64 s[82:83], s[82:83], vcc")
A("s_cmp_eq_u64 s[82:83], -1\ns_cbranch_scc0 L_cload")
m0 = 144
A(f"v_max3_f32 v10, v{m0}, v{m0+4}, v{m0+8}\nv_max3_f32 v10, v10, v{m0+12}, v{m0+16}\nv_max3_f32 v10, v10, v{m0+20}, v{m0+24}\nv_max_f32 v10, v10, v{m0+28}")
A("v_mov_b32 v11, 0\nv_mov_b32 v12, 0")
for sp in range(8):
    A(f"v_sub_f32 v13, v{m0+4*sp}, v10\nv_mul_f32 v13, s13, v13\nv_exp_f32 v13, v13\ns_nop 0")
    A(f"v_fmac_f32 v11, v13, v{m0+4*sp+2}\nv_fmac_f32 v12, v13, v{128+2*sp}")
A("v_rcp_f32 v13, v11\ns_nop 0\nv_mul_f32 v14, v12, v13\nv_fma_f32 v15, -v14, v11, v12\nv_fma_f32 v14, v15, v13, v14")
rbf(14, 14)
A("s_nop 0")
for i in range(16): A(f"v_readlane_b32 s{20+i}, v14, {i}")
for k in range(16): A(f"v_mov_b32 v{4+k}, 0")
for i in range(8):
    for k in range(4):
        w = WO + 4*i + k
        A(f"v_lshlrev_b32 v28, 16, v{w}\nv_and_b32 v29, s14, v{w}")
        A(f"v_fmac_f32 v{4+2*k}, s{20+i}, v28\nv_fmac_f32 v{5+2*k}, s{20+i}, v29")
        A(f"v_fmac_f32 v{12+2*k}, s{28+i}, v28\nv_fmac_f32 v{13+2*k}, s{28+i}, v29")
A(f"s_mul_i32 s15, s5, 7168\ns_add_u32 s15, s15, 0x{WS_YC:x}")
A("L_tail:")
hstamp(9)
stamp(2)
publish_tail()
stamp(3)
A(f"s_cmp_ge_u32 s5, {NFIN}\ns_cbranch_scc1 L_fin_end")
A("s_and_b32 s4, s5, 1\ns_lshr_b32 s5, s5, 1")
A("v_lshlrev_b32 v6, 3, v1\ns_lshl_b32 s10, s5, 9\nv_add_u32 v6, s10, v6")
A("v_lshrrev_b32 v7, 2, v6\ns_mul_i32 s10, s4, 896")
A(f"buffer_load_ushort v100, v7, {srd(SX)}, s10 offen")
A("s_mul_i32 s15, s4, 3584")
A("L_fpoll:")
A(f"s_mul_i32 s10, s6, {8*7168}\ns_add_u32 s10, s10, s15\ns_add_u32 s10, s10, 0x{WS_YC:x}")
for i in range(8):
    A(f"buffer_load_dwordx2 v[{64+2*i}:{65+2*i}], v6, {srd(SWS)}, s10 offen sc1")
    A("s_add_u32 s10, s10, 7168")
A(f"s_mul_i32 s10, s6, {7*7168}\ns_add_u32 s10, s10, s15\ns_add_u32 s10, s10, 0x{WS_FP:x}")
for i in range(7):
    A(f"buffer_load_dwordx2 v[{80+2*i}:{81+2*i}], v6, {srd(SWS)}, s10 offen sc1")
    A("s_add_u32 s10, s10, 7168")
A("s_waitcnt vmcnt(0)")
A("s_mov_b64 s[82:83], -1")
for i in range(15):
    A(f"v_cmp_eq_u32 vcc, s16, v{65+2*i}\ns_nop 3\ns_and_b64 s[82:83], s[82:83], vcc")
A("s_cmp_eq_u64 s[82:83], -1\ns_cbranch_scc1 L_fgot")
if FSLP: A(f"s_sleep {FSLP}")
A("s_branch L_fpoll")
A("L_fgot:")
hstamp(8)
stamp(5)
A("v_add_f32 v8, v64, v66")
for i in range(2, 8): A(f"v_add_f32 v8, v8, v{64+2*i}")
A("v_add_f32 v9, v80, v82")
for i in range(2, 7): A(f"v_add_f32 v9, v9, v{80+2*i}")
A("s_lshl_b32 s9, s6, 8\nv_lshlrev_b32 v10, 2, v1\nv_add_u32 v10, s9, v10")
A(f"ds_write_b32 v10, v8 offset:{PL}\nds_write_b32 v10, v9 offset:{PL+2048}")
A("s_waitcnt lgkmcnt(0)\ns_barrier")
A("s_cmp_eq_u32 s6, 0\ns_cbranch_scc0 L_fin_end")
A("v_lshlrev_b32 v10, 2, v1")
for g in range(8): A(f"ds_read_b32 v{12+g}, v10 offset:{PL+256*g}\nds_read_b32 v{20+g}, v10 offset:{PL+2048+256*g}")
A("s_waitcnt lgkmcnt(0)")
for g in range(1, 8): A(f"v_add_f32 v12, v12, v{12+g}\nv_add_f32 v20, v20, v{20+g}")
rbf(12, 12); rbf(20, 20)
A("v_lshlrev_b32 v100, 16, v100\nv_add_f32 v12, v100, v12")
rbf(12, 12)
A("v_add_f32 v12, v12, v20\nv_cvt_pk_bf16_f32 v12, v12, v12")
A("s_mul_i32 s10, s4, 896")
A(f"buffer_store_short v12, v7, {srd(SOUT)}, s10 offen")
stamp(6)
A("L_fin_end:")
if DIAG:
    A("s_mov_b64 exec, 1")
    for i in range(12): A(f"v_mov_b32 v{4+i}, s{88+i}")
    A(f"v_mov_b32 v20, 0\ns_lshl_b32 s9, s2, 3\ns_add_u32 s9, s9, s6\ns_lshl_b32 s9, s9, 6\ns_add_u32 s9, s9, 0x{WS_DG:x}")
    for i in range(3): A(f"buffer_store_dwordx4 v[{4+4*i}:{7+4*i}], v20, {srd(SWS)}, s9 offen offset:{16*i}")
A("L_end:\ns_endpgm")
A(f'''.section .rodata,"a"
.p2align 6
.amdhsa_kernel {KN}
  .amdhsa_next_free_vgpr 256
  .amdhsa_next_free_sgpr 102
  .amdhsa_accum_offset 256
  .amdhsa_group_segment_fixed_size 0
  .amdhsa_kernarg_size 96
  .amdhsa_user_sgpr_count 2
  .amdhsa_user_sgpr_kernarg_segment_ptr 1
  .amdhsa_system_sgpr_workgroup_id_x 1
.end_amdhsa_kernel''')
print("\n".join(out))
```
